```python
import torch

def _softmax(x, axis=-1):
    return torch.softmax(x, dim=axis)
def _gelu(x):
    return torch.nn.functional.gelu(x, approximate="tanh")
def _silu(x):
    return torch.nn.functional.silu(x)
def _sigmoid(x):
    return torch.sigmoid(x)
def _layernorm(x, axis=-1, eps=1e-5):
    m = x.mean(dim=axis, keepdim=True)
    v = x.var(dim=axis, keepdim=True, unbiased=False)
    return (x - m) / torch.sqrt(v + eps)
def _scatter_add(tgt, idx, src, axis=0):
    return tgt.clone().index_add_(axis, idx, src)
def _segment_sum(src, seg, n):
    out = torch.zeros((n,) + src.shape[1:], dtype=src.dtype)
    return out.index_add_(0, seg, src)
def _pad(x, pw):
    flat = tuple(v for pair in reversed(pw) for v in pair)
    return torch.nn.functional.pad(x, flat)

kernel_name = 'parallel_sum__ssm_conv_s4__dense_activation_mish__prompt'

def setup_inputs():

    _w = (lambda a: (lambda t: t.to(torch.bfloat16) if t.is_floating_point() else t)(torch.as_tensor(a)))
    def _A_setup():
        B, L, D, N = 1, 2048, 576, 128
        A_re = -(lambda _x: torch.exp(torch.as_tensor(_x)))((lambda *s: torch.randn(*s, dtype=torch.bfloat16) * 6.4)(D, N))
        A_im = torch.pi * (lambda *s: torch.randn(*s, dtype=torch.bfloat16) * 0.05)(D, N)
        B_re = (lambda *s: torch.randn(*s, dtype=torch.bfloat16) * 0.1)(D, N)
        B_im = (lambda *s: torch.randn(*s, dtype=torch.bfloat16) * 0.1)(D, N)
        C_re = (lambda *s: torch.randn(*s, dtype=torch.bfloat16) * 0.1)(D, N)
        C_im = (lambda *s: torch.randn(*s, dtype=torch.bfloat16) * 0.1)(D, N)
        log_dt = (lambda *s: torch.randn(*s, dtype=torch.bfloat16) * 0.05)(D) * 0.5 - 4.0
        Dskip = (lambda *s: torch.randn(*s, dtype=torch.bfloat16) * 0.05)(D)
        return {
            "u": _w((lambda *s: torch.randn(*s, dtype=torch.bfloat16) * 0.05)(B, L, D)),
            "A_re": _w(A_re),
            "A_im": _w(A_im),
            "B_re": _w(B_re),
            "B_im": _w(B_im),
            "C_re": _w(C_re),
            "C_im": _w(C_im),
            "log_dt": _w(log_dt),
            "Dskip": _w(Dskip),
        }
    _A_in = _A_setup()

    def _B_setup():
        B, S, D, F = 1, 2048, 576, 4608
        return {
            "x": _w((lambda *s: torch.randn(*s, dtype=torch.bfloat16) * 0.05)(B, S, D)),
            "w1": _w((lambda *s: torch.randn(*s, dtype=torch.bfloat16) * 0.8)(D, F) * (D ** -0.5)),
            "b1": _w((lambda *s: torch.randn(*s, dtype=torch.bfloat16) * 0.2)(F)),
            "w2": _w((lambda *s: torch.randn(*s, dtype=torch.bfloat16) * 0.2)(F, D) * (F ** -0.5)),
        }
    _B_in = _B_setup()

    return {
        "A_u": _A_in["u"],
        "A_A_re": _A_in["A_re"],
        "A_A_im": _A_in["A_im"],
        "A_B_re": _A_in["B_re"],
        "A_B_im": _A_in["B_im"],
        "A_C_re": _A_in["C_re"],
        "A_C_im": _A_in["C_im"],
        "A_log_dt": _A_in["log_dt"],
        "A_Dskip": _A_in["Dskip"],
        "B_x": _B_in["x"],
        "B_w1": _B_in["w1"],
        "B_b1": _B_in["b1"],
        "B_w2": _B_in["w2"],
    }

def reference(A_u, A_A_re, A_A_im, A_B_re, A_B_im, A_C_re, A_C_im, A_log_dt, A_Dskip, B_x, B_w1, B_b1, B_w2):
    def _A_ref(u, A_re, A_im, B_re, B_im, C_re, C_im, log_dt, Dskip):
        Bsz, L, D = u.shape
        dt = torch.exp(log_dt)[:, None]
        A = A_re + 1j * A_im
        Bc = B_re + 1j * B_im
        Cc = C_re + 1j * C_im
        logdA = dt * A
        dB = dt * Bc
        l = (lambda x, dt: x.to(dt))(torch.arange(L), A_re.dtype)
        P = torch.exp(logdA[:, :, None] * l[None, None, :])
        K = torch.einsum("dn,dnl,dn->dl", Cc, P, dB).real
        L2 = 2 * L
        Kp = _pad(K, ((0, 0), (0, L)))
        up = (lambda x, *d: x.permute(*d))(u, 0, 2, 1)
        up = _pad(up, ((0, 0), (0, 0), (0, L)))
        Kf = (lambda x, axes=(-2,-1): torch.fft.rfft2(x.float(), dim=axes))(Kp[:, None, :], axes=(-2, -1))
        Uf = (lambda x, axes=(-2,-1): torch.fft.rfft2(x.float(), dim=axes))(up[:, :, None, :], axes=(-2, -1))
        Yf = Uf * Kf[None, :, :, :]
        y = (lambda x, s, axes=(-2,-1): torch.fft.irfft2(x, s=s, dim=axes).to(torch.bfloat16))(Yf, (1, L2), axes=(-2, -1))[:, :, 0, :L]
        y = (lambda x, *d: x.permute(*d))(y, 0, 2, 1) + u * Dskip[None, None, :]
        return y

    def _B_ref(x, w1, b1, w2):
        h = torch.einsum("bsd,df->bsf", x, w1) + b1
        sp = torch.log1p(torch.exp(-torch.abs(h))) + torch.where(h > 0, h, torch.zeros_like(h))
        act = h * torch.tanh(sp)
        return torch.einsum("bsf,fd->bsd", act, w2)

    x = A_u
    xn = _layernorm(x, axis=-1)
    return x + _A_ref(xn, A_A_re, A_A_im, A_B_re, A_B_im, A_C_re, A_C_im, A_log_dt, A_Dskip) + _B_ref(xn, B_w1, B_b1, B_w2)
```

```python
NAME = "parallel_sum__ssm_conv_s4__dense_activation_mish__prompt"
L, D, N, F = 2048, 576, 128, 4608
PA = 9216+256
XN   = 0
XNT  = XN + L*D*2
W1T  = XNT + L*D*2
W2T  = W1T + D*F*2
KH   = W2T + D*PA
KL   = KH + D*L*2
ACT  = KL + D*L*2
YA   = ACT + L*PA
WS_END = YA + L*D*2

class Asm:
    def __init__(s): s.l=[]
    def __call__(s, t):
        for x in t.strip("\n").split("\n"): s.l.append("    "+x.strip() if not x.strip().endswith(":") else x.strip())
    def text(s): return "\n".join(s.l)+"\n"

def srd(a, sd, sb, off, nbytes):
    a(f"""s_add_u32 s{sd}, s{sb}, {off}
s_addc_u32 s{sd+1}, s{sb+1}, 0
s_and_b32 s{sd+1}, s{sd+1}, 0xffff
s_mov_b32 s{sd+2}, {nbytes}
s_mov_b32 s{sd+3}, 0x00020000""")

def kd(name, vgpr, sgpr=102, accum=None):
    accum = accum or ((vgpr+3)//4*4)
    return f""".amdhsa_kernel {name}
  .amdhsa_next_free_vgpr {vgpr}
  .amdhsa_next_free_sgpr {sgpr}
  .amdhsa_accum_offset {accum}
  .amdhsa_group_segment_fixed_size 0
  .amdhsa_kernarg_size 128
  .amdhsa_user_sgpr_count 2
  .amdhsa_user_sgpr_kernarg_segment_ptr 1
  .amdhsa_system_sgpr_workgroup_id_x 1
.end_amdhsa_kernel
"""
def bf16_rne(a, vd, vs, vt):
    a(f"""v_bfe_u32 v{vt}, v{vs}, 16, 1
v_add3_u32 v{vt}, v{vs}, v{vt}, s90
v_and_b32 v{vd}, 0xffff0000, v{vt}""")
```

```python
from gen_common import *
def gemm_body(a, tag, nt, K, kstep, srdW, srdX, pitchW, pitchX, sk=False):
    RB=kstep*2; P=RB+16; CH=RB//16
    WN=64*nt; XOFF=WN*P; BUF=XOFF+128*P
    rows_per=256//CH if 256%CH==0 else None
    nW=WN*CH//256; nX=128*CH//256
    assert WN*CH%256==0 and 128*CH%256==0
    a(f"s_mov_b32 s25, {CH}\nv_cvt_f32_u32 v1, v0")
    G=96
    nL=nW+nX
    for i in range(nL):
        isW = i<nW; ii = i if isW else i-nW
        a(f"""v_add_u32 v2, {256*ii}, v0
v_cvt_f32_u32 v1, v2
v_add_f32 v1, 0.5, v1
v_mul_f32 v1, {1.0/CH!r}, v1
v_cvt_u32_f32 v1, v1
v_mul_lo_u32 v3, v1, s25
v_sub_u32 v2, v2, v3
v_lshlrev_b32 v2, 4, v2
v_mul_u32_u24 v3, {P}, v1
v_add_u32 v{68+nL+i}, v3, v2
v_add_u32 v1, s{20 if isW else 21}, v1
s_mov_b32 s22, {pitchW if isW else pitchX}
v_mul_lo_u32 v1, v1, s22
v_add_u32 v{68+i}, v1, v2""")
        if not isW: a(f"v_add_u32 v{68+nL+i}, {XOFF}, v{68+nL+i}")
    a(f"""v_and_b32 v8, 63, v0
v_lshrrev_b32 v9, 6, v0
v_and_b32 v10, 31, v8
v_lshrrev_b32 v11, 5, v8
v_lshlrev_b32 v11, 4, v11
v_and_b32 v12, 1, v9
v_lshrrev_b32 v13, 1, v9
v_mul_u32_u24 v14, {32*nt}, v12
v_add_u32 v14, v14, v10
v_mul_u32_u24 v14, {P}, v14
v_add_u32 v14, v14, v11
v_lshlrev_b32 v15, 6, v13
v_add_u32 v15, v15, v10
v_mul_u32_u24 v15, {P}, v15
v_add_u32 v15, v15, v11
v_add_u32 v15, {XOFF}, v15""")
    if sk:
        a(f"""v_mul_u32_u24 v14, {P}, v10
v_add_u32 v14, v14, v11
v_lshl_add_u32 v14, v9, 6, v14
v_add_u32 v15, {XOFF}, v14""")
    for r in range(128 if sk else 32*nt): a(f"v_accvgpr_write_b32 a{r}, 0")
    def gl(g):
        for i in range(nL):
            s = srdW if i<nW else srdX
            r=G+4*nL*g+4*i
            a(f"buffer_load_dwordx4 v[{r}:{r+3}], v{68+i}, s[{s}:{s+3}], s23 offen")
    def lw(b):
        for i in range(nL):
            r=G+4*nL*b+4*i
            a(f"ds_write_b128 v{68+nL+i}, v[{r}:{r+3}] offset:{b*BUF}")
    a("s_mov_b32 s23, 0")
    gl(0)
    a(f"s_mov_b32 s23, {RB}")
    gl(1)
    a(f"s_waitcnt vmcnt({nL})")
    lw(0)
    a("s_waitcnt lgkmcnt(0)\ns_barrier\ns_mov_b32 s24, 0")
    a(f"v_add_u32 v{94 if sk else 65}, {BUF}, v14\nv_add_u32 v{95 if sk else 66}, {BUF}, v15")
    def step(b):
        va, vx = (14,15) if b==0 else ((94,95) if sk else (65,66))
        a(f"s_add_u32 s23, s23, {RB}")
        gl(b)
        nks=kstep//16
        if sk:
            for h in range(2):
                for i in range(2): a(f"ds_read_b128 v[{16+24*h+4*i}:{16+24*h+4*i+3}], v{va} offset:{32*P*i+32*h}")
                for j in range(4): a(f"ds_read_b128 v[{24+24*h+4*j}:{24+24*h+4*j+3}], v{vx} offset:{32*P*j+32*h}")
            for h in range(2):
                a(f"s_waitcnt lgkmcnt({6*(1-h)})")
                for i in range(2):
                    for j in range(4):
                        c=16*(4*i+j)
                        a(f"v_mfma_f32_32x32x16_bf16 a[{c}:{c+15}], v[{16+24*h+4*i}:{16+24*h+4*i+3}], v[{24+24*h+4*j}:{24+24*h+4*j+3}], a[{c}:{c+15}]")
            a(f"s_waitcnt vmcnt({nL})")
            lw(1-b)
            a("s_waitcnt lgkmcnt(0)\ns_barrier")
            return
        def rd(ks):
            h=ks&1
            for i in range(nt): a(f"ds_read_b128 v[{32+8*i+4*h}:{32+8*i+4*h+3}], v{va} offset:{32*P*i+32*ks}")
            for j in range(2): a(f"ds_read_b128 v[{48+8*j+4*h}:{48+8*j+4*h+3}], v{vx} offset:{32*P*j+32*ks}")
        rd(0)
        for ks in range(nks):
            h=ks&1
            if ks+1<nks:
                rd(ks+1); a(f"s_waitcnt lgkmcnt({nt+2})")
            else: a("s_waitcnt lgkmcnt(0)")
            for i in range(nt):
                for j in range(2):
                    c=16*(2*i+j)
                    a(f"v_mfma_f32_32x32x16_bf16 a[{c}:{c+15}], v[{32+8*i+4*h}:{32+8*i+4*h+3}], v[{48+8*j+4*h}:{48+8*j+4*h+3}], a[{c}:{c+15}]")
        a(f"s_waitcnt vmcnt({nL})")
        lw(1-b)
        a("s_waitcnt lgkmcnt(0)\ns_barrier")
    a(f"{tag}_L:")
    step(0); step(1)
    a(f"s_add_u32 s24, s24, 2\ns_cmp_lt_u32 s24, {K//kstep}\ns_cbranch_scc1 {tag}_L\ns_nop 7\ns_nop 7")
    return 2*BUF, G+8*nL
```

```python
from gen_common import *
def gemm_sk(a, tag, K, srdW, srdX, pitchW, pitchX):
    KW=K//4; nks=KW//16; D3=3
    a(f"""v_and_b32 v8, 63, v0
v_lshrrev_b32 v9, 6, v0
v_and_b32 v10, 31, v8
v_lshrrev_b32 v11, 5, v8
v_mul_u32_u24 v12, {KW*2}, v9
v_lshl_add_u32 v12, v11, 4, v12""")
    for i in range(2):
        a(f"v_add_u32 v1, s20, v10\nv_add_u32 v1, {32*i}, v1\ns_mov_b32 s22, {pitchW}\nv_mul_lo_u32 v1, v1, s22\nv_add_u32 v{2+i}, v1, v12")
    for j in range(4):
        a(f"v_add_u32 v1, s21, v10\nv_add_u32 v1, {32*j}, v1\ns_mov_b32 s22, {pitchX}\nv_mul_lo_u32 v1, v1, s22\nv_add_u32 v{4+j}, v1, v12")
    for r in range(128): a(f"v_accvgpr_write_b32 a{r}, 0")
    R=64
    def gl(ks):
        g=ks%D3
        for i in range(2): a(f"buffer_load_dwordx4 v[{R+24*g+4*i}:{R+24*g+4*i+3}], v{2+i}, s[{srdW}:{srdW+3}], s23 offen")
        for j in range(4): a(f"buffer_load_dwordx4 v[{R+24*g+8+4*j}:{R+24*g+8+4*j+3}], v{4+j}, s[{srdX}:{srdX+3}], s23 offen")
        a("s_add_u32 s23, s23, 32")
    a("s_mov_b32 s23, 0\ns_mov_b32 s24, 0")
    gl(0); gl(1)
    assert nks%3==0
    a(f"{tag}_L:")
    for u in range(3):
        gl(u+2)
        a("s_waitcnt vmcnt(12)")
        g=u
        for i in range(2):
            for j in range(4):
                c=16*(4*i+j)
                a(f"v_mfma_f32_32x32x16_bf16 a[{c}:{c+15}], v[{R+24*g+4*i}:{R+24*g+4*i+3}], v[{R+24*g+8+4*j}:{R+24*g+8+4*j+3}], a[{c}:{c+15}]")
    a(f"s_add_u32 s24, s24, 3\ns_cmp_lt_u32 s24, {nks}\ns_cbranch_scc1 {tag}_L\ns_nop 7\ns_nop 7")
    reduce_sk(a)
def reduce_sk(a):
    a("v_lshlrev_b32 v13, 15, v9\nv_lshl_add_u32 v13, v8, 4, v13")
    for t in range(8):
        for q in range(4):
            for e in range(4): a(f"v_accvgpr_read_b32 v{16+e}, a{16*t+4*q+e}")
            a(f"ds_write_b128 v13, v[16:19] offset:{(4*t+q)*1024}\ns_waitcnt lgkmcnt(0)")
    a("s_waitcnt vmcnt(0)\ns_barrier\nv_lshlrev_b32 v13, 12, v9\nv_lshl_add_u32 v13, v8, 4, v13\nv_add_u32 v14, 0x10000, v13")
    for i in range(2):
        for q in range(4):
            for w in range(4): a(f"ds_read_b128 v[{16+4*w}:{19+4*w}], v{13+w//2} offset:{(w%2)*32768+(16*i+q)*1024}")
            a("s_waitcnt lgkmcnt(0)")
            for e in range(4):
                a(f"v_add_f32 v{16+e}, v{16+e}, v{20+e}\nv_add_f32 v{24+e}, v{24+e}, v{28+e}\nv_add_f32 v{32+16*i+4*q+e}, v{16+e}, v{24+e}")
```

```python
from gen_common import *
from gen_gemm import gemm_body
from gen_gemm2 import gemm_sk, reduce_sk
def mish(a, r):
    bf16_rne(a, r, r, 60)
    a(f"v_add_f32 v{r}, v{r}, v{r+8}")
    bf16_rne(a, r, r, 60)
    a(f"v_and_b32 v61, 0x7fffffff, v{r}\nv_mul_f32 v61, 0xbfb8aa3b, v61\nv_exp_f32 v61, v61\ns_nop 0")
    bf16_rne(a, 61, 61, 60)
    a(f"""v_add_f32 v62, 1.0, v61
v_log_f32 v63, v62
v_subrev_f32 v62, 1.0, v62
v_rcp_f32 v59, v62
v_mul_f32 v63, 0x3f317218, v63
v_mul_f32 v63, v63, v61
v_mul_f32 v63, v63, v59
v_cmp_eq_f32 vcc, 0, v62
v_cndmask_b32 v63, v63, v61, vcc""")
    bf16_rne(a, 63, 63, 60)
    a(f"v_max_f32 v62, 0, v{r}\nv_add_f32 v63, v63, v62")
    bf16_rne(a, 63, 63, 60)
    a("""v_mul_f32 v63, 0xc038aa3b, v63
v_exp_f32 v63, v63
s_nop 0
v_add_f32 v62, 1.0, v63
v_rcp_f32 v62, v62
v_sub_f32 v63, 1.0, v63
v_mul_f32 v63, v63, v62""")
    bf16_rne(a, 63, 63, 60)
    a(f"v_mul_f32 v{r}, v{r}, v63")

def gen_k2():
    a = Asm()
    a(f"""k2_kernel:
s_load_dwordx2 s[4:5], s[0:1], 120
s_load_dwordx2 s[6:7], s[0:1], 88
s_mov_b32 s90, 0x7fff
s_cmp_ge_u32 s2, 720
s_cbranch_scc1 K2_END
s_cmp_lt_u32 s2, 144
s_cbranch_scc1 K2_CONV
s_waitcnt lgkmcnt(0)
s_sub_u32 s2, s2, 144
s_and_b32 s21, s2, 7
s_lshl_b32 s21, s21, 1
s_bfe_u32 s22, s2, 0x10003
s_add_u32 s21, s21, s22
s_lshl_b32 s21, s21, 7
s_lshr_b32 s20, s2, 4
s_lshl_b32 s20, s20, 7""")
    srd(a, 8, 4, W1T, D*F*2); srd(a, 12, 4, XN, L*D*2); srd(a, 28, 4, ACT, L*PA); srd(a, 32, 6, 0, F*2)
    print(gemm_body(a, "K2G", 2, 576, 96, 8, 12, 1152, 1152))
    a("""v_lshlrev_b32 v16, 6, v12
v_lshrrev_b32 v17, 2, v11
v_add3_u32 v16, v16, v17, s20
v_lshlrev_b32 v17, 6, v13
v_add3_u32 v17, v17, v10, s21
s_mov_b32 s22, 9472
v_mul_lo_u32 v17, v17, s22
v_lshl_add_u32 v17, v16, 1, v17
v_lshlrev_b32 v16, 1, v16""")
    for i in range(2):
        for q in range(4):
            a(f"buffer_load_dwordx2 v[18:19], v16, s[32:35], 0 offen offset:{64*i+16*q}\ns_waitcnt vmcnt(0)")
            a("v_lshlrev_b32 v40, 16, v18\nv_and_b32 v41, 0xffff0000, v18\nv_lshlrev_b32 v42, 16, v19\nv_and_b32 v43, 0xffff0000, v19")
            for j in range(2):
                c=16*(2*i+j)+4*q
                for e in range(4):
                    a(f"v_accvgpr_read_b32 v{32+e}, a{c+e}")
                for e in range(4): mish(a, 32+e)
                a(f"v_cvt_pk_bf16_f32 v20, v32, v33\nv_cvt_pk_bf16_f32 v21, v34, v35\nv_add_u32 v22, {32*PA*j}, v17")
                a(f"buffer_store_dwordx2 v[20:21], v22, s[28:31], 0 offen offset:{64*i+16*q}\ns_nop 1")
    a("s_branch K2_END")
    C=2080
    a("""K2_CONV:
s_waitcnt lgkmcnt(0)
s_load_dwordx2 s[6:7], s[0:1], 64
s_waitcnt lgkmcnt(0)""")
    srd(a, 8, 4, XNT, L*D*2); srd(a, 12, 4, KH, D*L*2); srd(a, 16, 4, KL, D*L*2); srd(a, 28, 4, YA, L*D*2); srd(a, 32, 6, 0, D*2)
    a("""v_lshrrev_b32 v1, 6, v0
s_nop 0
v_readfirstlane_b32 s20, v1
s_mov_b32 s21, s2
s_lshl_b32 s21, s21, 2
s_add_u32 s21, s21, s20
s_mul_i32 s22, s20, 25600
s_lshl_b32 s23, s21, 12
v_and_b32 v2, 63, v0
v_lshlrev_b32 v3, 4, v2
v_add_u32 v4, s22, v3
v_mov_b32 v8, 0
v_mov_b32 v9, 0
v_mov_b32 v10, 0
v_mov_b32 v11, 0""")
    for k in range(4):
        a(f"ds_write_b128 v4, v[8:11] offset:{1024*k}\nbuffer_load_dwordx4 v[{12+4*k}:{15+4*k}], v3, s[8:11], s23 offen offset:{1024*k}")
    a("s_waitcnt vmcnt(0)")
    for k in range(4): a(f"ds_write_b128 v4, v[{12+4*k}:{15+4*k}] offset:{4096+1024*k}")
    a(f"v_sub_u32 v5, {C}, v2\nv_lshlrev_b32 v5, 1, v5\nv_lshlrev_b32 v6, 1, v2\nv_add_u32 v6, s22, v6")
    for h,sr in ((0,12),(1,16)):
        for k in range(33):
            a(f"v_mov_b32 v{12+k}, 0")
        for k in range(33):
            a(f"v_subrev_u32 v7, {128*k}, v5\nv_cmp_gt_u32 vcc, 4096, v7\ns_and_saveexec_b64 s[24:25], vcc\nbuffer_load_ushort v{12+k}, v7, s[{sr}:{sr+3}], s23 offen\ns_mov_b64 exec, s[24:25]")
        a("s_waitcnt vmcnt(0)")
        for k in range(33):
            base=8192+h*8704
            a(f"ds_write_b16 v6, v{12+k} offset:{base+128*k}\nds_write_b16 v6, v{12+k} offset:{base+4352+128*k+2}")
    a(f"""s_waitcnt lgkmcnt(0)
v_and_b32 v10, 31, v2
v_lshrrev_b32 v11, 5, v2
v_lshlrev_b32 v12, 3, v11
v_sub_u32 v12, v12, v10
v_add_u32 v12, {C+16}, v12
v_and_b32 v13, 1, v12
v_mul_u32_u24 v13, 4356, v13
v_and_b32 v12, -2, v12
v_lshl_add_u32 v12, v12, 1, v13
v_add_u32 v12, s22, v12
v_add_u32 v12, 8192, v12
v_lshlrev_b32 v14, 6, v10
v_lshl_add_u32 v14, v11, 4, v14
v_add_u32 v14, s22, v14""")
    for r in range(32): a(f"v_accvgpr_write_b32 a{r}, 0")
    for q in range(-1,128):
        dl = (q+1)//2 if q%2 else q//2
        ks = 1 if q%2 else 0
        koff = -32*(q+1)
        a(f"v_add_u32 v15, {koff & 0xffffffff}, v12")
        for h in range(2):
            a(f"ds_read2_b32 v[{16+4*h}:{17+4*h}], v15 offset0:{(h*8704)//4} offset1:{(h*8704)//4+1}" if h*8704//4+3<256 else
              f"v_add_u32 v30, 8704, v15\nds_read2_b32 v[20:21], v30 offset0:0 offset1:1\nds_read2_b32 v[22:23], v30 offset0:2 offset1:3")
            if h==0: a("ds_read2_b32 v[18:19], v15 offset0:2 offset1:3")
        js = [0,1] if dl<=31 else [1]
        for j in js:
            off = (2048+32*(32*j-dl)+16*ks)*2
            a(f"ds_read_b128 v[{24+4*j-0}:{27+4*j}], v14 offset:{off}" if j==0 else f"ds_read_b128 v[32:35], v14 offset:{off}")
        a("s_waitcnt lgkmcnt(0)")
        for j in js:
            bb = 24 if j==0 else 32
            for h in range(2):
                a(f"v_mfma_f32_32x32x16_bf16 a[{16*j}:{16*j+15}], v[{16+4*h}:{19+4*h}], v[{bb}:{bb+3}], a[{16*j}:{16*j+15}]")
    a(f"""s_nop 7
s_nop 7
s_lshl_b32 s24, s21, 1
v_mov_b32 v40, s24
buffer_load_ushort v40, v40, s[32:35], 0 offen
v_lshlrev_b32 v41, 2, v11
v_lshl_add_u32 v41, v10, 5, v41
s_waitcnt vmcnt(0)
v_lshlrev_b32 v40, 16, v40""")
    for j in range(2):
        for r in range(16):
            tb = 1024*j+8*(r>>2)+(r&3)
            a(f"""v_add_u32 v42, {tb}, v41
v_lshlrev_b32 v43, 1, v42
v_add_u32 v43, s22, v43
ds_read_u16 v44, v43 offset:4096
v_accvgpr_read_b32 v45, a{16*j+r}""")
            bf16_rne(a, 45, 45, 46)
            a("s_waitcnt lgkmcnt(0)\nv_lshlrev_b32 v44, 16, v44\nv_mul_f32 v44, v44, v40")
            bf16_rne(a, 44, 44, 46)
            a("""v_add_f32 v45, v45, v44
v_cvt_pk_bf16_f32 v45, v45, v45
v_mul_u32_u24 v42, 1152, v42
v_add_u32 v42, s24, v42
buffer_store_short v45, v42, s[28:31], 0 offen""")
    a("K2_END:\ns_endpgm")
    return a.text()

def gen_k3():
    a = Asm()
    a(f"""k3_kernel:
s_load_dwordx2 s[4:5], s[0:1], 120
s_load_dwordx2 s[6:7], s[0:1], 0
s_load_dwordx2 s[36:37], s[0:1], 104
s_mov_b32 s90, 0x7fff
s_cmp_ge_u32 s2, 144
s_cbranch_scc1 K3_END
s_waitcnt lgkmcnt(0)
s_memtime s[60:61]
s_load_dwordx2 s[64:65], s[0:1], 112
s_waitcnt lgkmcnt(0)
s_and_b32 s21, s2, 7
s_lshl_b32 s21, s21, 1
s_bfe_u32 s22, s2, 0x10003
s_add_u32 s21, s21, s22
s_lshl_b32 s21, s21, 7
s_lshr_b32 s20, s2, 4
s_lshl_b32 s20, s20, 6""")
    srd(a, 8, 4, W2T, D*PA); srd(a, 12, 4, ACT, L*PA); srd(a, 28, 36, 0, L*D*2); srd(a, 32, 6, 0, L*D*2); srd(a, 40, 4, YA, L*D*2)
    gemm_body(a, "K3G", 1, 4608, 128, 8, 12, PA, PA, sk=True)
    a("s_barrier\nv_lshrrev_b32 v11, 4, v11")
    reduce_sk(a)
    a("s_memtime s[62:63]\ns_waitcnt lgkmcnt(0)\ns_sub_u32 s62, s62, s60")
    a("""v_lshlrev_b32 v16, 2, v11
v_add_u32 v16, s20, v16
v_lshlrev_b32 v17, 5, v9
v_add3_u32 v17, v17, v10, s21
s_mov_b32 s22, 1152
v_mul_lo_u32 v17, v17, s22
v_lshl_add_u32 v22, v16, 1, v17""")
    for i in range(2):
        for q in range(4):
            a(f"""buffer_load_dwordx2 v[18:19], v22, s[32:35], 0 offen offset:{64*i+16*q}
buffer_load_dwordx2 v[24:25], v22, s[40:43], 0 offen offset:{64*i+16*q}
s_waitcnt vmcnt(0)""")
            for e in range(4):
                src = 18+e//2; sy = 24+e//2; r=32+16*i+4*q+e
                op = "v_lshlrev_b32 v{d}, 16, v{s}" if e%2==0 else "v_and_b32 v{d}, 0xffff0000, v{s}"
                a(op.format(d=40+64, s=src)); a(op.format(d=41+64, s=sy))
                a(f"v_add_f32 v104, v104, v105")
                bf16_rne(a, 104, 104, 106)
                bf16_rne(a, r, r, 106)
                a(f"v_add_f32 v{r}, v{r}, v104")
            r=32+16*i+4*q
            a(f"v_cvt_pk_bf16_f32 v20, v{r}, v{r+1}\nv_cvt_pk_bf16_f32 v21, v{r+2}, v{r+3}\nbuffer_store_dwordx2 v[20:21], v22, s[28:31], 0 offen offset:{64*i+16*q}\ns_nop 1")
    a("""s_memtime s[66:67]
s_waitcnt lgkmcnt(0) vmcnt(0)
s_sub_u32 s66, s66, s60
s_lshl_b32 s68, s2, 3
s_cmp_ge_u32 s2, 8
s_cbranch_scc1 K3_END
v_mov_b32 v1, s68
v_mov_b32 v2, s62
v_mov_b32 v3, s66
global_store_dwordx2 v1, v[2:3], s[64:65]""")
    a("K3_END:\ns_endpgm")
    return a.text()
```

```python
from gen_common import *
from gen_k23 import gen_k2
WI   = WS_END
PART = WI + 144*73728
YB   = PART + 16*L*D*4
ST = YB + L*D*2
TB = ST + 4096
B1F = TB + 12288
KR = B1F + 18432
YAT = KR + 576*34816 + 4096
LUT_LO=115<<7; LUT_N=2432; LUT_LDS=73728; BUF1=83456
def mish2(a, r, rb, t):
    bf16_rne(a, r, r, t)
    a(f"v_add_f32 v{r}, v{r}, v{rb}")
    bf16_rne(a, r, r, t)
    a(f"v_and_b32 v{t+1}, 0x7fffffff, v{r}\nv_mul_f32 v{t+1}, 0xbfb8aa3b, v{t+1}\nv_exp_f32 v{t+1}, v{t+1}\ns_nop 0")
    bf16_rne(a, t+1, t+1, t)
    a(f"""v_add_f32 v{t+2}, 1.0, v{t+1}
v_log_f32 v{t+3}, v{t+2}
v_subrev_f32 v{t+2}, 1.0, v{t+2}
v_rcp_f32 v{t+4}, v{t+2}
v_mul_f32 v{t+3}, 0x3f317218, v{t+3}
v_mul_f32 v{t+3}, v{t+3}, v{t+1}
v_mul_f32 v{t+3}, v{t+3}, v{t+4}
v_cmp_eq_f32 vcc, 0, v{t+2}
s_nop 1
v_cndmask_b32 v{t+3}, v{t+3}, v{t+1}, vcc""")
    bf16_rne(a, t+3, t+3, t)
    a(f"v_max_f32 v{t+2}, 0, v{r}\nv_add_f32 v{t+3}, v{t+3}, v{t+2}")
    bf16_rne(a, t+3, t+3, t)
    a(f"""v_mul_f32 v{t+3}, 0xc038aa3b, v{t+3}
v_exp_f32 v{t+3}, v{t+3}
s_nop 0
v_add_f32 v{t+2}, 1.0, v{t+3}
v_rcp_f32 v{t+2}, v{t+2}
v_sub_f32 v{t+3}, 1.0, v{t+3}
v_mul_f32 v{t+3}, v{t+3}, v{t+2}""")
    bf16_rne(a, t+3, t+3, t)
    a(f"v_mul_f32 v{r}, v{r}, v{t+3}")

def img_role(a):
    a("""K1_TR:
s_load_dwordx2 s[6:7], s[0:1], 80
s_load_dwordx2 s[28:29], s[0:1], 96
s_waitcnt lgkmcnt(0)
s_sub_u32 s3, s2, 640
s_mov_b32 s30, 0
s_cmp_lt_u32 s3, 1296
s_cbranch_scc1 K1_I1
s_sub_u32 s3, s3, 1296
s_mov_b32 s30, 1
K1_I1:
s_mul_hi_u32 s20, s3, 0x1c71c71d
s_mul_i32 s21, s20, 9
s_sub_u32 s21, s3, s21
s_lshl_b32 s21, s21, 8
v_add_u32 v1, s21, v0
s_mul_i32 s22, s20, 73728
v_lshlrev_b32 v2, 4, v1
v_add_u32 v2, s22, v2
v_and_b32 v3, 31, v1
s_cmp_eq_u32 s30, 1
s_cbranch_scc1 K1_I2""")
    srd(a, 8, 6, 0, D*F*2)
    a("""v_lshrrev_b32 v4, 5, v1
s_mov_b32 s23, 73728
v_mul_lo_u32 v4, v4, s23
s_lshl_b32 s24, s20, 6
v_lshl_add_u32 v4, v3, 1, v4
v_add_u32 v4, s24, v4""")
    for i in range(8):
        a(f"v_add_u32 v5, {9216*i}, v4\nbuffer_load_ushort v{8+i}, v5, s[8:11], 0 offen")
    a("s_branch K1_I3\nK1_I2:")
    srd(a, 8, 28, 0, D*F*2)
    a("""v_add_u32 v2, 36864, v2
v_lshrrev_b32 v4, 7, v1
v_lshlrev_b32 v4, 6, v4
v_lshl_add_u32 v4, v3, 1, v4
v_bfe_u32 v5, v1, 5, 2
v_lshrrev_b32 v6, 1, v5
v_and_b32 v5, 1, v5
v_lshlrev_b32 v6, 4, v6
v_lshl_add_u32 v5, v5, 2, v6
s_lshl_b32 s24, s20, 5
v_add_u32 v5, s24, v5
v_mul_u32_u24 v5, 1152, v5
v_add_u32 v4, v4, v5""")
    for i,f in enumerate((0,1,2,3,8,9,10,11)):
        a(f"v_add_u32 v5, {1152*f}, v4\nbuffer_load_ushort v{8+i}, v5, s[8:11], 0 offen")
    a("K1_I3:")
    srd(a, 12, 4, WI, 144*73728)
    a("s_waitcnt vmcnt(0)")
    for r in range(4): a(f"v_lshl_or_b32 v{16+r}, v{8+2*r+1}, 16, v{8+2*r}")
    a("buffer_store_dwordx4 v[16:19], v2, s[12:15], 0 offen")

def gen_k2f():
    a = Asm()
    a(f"""k2f_kernel:
s_load_dwordx2 s[4:5], s[0:1], 120
s_load_dwordx2 s[6:7], s[0:1], 88
s_mov_b32 s90, 0x7fff
s_cmp_ge_u32 s2, 256
s_cbranch_scc1 KF_END
s_waitcnt lgkmcnt(0)
s_memtime s[60:61]
s_waitcnt lgkmcnt(0)
s_and_b32 s20, s2, 7
s_lshl_b32 s20, s20, 1
s_bfe_u32 s22, s2, 0x10003
s_add_u32 s20, s20, s22
s_lshr_b32 s21, s2, 4""")
    srd(a, 8, 4, WI, 144*73728); srd(a, 12, 4, XN, L*D*2); srd(a, 28, 4, PART, 16*L*D*4); srd(a, 32, 4, B1F, F*4); srd(a, 44, 4, TB, 12288)
    a("""v_and_b32 v1, 63, v0
v_lshrrev_b32 v2, 6, v0
s_nop 0
v_readfirstlane_b32 s24, v2
v_and_b32 v3, 31, v1
v_lshrrev_b32 v4, 5, v1
s_lshl_b32 s25, s21, 7
s_lshl_b32 s26, s24, 5
s_add_u32 s25, s25, s26
v_add_u32 v5, s25, v3
v_mul_u32_u24 v6, 1152, v5
v_lshl_add_u32 v6, v4, 4, v6
v_lshlrev_b32 v7, 4, v1
s_mul_i32 s27, s24, 18432
s_mul_i32 s36, s20, 9
s_mul_i32 s37, s36, 73728
s_add_u32 s37, s37, s27
s_mov_b32 s38, 0""")
    def dma(sg, lb):
        for g in range(5):
            a(f"s_add_u32 s40, s{lb}, {4096*g}\ns_add_u32 s41, s{sg}, {4096*g}\ns_mov_b32 m0, s40\ns_nop 0")
            for o in range(4 if g<4 else 2):
                a(f"buffer_load_dwordx4 v7, s[8:11], s41 offen offset:{1024*o} lds")
    a("s_mov_b32 s39, s27")
    dma(37, 39)
    a("s_lshl_b32 s48, s24, 10")
    for j in range(3):
        a(f"s_add_u32 s49, s48, {4096*j}\ns_add_u32 s40, s49, {LUT_LDS}\ns_mov_b32 m0, s40\ns_nop 0\nbuffer_load_dwordx4 v7, s[44:47], s49 offen lds")
    a(f"s_mov_b32 s50, 0x00010001\ns_mov_b32 s51, 0x000f000f\ns_mov_b32 s52, {(2*LUT_LO)*0x10001}\ns_mov_b32 s53, {(2*(LUT_LO+LUT_N-1))*0x10001}\ns_mov_b32 s54, {(2*LUT_N)*0x10001}")
    for ks in range(36):
        a(f"buffer_load_dwordx4 v[{16+4*ks}:{19+4*ks}], v6, s[12:15], 0 offen offset:{32*ks}")
    for r in range(256): a(f"v_accvgpr_write_b32 a{r}, 0")
    for r in range(32): a(f"v_mov_b32 v{160+r}, 0")
    a(f"""v_mov_b32 v8, v7
v_add_u32 v9, 36864, v7
v_lshlrev_b32 v10, 1, v7
v_add_u32 v10, 83456, v10
s_lshl_b32 s42, s36, 7
v_lshlrev_b32 v11, 4, v4
v_add_u32 v11, s42, v11
s_waitcnt vmcnt(0)
s_barrier
s_memtime s[62:63]
s_waitcnt lgkmcnt(0)
KF_L:""")
    for q in range(4): a(f"buffer_load_dwordx4 v[{232+4*q}:{235+4*q}], v11, s[32:35], 0 offen offset:{32*q}")
    a("""s_add_u32 s43, s38, 1
s_min_u32 s43, s43, 8
s_mul_i32 s43, s43, 73728
s_add_u32 s43, s43, s37
s_sub_u32 s39, 83456, s39
s_add_u32 s39, s39, s27
s_add_u32 s39, s39, s27""")
    dma(43, 39)
    def frag(i, base, off): a(f"ds_read_b128 v[{208+4*(i%4)}:{211+4*(i%4)}], v{base} offset:{off}")
    for i in range(3): frag(i, 8, 1024*i)
    for ks in range(36):
        if ks+3<36: frag(ks+3, 8, 1024*(ks+3)); a("s_waitcnt lgkmcnt(3)")
        else: a(f"s_waitcnt lgkmcnt({35-ks})")
        c = "0" if ks==0 else "v[192:207]"
        a(f"v_mfma_f32_32x32x16_bf16 v[192:207], v[{208+4*(ks%4)}:{211+4*(ks%4)}], v[{16+4*ks}:{19+4*ks}], {c}")
    a("s_waitcnt vmcnt(18)\ns_nop 7\ns_nop 7\ns_nop 7")
    X = LUT_LDS - 2*LUT_LO
    for p in range(8):
        r=192+2*p; b=232+2*p; t=248+4*(p%2)
        a(f"""v_cvt_pk_bf16_f32 v{t}, v{r}, v{r+1}
v_lshlrev_b32 v{r}, 16, v{t}
v_and_b32 v{r+1}, 0xffff0000, v{t}
v_pk_add_f32 v[{r}:{r+1}], v[{r}:{r+1}], v[{b}:{b+1}]
v_cvt_pk_bf16_f32 v{t}, v{r}, v{r+1}
v_lshlrev_b32 v{r}, 16, v{t}
v_and_b32 v{r+1}, 0xffff0000, v{t}
v_pk_lshlrev_b16 v{t+1}, s50, v{t}
v_pk_max_u16 v{t+1}, v{t+1}, s52
v_pk_min_u16 v{t+1}, v{t+1}, s53
v_pk_lshrrev_b16 v{t}, s51, v{t}
v_pk_mad_u16 v{t+1}, v{t}, s54, v{t+1}
v_and_b32 v{t+2}, 0xffff, v{t+1}
v_lshrrev_b32 v{t+3}, 16, v{t+1}
ds_read_u16_d16_hi v{b}, v{t+2} offset:{X}
ds_read_u16_d16_hi v{b+1}, v{t+3} offset:{X}""")
    for i in range(3): frag(i, 9, 1024*i)
    for p in range(8):
        r=192+2*p; b=232+2*p
        a(f"s_waitcnt lgkmcnt({min(15,3+14-2*p)})\nv_pk_mul_f32 v[{r}:{r+1}], v[{r}:{r+1}], v[{b}:{b+1}]\nv_cvt_pk_bf16_f32 v{224+p}, v{r}, v{r+1}")
    a("s_nop 1")
    for i in range(36):
        if i+3<36: frag(i+3, 9, 1024*(i+3)); a("s_waitcnt lgkmcnt(3)")
        else: a(f"s_waitcnt lgkmcnt({35-i})")
        nt, ks = i//2, i%2
        acc = f"a[{16*nt}:{16*nt+15}]" if nt<16 else f"v[{160+16*(nt-16)}:{175+16*(nt-16)}]"
        a(f"v_mfma_f32_32x32x16_bf16 {acc}, v[{208+4*(i%4)}:{211+4*(i%4)}], v[{224+4*ks}:{227+4*ks}], {acc}")
    a("""v_sub_u32 v8, v10, v8
v_add_u32 v9, 36864, v8
v_add_u32 v11, 128, v11
s_add_u32 s38, s38, 1
s_waitcnt vmcnt(0)
s_barrier
s_cmp_lt_u32 s38, 9
s_cbranch_scc1 KF_L
s_memtime s[64:65]
s_waitcnt lgkmcnt(0)
s_nop 7
s_nop 7
s_mul_i32 s44, s20, 4718592
v_mul_u32_u24 v6, 2304, v5
v_lshl_add_u32 v6, v4, 4, v6
v_add_u32 v6, s44, v6""")
    for nt in range(18):
        for q in range(4):
            if nt<16:
                for e in range(4): a(f"v_accvgpr_read_b32 v{208+e}, a{16*nt+4*q+e}")
                a(f"buffer_store_dwordx4 v[208:211], v6, s[28:31], 0 offen offset:{128*nt+32*q}\ns_nop 1")
            else:
                r=160+16*(nt-16)+4*q
                a(f"buffer_store_dwordx4 v[{r}:{r+3}], v6, s[28:31], 0 offen offset:{128*nt+32*q}")
    a(f"""s_waitcnt vmcnt(0)
s_memtime s[66:67]
s_waitcnt lgkmcnt(0)
s_cmp_ge_u32 s2, 6
s_cbranch_scc1 KF_END
s_and_b32 s70, s2, 1
s_cmp_lg_u32 s70, 0
s_cbranch_scc1 KF_END
s_lshr_b32 s71, s2, 1
s_sub_u32 s62, s62, s60
s_sub_u32 s64, s64, s60
s_sub_u32 s66, s66, s60
s_lshl_b32 s68, s71, 4
s_add_u32 s68, s68, {ST}
v_mov_b32 v1, s68
v_mov_b32 v2, s62
v_mov_b32 v3, s64
v_mov_b32 v4, s66
s_getreg_b32 s69, hwreg(HW_REG_XCC_ID)
v_mov_b32 v5, s69
global_store_dwordx4 v1, v[2:5], s[4:5]""")
    a("KF_END:\ns_endpgm")
    return a.text()

def gen_red(a):
    a("""K3R:
s_waitcnt lgkmcnt(0)
s_sub_u32 s3, s2, 144""")
    srd(a, 8, 4, PART, 16*L*D*4); srd(a, 12, 4, YB, L*D*2)
    a("s_lshl_b32 s3, s3, 8\nv_add_u32 v1, s3, v0\nv_lshlrev_b32 v2, 4, v1\nv_lshlrev_b32 v3, 3, v1")
    for s in range(16):
        a(f"s_mov_b32 s20, {s*L*D*4}\nbuffer_load_dwordx4 v[{8+4*s}:{11+4*s}], v2, s[8:11], s20 offen")
    a("s_waitcnt vmcnt(0)")
    for st in (8,4,2,1):
        for s in range(st):
            for e in range(4): a(f"v_add_f32 v{8+4*s+e}, v{8+4*s+e}, v{8+4*(s+st)+e}")
    a("v_cvt_pk_bf16_f32 v4, v8, v9\nv_cvt_pk_bf16_f32 v5, v10, v11\nbuffer_store_dwordx2 v[4:5], v3, s[12:15], 0 offen\ns_branch K2_END")

def gen_k4():
    a = Asm()
    a("""k4f_kernel:
s_load_dwordx2 s[4:5], s[0:1], 120
s_load_dwordx2 s[6:7], s[0:1], 0
s_load_dwordx2 s[36:37], s[0:1], 104
s_mov_b32 s90, 0x7fff
s_cmp_ge_u32 s2, 576
s_cbranch_scc1 K4_END
s_waitcnt lgkmcnt(0)""")
    srd(a, 8, 6, 0, L*D*2); srd(a, 12, 4, YA, L*D*2); srd(a, 16, 4, YB, L*D*2); srd(a, 20, 36, 0, L*D*2)
    a("""s_lshl_b32 s3, s2, 12
v_lshlrev_b32 v1, 4, v0
v_add_u32 v1, s3, v1
buffer_load_dwordx4 v[4:7], v1, s[8:11], 0 offen
buffer_load_dwordx4 v[8:11], v1, s[12:15], 0 offen
buffer_load_dwordx4 v[12:15], v1, s[16:19], 0 offen
s_waitcnt vmcnt(0)""")
    for r in range(4):
        for h in range(2):
            op = "v_lshlrev_b32 v{d}, 16, v{s}" if h==0 else "v_and_b32 v{d}, 0xffff0000, v{s}"
            a(op.format(d=20,s=4+r)); a(op.format(d=21,s=8+r)); a(op.format(d=22,s=12+r))
            a("v_add_f32 v20, v20, v21"); bf16_rne(a,20,20,23)
            a(f"v_add_f32 v{24+h}, v20, v22")
        a(f"v_cvt_pk_bf16_f32 v{16+r}, v24, v25")
    a("buffer_store_dwordx4 v[16:19], v1, s[20:23], 0 offen")
    a(f"""s_cmp_lg_u32 s2, 0
s_cbranch_scc1 K4_END
s_load_dwordx2 s[40:41], s[0:1], 112
v_lshlrev_b32 v1, 2, v0
v_add_u32 v2, {ST}, v1
v_cmp_gt_u32 vcc, 24, v0
s_and_saveexec_b64 s[42:43], vcc
s_waitcnt vmcnt(0)
global_load_dword v3, v2, s[4:5]
s_waitcnt vmcnt(0) lgkmcnt(0)
global_store_dword v1, v3, s[40:41]""")
    a("K4_END:\ns_endpgm")
    return a.text()

def tab_role(a, first):
    a(f"""K1_TAB:
s_load_dwordx2 s[6:7], s[0:1], 88
s_waitcnt lgkmcnt(0)
s_sub_u32 s3, s2, {first}
s_lshl_b32 s3, s3, 8
v_add_u32 v1, s3, v0""")
    srd(a, 8, 6, 0, F*2); srd(a, 12, 4, B1F, F*4); srd(a, 16, 4, TB, 2*2*LUT_N)
    a(f"""v_lshlrev_b32 v2, 1, v1
buffer_load_ushort v3, v2, s[8:11], 0 offen
v_cmp_le_u32 vcc, {LUT_N}, v1
v_mov_b32 v4, {LUT_LO}
v_mov_b32 v5, {LUT_LO - LUT_N + 0x8000}
v_cndmask_b32 v4, v4, v5, vcc
v_add_u32 v4, v4, v1
v_lshlrev_b32 v4, 16, v4
v_mov_b32 v5, 0""")
    mish2(a, 4, 5, 8)
    a("""v_lshrrev_b32 v11, 16, v11
buffer_store_short v11, v2, s[16:19], 0 offen
s_waitcnt vmcnt(0)
v_lshlrev_b32 v3, 16, v3
v_lshlrev_b32 v2, 2, v1
buffer_store_dword v3, v2, s[12:15], 0 offen
s_branch K1_END""")
```

```python
import sys
from gen_common import *
from gen_v3 import *
mode=sys.argv[1]; out=sys.argv[2]
s=open('parallel_sum__ssm_conv_s4__dense_activation_mish__prompt.s').read()
a=Asm()
SCR = YAT + L*D*2 + 4096
a(f"""kt_kernel:
s_load_dwordx2 s[4:5], s[0:1], 120
s_cmp_ge_u32 s2, 256
s_cbranch_scc1 KT_END
s_waitcnt lgkmcnt(0)""")
srd(a, 8, 4, SCR, 16*L*D*4)
a("""s_lshr_b32 s21, s2, 4
s_and_b32 s20, s2, 15
v_lshrrev_b32 v1, 6, v0
v_and_b32 v2, 63, v0
v_and_b32 v3, 31, v2
v_lshrrev_b32 v4, 5, v2
s_lshl_b32 s22, s21, 7
v_lshl_add_u32 v5, v1, 5, s22
v_lshl_add_u32 v5, v4, 2, v5
v_mul_u32_u24 v5, 2304, v5
v_lshl_add_u32 v5, v3, 2, v5
v_mov_b32 v8, 1.0
v_mov_b32 v9, 1.0
v_mov_b32 v10, 1.0
v_mov_b32 v11, 1.0
s_mul_i32 s23, s20, 4718592""")
if mode=="st": a("v_add_u32 v5, s23, v5")
for r in range(16):
    row = 8*(r//4)+(r%4)
    a(f"v_add_u32 v6, {row*2304}, v5")
    for nt in range(18):
        if mode=="at": a(f"buffer_atomic_add_f32 v8, v6, s[8:11], 0 offen offset:{128*nt} sc1")
        elif mode=="at0": a(f"buffer_atomic_add_f32 v8, v6, s[8:11], 0 offen offset:{128*nt}")
        else: a(f"buffer_store_dword v8, v6, s[8:11], 0 offen offset:{128*nt}")
a("KT_END:\ns_endpgm")
s=s.replace("; @launch kernel=k4f_kernel","; @launch kernel=kt_kernel grid=(256,1,1) block=(256,1,1) lds=0\n; @launch kernel=k4f_kernel")
s=s.replace('.section .rodata,"a"\n', ".globl kt_kernel\n.p2align 8\n.type kt_kernel,@function\n"+a.text()+'.section .rodata,"a"\n.p2align 6\n'+kd("kt_kernel",32,102,32))
open(out,'w').write(s)
```

```python
from gen_common import *
from gen_v3 import *
C=2080
KC=10240
def conv_steps(a, qs, tag):
    qmax=qs[-1]
    def reads(n, q):
        o = 16*(n%2)
        dl = (q+1)//2 if q%2 else q//2
        ks = 1 if q%2 else 0
        k8 = 4*(qmax-q)
        a(f"ds_read2_b64 v[{16+o}:{19+o}], v12 offset0:{k8} offset1:{k8+1}\nds_read2_b64 v[{20+o}:{23+o}], v13 offset0:{k8} offset1:{k8+1}")
        js = [0,1] if dl<=31 else [1]
        for j in js:
            off = 5120+80*(32*j-dl)+32*ks
            a(f"ds_read_b128 v[{24+4*j+o}:{27+4*j+o}], v14 offset:{off}")
        return js
    js=reads(0,qs[0])
    for n,q in enumerate(qs):
        o=16*(n%2)
        if n+1<len(qs):
            jn=reads(n+1,qs[n+1]); a(f"s_waitcnt lgkmcnt({2+len(jn)})")
        else: a("s_waitcnt lgkmcnt(0)")
        for j in js:
            for h in range(2):
                a(f"v_mfma_f32_32x32x16_bf16 v[{64+16*j}:{79+16*j}], v[{16+4*h+o}:{19+4*h+o}], v[{24+4*j+o}:{27+4*j+o}], v[{64+16*j}:{79+16*j}]")
        if n+1<len(qs): js=jn

def gen_k3c():
    a=Asm()
    a("""k3c_kernel:
s_load_dwordx2 s[4:5], s[0:1], 120
s_load_dwordx2 s[6:7], s[0:1], 64
s_mov_b32 s90, 0x7fff
s_cmp_ge_u32 s2, 1728
s_cbranch_scc1 K3_END
s_cmp_ge_u32 s2, 576
s_cbranch_scc1 K3R
s_waitcnt lgkmcnt(0)""")
    srd(a, 8, 4, XP, 576*5120); srd(a, 12, 4, KR, 576*KSZ+4096); srd(a, 28, 4, YAT, L*D*2); srd(a, 32, 6, 0, D*2)
    a(f"""v_lshrrev_b32 v1, 6, v0
s_nop 0
v_readfirstlane_b32 s20, v1
v_and_b32 v2, 63, v0
v_lshlrev_b32 v3, 4, v2
s_lshl_b32 s22, s20, 10
s_mul_i32 s23, s2, 5120
s_add_u32 s23, s23, s22
s_add_u32 s24, s22, 5120
s_mov_b32 m0, s24
s_mul_i32 s25, s2, {KSZ}
s_add_u32 s25, s25, s22
buffer_load_dwordx4 v3, s[8:11], s23 offen lds
s_cmp_lg_u32 s20, 0
s_cbranch_scc1 K3_X1
s_mov_b32 m0, 9216
s_add_u32 s23, s23, 4096
s_nop 0
buffer_load_dwordx4 v3, s[8:11], s23 offen lds
K3_X1:""")
    for b in range(9):
        a(f"s_add_u32 s24, s22, {KC+4096*b}\ns_add_u32 s26, s25, {4096*b}\ns_mov_b32 m0, s24\ns_nop 0\nbuffer_load_dwordx4 v3, s[12:15], s26 offen lds")
    a(f"""v_lshlrev_b32 v4, 4, v0
v_mov_b32 v8, 0
v_mov_b32 v9, 0
v_mov_b32 v10, 0
v_mov_b32 v11, 0
ds_write_b128 v4, v[8:11]
ds_write_b128 v4, v[8:11] offset:1024
s_lshl_b32 s27, s2, 1
v_mov_b32 v5, s27
buffer_load_ushort v5, v5, s[32:35], 0 offen
v_and_b32 v10, 31, v2
v_lshrrev_b32 v11, 5, v2
v_lshlrev_b32 v12, 3, v11
v_sub_u32 v12, v12, v10
v_add_u32 v12, {C}, v12
v_and_b32 v13, 3, v12
v_mul_u32_u24 v13, {KP}, v13
v_and_b32 v12, -4, v12
v_lshl_add_u32 v12, v12, 1, v13
v_add_u32 v12, {KC}, v12
v_mul_u32_u24 v14, 80, v10
v_lshl_add_u32 v14, v11, 4, v14""")
    for r in range(32): a(f"v_mov_b32 v{64+r}, 0")
    a("""s_waitcnt vmcnt(0) lgkmcnt(0)
s_barrier
s_cmp_eq_u32 s20, 1
s_cbranch_scc1 K3_W1
s_cmp_eq_u32 s20, 2
s_cbranch_scc1 K3_W2
s_cmp_eq_u32 s20, 3
s_cbranch_scc1 K3_W3""")
    rng=[(-1,23),(23,47),(47,78),(78,128)]
    for w,(qa,qb) in enumerate(rng):
        if w: a(f"K3_W{w}:")
        qs=list(range(qa,qb))
        a(f"v_subrev_u32 v12, {32*qs[-1]}, v12\nv_add_u32 v13, {4*KP}, v12")
        conv_steps(a, qs, w)
        a("s_branch K3_F")
    a(f"""K3_F:
s_nop 7
s_nop 7
s_barrier
s_lshl_b32 s21, s20, 13
v_add_u32 v4, s21, v3""")
    for g in range(8): a(f"ds_write_b128 v4, v[{64+4*g}:{67+4*g}] offset:{KC+1024*g}")
    a(f"""s_waitcnt lgkmcnt(0)
s_barrier
s_lshl_b32 s21, s20, 11
v_add_u32 v4, s21, v3""")
    for e in range(2):
        for ww in range(4): a(f"ds_read_b128 v[{16+16*e+4*ww}:{19+16*e+4*ww}], v4 offset:{KC+8192*ww+1024*e}")
    a("""s_lshr_b32 s21, s20, 1
s_lshl_b32 s21, s21, 10
s_and_b32 s22, s20, 1
s_lshl_b32 s22, s22, 4
s_add_u32 s21, s21, s22
v_lshlrev_b32 v6, 5, v10
v_lshl_add_u32 v6, v11, 2, v6
v_add_u32 v6, s21, v6
v_lshrrev_b32 v7, 5, v6
v_and_b32 v9, 31, v6
v_mul_u32_u24 v7, 80, v7
v_lshl_add_u32 v7, v9, 1, v7
v_lshlrev_b32 v6, 1, v6
ds_read_b64 v[48:49], v7 offset:5120
ds_read_b64 v[50:51], v7 offset:5136
s_lshl_b32 s23, s2, 12
s_waitcnt vmcnt(0) lgkmcnt(0)
v_lshlrev_b32 v5, 16, v5""")
    for e in range(2):
        for r in range(4):
            b=16+16*e+r
            a(f"v_add_f32 v{b}, v{b}, v{b+4}\nv_add_f32 v{b+8}, v{b+8}, v{b+12}\nv_add_f32 v{b}, v{b}, v{b+8}")
            bf16_rne(a, b, b, 7)
            src=48+2*e+r//2
            a(f"v_lshlrev_b32 v8, 16, v{src}" if r%2==0 else f"v_and_b32 v8, 0xffff0000, v{src}")
            a("v_mul_f32 v8, v8, v5")
            bf16_rne(a, 8, 8, 7)
            a(f"v_add_f32 v{b}, v{b}, v8")
        b=16+16*e
        a(f"v_cvt_pk_bf16_f32 v52, v{b}, v{b+1}\nv_cvt_pk_bf16_f32 v53, v{b+2}, v{b+3}\nbuffer_store_dwordx2 v[52:53], v6, s[28:31], s23 offen offset:{16*e}\ns_nop 1")
    a("s_branch K3_END")
    a("""K3R:
s_waitcnt lgkmcnt(0)
s_sub_u32 s3, s2, 576""")
    srd(a, 8, 4, PART, 16*L*D*4); srd(a, 12, 4, YB, L*D*2)
    a("""s_lshl_b32 s21, s3, 8
v_add_u32 v1, s21, v0
v_lshlrev_b32 v2, 4, v1
s_mul_hi_u32 s22, s3, 0x38e38e4
s_mul_i32 s23, s22, 72
s_sub_u32 s23, s3, s23
s_and_b32 s24, s23, 3
s_lshr_b32 s25, s23, 2
s_lshl_b32 s22, s22, 7
s_lshl_b32 s24, s24, 5
s_add_u32 s22, s22, s24
s_mul_i32 s22, s22, 1152
s_lshl_b32 s25, s25, 6
s_add_u32 s22, s22, s25
v_and_b32 v3, 31, v0
v_mul_u32_u24 v3, 1152, v3
v_lshrrev_b32 v4, 5, v0
v_lshl_add_u32 v3, v4, 3, v3
v_add_u32 v3, s22, v3""")
    for s in range(16):
        a(f"s_mov_b32 s20, {s*L*D*4}\nbuffer_load_dwordx4 v[{8+4*s}:{11+4*s}], v2, s[8:11], s20 offen")
    a("s_waitcnt vmcnt(0)")
    for st in (8,4,2,1):
        for s in range(st):
            for e in range(4): a(f"v_add_f32 v{8+4*s+e}, v{8+4*s+e}, v{8+4*(s+st)+e}")
    a("v_cvt_pk_bf16_f32 v4, v8, v9\nv_cvt_pk_bf16_f32 v5, v10, v11\nbuffer_store_dwordx2 v[4:5], v3, s[12:15], 0 offen")
    a("K3_END:\ns_endpgm")
    return a.text()

def gen_k4t():
    a = Asm()
    a("""k4f_kernel:
s_load_dwordx2 s[4:5], s[0:1], 120
s_load_dwordx2 s[6:7], s[0:1], 0
s_load_dwordx2 s[36:37], s[0:1], 104
s_mov_b32 s90, 0x7fff
s_cmp_ge_u32 s2, 288
s_cbranch_scc1 K4_END
s_waitcnt lgkmcnt(0)""")
    srd(a, 8, 6, 0, L*D*2); srd(a, 12, 4, YAT, L*D*2); srd(a, 16, 4, YB, L*D*2); srd(a, 20, 36, 0, L*D*2)
    a("""s_mul_hi_u32 s24, s2, 0x1c71c71d
s_mul_i32 s25, s24, 9
s_sub_u32 s25, s2, s25
v_lshrrev_b32 v1, 2, v0
v_and_b32 v2, 3, v0
s_lshl_b32 s26, s25, 18
s_lshl_b32 s27, s24, 7
s_add_u32 s26, s26, s27
v_lshlrev_b32 v3, 12, v1
v_lshl_add_u32 v3, v2, 5, v3
buffer_load_dwordx4 v[4:7], v3, s[12:15], s26 offen
buffer_load_dwordx4 v[8:11], v3, s[12:15], s26 offen offset:16
s_mul_i32 s28, s24, 73728
s_lshl_b32 s29, s25, 7
s_add_u32 s28, s28, s29
v_mul_u32_u24 v12, 1152, v1
v_lshl_add_u32 v12, v2, 5, v12
buffer_load_dwordx4 v[16:19], v12, s[8:11], s28 offen
buffer_load_dwordx4 v[20:23], v12, s[8:11], s28 offen offset:16
buffer_load_dwordx4 v[24:27], v12, s[16:19], s28 offen
buffer_load_dwordx4 v[28:31], v12, s[16:19], s28 offen offset:16
v_mul_u32_u24 v13, 144, v1
v_lshl_add_u32 v13, v2, 5, v13
s_waitcnt vmcnt(4)
ds_write_b128 v13, v[4:7]
ds_write_b128 v13, v[8:11] offset:16
v_mul_u32_u24 v14, 2304, v2
v_lshl_add_u32 v14, v1, 1, v14
s_waitcnt lgkmcnt(0)
s_barrier""")
    for e in range(16): a(f"ds_read_u16 v{32+e}, v14 offset:{144*e}")
    a("s_waitcnt vmcnt(0) lgkmcnt(0)")
    for r in range(8):
        for h in range(2):
            op = "v_lshlrev_b32 v{d}, 16, v{s}" if h==0 else "v_and_b32 v{d}, 0xffff0000, v{s}"
            a(op.format(d=50,s=16+r)); a(f"v_lshlrev_b32 v51, 16, v{32+2*r+h}"); a(op.format(d=52,s=24+r))
            a("v_add_f32 v50, v50, v51"); bf16_rne(a,50,50,53)
            a(f"v_add_f32 v{54+h}, v50, v52")
        a(f"v_cvt_pk_bf16_f32 v{4+r}, v54, v55")
    a("buffer_store_dwordx4 v[4:7], v12, s[20:23], s28 offen\nbuffer_store_dwordx4 v[8:11], v12, s[20:23], s28 offen offset:16")
    a(f"""s_cmp_lg_u32 s2, 0
s_cbranch_scc1 K4_END
s_load_dwordx2 s[40:41], s[0:1], 112
v_lshlrev_b32 v1, 2, v0
v_add_u32 v2, {ST}, v1
v_cmp_gt_u32 vcc, 16, v0
s_and_saveexec_b64 s[42:43], vcc
s_waitcnt vmcnt(0)
global_load_dword v3, v2, s[4:5]
s_waitcnt vmcnt(0) lgkmcnt(0)
global_store_dword v1, v3, s[40:41]""")
    a("K4_END:\ns_endpgm")
    return a.text()
```

```python
from gen_common import *
from gen_v3 import KR, KP, KSZ, XP
import math
def gen_k1():
    a = Asm()
    a(f"""k1_kernel:
s_load_dwordx2 s[4:5], s[0:1], 120
s_mov_b32 s90, 0x7fff
s_cmp_ge_u32 s2, 1936
s_cbranch_scc1 K1_END
s_cmp_ge_u32 s2, 640
s_cbranch_scc1 K1_TR
s_cmp_ge_u32 s2, 64
s_cbranch_scc1 K1_KGEN""")
    a("s_load_dwordx2 s[6:7], s[0:1], 0\ns_waitcnt lgkmcnt(0)")
    srd(a, 8, 6, 0, L*D*2)
    srd(a, 12, 4, XN, L*D*2)
    srd(a, 16, 4, XP, 576*5120)
    a("""v_lshrrev_b32 v1, 6, v0
v_and_b32 v2, 63, v0
s_lshl_b32 s20, s2, 5
v_lshlrev_b32 v3, 3, v1
v_add_u32 v3, s20, v3
s_mov_b32 s21, 1152
v_mul_lo_u32 v4, v3, s21
v_lshl_add_u32 v4, v2, 2, v4
v_cmp_gt_u32 s[22:23], 32, v2""")
    for i in range(8):
        for j in range(4):
            a(f"buffer_load_dword v{16+5*i+j}, v4, s[8:11], 0 offen offset:{1152*i+256*j}" if 1152*i+256*j < 4096 else
              f"v_add_u32 v5, {1152*i+256*j}, v4\nbuffer_load_dword v{16+5*i+j}, v5, s[8:11], 0 offen")
        a(f"v_mov_b32 v{16+5*i+4}, 0")
    a("s_mov_b64 s[24:25], exec\ns_mov_b64 exec, s[22:23]")
    for i in range(8):
        a(f"v_add_u32 v5, {1152*i+1024}, v4\nbuffer_load_dword v{16+5*i+4}, v5, s[8:11], 0 offen")
    a("s_mov_b64 exec, s[24:25]\ns_waitcnt vmcnt(0)")
    for i in range(8):
        for j in range(5):
            a(f"v_lshlrev_b32 v{64+10*i+2*j}, 16, v{16+5*i+j}\nv_and_b32 v{64+10*i+2*j+1}, 0xffff0000, v{16+5*i+j}")
    def reduce8(base):
        for k in (1,2,4,8,16,32):
            a(f"v_xor_b32 v6, {k}, v2\nv_lshlrev_b32 v6, 2, v6")
            for i in range(8): a(f"ds_bpermute_b32 v{8+i}, v6, v{base+i}")
            a("s_waitcnt lgkmcnt(0)")
            for i in range(8): a(f"v_add_f32 v{base+i}, v{base+i}, v{8+i}")
    for i in range(8):
        a(f"v_add_f32 v{150+i}, v{64+10*i}, v{64+10*i+1}")
        for j in range(2,10): a(f"v_add_f32 v{150+i}, v{150+i}, v{64+10*i+j}")
    reduce8(150)
    a("s_mov_b32 s26, 0x3ae38e39")
    for i in range(8): a(f"v_mul_f32 v{150+i}, s26, v{150+i}")
    for i in range(8):
        a(f"v_mov_b32 v{160+i}, 0")
        for j in range(10):
            a(f"v_sub_f32 v7, v{64+10*i+j}, v{150+i}")
            if j >= 8: a(f"v_cndmask_b32 v7, 0, v7, s[22:23]")
            a(f"v_fmac_f32 v{160+i}, v7, v7")
    reduce8(160)
    for i in range(8):
        a(f"v_mul_f32 v{160+i}, s26, v{160+i}")
        bf16_rne(a, 150+i, 150+i, 7)
        bf16_rne(a, 160+i, 160+i, 7)
        a(f"v_add_f32 v{160+i}, 0x3727c5ac, v{160+i}")
        bf16_rne(a, 160+i, 160+i, 7)
        a(f"v_sqrt_f32 v{160+i}, v{160+i}\ns_nop 0")
        bf16_rne(a, 160+i, 160+i, 7)
        a(f"v_rcp_f32 v{170+i}, v{160+i}\ns_nop 0")
    a("v_mul_u32_u24 v8, 1168, v1\nv_lshlrev_b32 v8, 3, v8\nv_lshl_add_u32 v8, v2, 2, v8")
    for i in range(8):
        for j in range(10):
            r = 64+10*i+j
            a(f"v_sub_f32 v{r}, v{r}, v{150+i}")
            bf16_rne(a, r, r, 7)
            a(f"v_mul_f32 v7, v{r}, v{170+i}\nv_fma_f32 v{r}, -v7, v{160+i}, v{r}\nv_fma_f32 v{r}, v{r}, v{170+i}, v7")
        for j in range(5):
            a(f"v_cvt_pk_bf16_f32 v{16+5*i+j}, v{64+10*i+2*j}, v{64+10*i+2*j+1}")
    for i in range(8):
        for j in range(4):
            a(f"v_add_u32 v5, {1152*i+256*j}, v4\nbuffer_store_dword v{16+5*i+j}, v5, s[12:15], 0 offen\nds_write_b32 v8, v{16+5*i+j} offset:{1168*i+256*j}")
    a("s_mov_b64 exec, s[22:23]")
    for i in range(8):
        a(f"v_add_u32 v5, {1152*i+1024}, v4\nbuffer_store_dword v{16+5*i+4}, v5, s[12:15], 0 offen\nds_write_b32 v8, v{16+5*i+4} offset:{1168*i+1024}")
    a("s_mov_b64 exec, s[24:25]\ns_waitcnt lgkmcnt(0)\ns_barrier")
    for p in range(3):
        a(f"v_add_u32 v9, {256*p}, v0")
        if p == 2: a("v_cmp_gt_u32 vcc, 576, v9\ns_and_saveexec_b64 s[24:25], vcc")
        a("v_lshlrev_b32 v10, 1, v9")
        for r in range(32): a(f"ds_read_u16 v{16+r}, v10 offset:{1168*r}")
        a("s_waitcnt lgkmcnt(0)")
        for r in range(16): a(f"v_lshl_or_b32 v{64+r}, v{16+2*r+1}, 16, v{16+2*r}")
        a("v_mul_u32_u24 v11, 5120, v9\ns_mul_i32 s27, s2, 80\nv_add_u32 v11, s27, v11")
        for q in range(4): a(f"buffer_store_dwordx4 v[{64+4*q}:{64+4*q+3}], v11, s[16:19], 0 offen offset:{16*q}")
        a("s_nop 1")
    a("s_branch K1_END")
    a("""K1_KGEN:
s_load_dwordx8 s[8:15], s[0:1], 8
s_load_dwordx4 s[16:19], s[0:1], 40
s_load_dwordx2 s[20:21], s[0:1], 56
s_sub_u32 s3, s2, 64
s_waitcnt lgkmcnt(0)
s_lshl_b32 s22, s3, 8
v_lshlrev_b32 v1, 1, v0
v_add_u32 v1, s22, v1
v_cmp_gt_u32 vcc, 128, v0
s_and_saveexec_b64 s[24:25], vcc
global_load_ushort v2, v1, s[8:9]
global_load_ushort v3, v1, s[10:11]
global_load_ushort v4, v1, s[12:13]
global_load_ushort v5, v1, s[14:15]
global_load_ushort v6, v1, s[16:17]
global_load_ushort v7, v1, s[18:19]
s_lshl_b32 s23, s3, 1
v_mov_b32 v8, s23
global_load_ushort v8, v8, s[20:21]
s_waitcnt vmcnt(0)
v_lshlrev_b32 v2, 16, v2
v_lshlrev_b32 v3, 16, v3
v_lshlrev_b32 v4, 16, v4
v_lshlrev_b32 v5, 16, v5
v_lshlrev_b32 v6, 16, v6
v_lshlrev_b32 v7, 16, v7
v_lshlrev_b32 v8, 16, v8
v_mul_f32 v8, 0x3fb8aa3b, v8
v_exp_f32 v8, v8
s_nop 0""")
    bf16_rne(a, 8, 8, 9)
    a("""v_mul_f32 v2, v8, v2
v_mul_f32 v3, v8, v3
v_mul_f32 v4, v8, v4
v_mul_f32 v5, v8, v5
v_mul_f32 v10, v6, v4
v_fma_f32 v10, -v7, v5, v10
v_mul_f32 v11, v6, v5
v_fma_f32 v11, v7, v4, v11
v_mov_b32 v8, v2
v_mul_f32 v9, 0x3e22f983, v3
v_lshlrev_b32 v12, 4, v0
ds_write_b128 v12, v[8:11]
s_mov_b64 exec, s[24:25]
s_waitcnt lgkmcnt(0)
s_barrier""")
    a("""v_and_b32 v12, 63, v0
v_lshrrev_b32 v13, 6, v0
v_and_b32 v14, 15, v12
v_lshrrev_b32 v15, 4, v12
v_lshl_add_u32 v16, v13, 5, v15
v_lshlrev_b32 v16, 4, v16""")
    for t in range(8): a(f"ds_read_b128 v[{40+4*t}:{43+4*t}], v16 offset:{64*t}")
    a("""v_and_b32 v17, 7, v14
v_lshrrev_b32 v18, 3, v14
v_lshl_add_u32 v20, v18, 7, v17
v_and_b32 v17, 3, v14
v_lshlrev_b32 v17, 1, v17
v_bfe_u32 v18, v14, 2, 1
v_lshl_add_u32 v17, v18, 7, v17
v_add_u32 v17, 256, v17
v_and_b32 v18, 1, v14
v_lshlrev_b32 v18, 2, v18
v_bfe_u32 v19, v14, 1, 2
v_lshl_add_u32 v18, v19, 7, v18
v_add_u32 v18, 512, v18
v_cmp_gt_u32 vcc, 8, v14
v_cndmask_b32 v21, v18, v17, vcc
v_lshlrev_b32 v17, 7, v14
v_add_u32 v17, 1024, v17
v_mov_b32 v18, 2056
v_cmp_gt_u32 vcc, 9, v14
v_cndmask_b32 v22, v18, v17, vcc
v_lshlrev_b32 v23, 3, v14
v_cmp_gt_u32 vcc, 16, v0
s_and_saveexec_b64 s[24:25], vcc
v_lshlrev_b32 v17, 2, v14
ds_write_b32 v17, v20 offset:2048
ds_write_b32 v17, v21 offset:2112
ds_write_b32 v17, v22 offset:2176
v_mov_b32 v18, 0
v_mov_b32 v19, 0
ds_write_b32 v18, v19 offset:25104
s_mov_b64 exec, s[24:25]
v_cvt_f32_u32 v20, v20
v_cvt_f32_u32 v21, v21
v_cvt_f32_u32 v22, v22
v_cvt_f32_u32 v23, v23
s_waitcnt lgkmcnt(0)""")
    for t in range(8):
        ar,ai,wr,wi = 40+4*t,41+4*t,42+4*t,43+4*t
        T=lambda e,k: 80+6*e+k
        for e in range(4): a(f"v_mul_f32 v{T(e,0)}, v{ar}, v{20+e}\nv_mul_f32 v{T(e,1)}, v{ai}, v{20+e}")
        for e in range(4): a(f"v_mul_f32 v{T(e,0)}, 0x3fb8aa3b, v{T(e,0)}\nv_fract_f32 v{T(e,1)}, v{T(e,1)}")
        for e in range(4): a(f"v_exp_f32 v{T(e,0)}, v{T(e,0)}\nv_sin_f32 v{T(e,2)}, v{T(e,1)}\nv_cos_f32 v{T(e,1)}, v{T(e,1)}")
        for e in range(4): a(f"v_mul_f32 v{T(e,1)}, v{T(e,0)}, v{T(e,1)}\nv_mul_f32 v{T(e,2)}, v{T(e,0)}, v{T(e,2)}")
        for e in range(3):
            a(f"""v_mul_f32 v{T(e,3)}, v{wi}, v{T(e,2)}
v_fma_f32 v{T(e,3)}, v{wr}, v{T(e,1)}, -v{T(e,3)}
v_mul_f32 v{T(e,4)}, v{wi}, v{T(e,1)}
v_fma_f32 v{T(e,4)}, -v{wr}, v{T(e,2)}, -v{T(e,4)}""")
        a("s_nop 1")
        for e in range(3):
            c = "0" if t==0 else f"v[{24+4*e}:{27+4*e}]"
            a(f"v_mfma_f32_16x16x4_f32 v[{24+4*e}:{27+4*e}], v{T(e,3)}, v{T(3,1)}, {c}")
        for e in range(3):
            a(f"v_mfma_f32_16x16x4_f32 v[{24+4*e}:{27+4*e}], v{T(e,4)}, v{T(3,2)}, v[{24+4*e}:{27+4*e}]")
        a("s_nop 1")
    a("""s_nop 7
s_nop 7
v_mul_u32_u24 v17, 3072, v13
v_lshl_add_u32 v17, v12, 4, v17
ds_write_b128 v17, v[24:27] offset:4096
ds_write_b128 v17, v[28:31] offset:5120
ds_write_b128 v17, v[32:35] offset:6144
s_waitcnt lgkmcnt(0)
s_barrier
v_cmp_gt_u32 vcc, 192, v0
s_and_saveexec_b64 s[24:25], vcc
v_lshlrev_b32 v17, 10, v13
v_lshl_add_u32 v17, v12, 4, v17
ds_read_b128 v[24:27], v17 offset:4096
ds_read_b128 v[28:31], v17 offset:7168
ds_read_b128 v[32:35], v17 offset:10240
ds_read_b128 v[36:39], v17 offset:13312
v_lshlrev_b32 v18, 6, v13
v_lshl_add_u32 v18, v15, 4, v18
ds_read_b128 v[40:43], v18 offset:2048
v_lshlrev_b32 v19, 3, v14
s_waitcnt lgkmcnt(0)""")
    for r in range(4):
        a(f"""v_add_f32 v{24+r}, v{24+r}, v{28+r}
v_add_f32 v{32+r}, v{32+r}, v{36+r}
v_add_f32 v{24+r}, v{24+r}, v{32+r}
v_add_u32 v{40+r}, v{40+r}, v19
v_lshlrev_b32 v{40+r}, 2, v{40+r}
ds_write_b32 v{40+r}, v{24+r} offset:16384""")
    a("""s_mov_b64 exec, s[24:25]
s_waitcnt lgkmcnt(0)
s_barrier""")
    srd(a, 8, 4, KR, 576*KSZ)
    a(f"s_mul_i32 s22, s3, {KSZ}\ns_mov_b32 s26, 0\nv_mov_b32 v60, v0\nK1_EX:")
    a("v_lshlrev_b32 v1, 3, v60\nv_sub_u32 v1, 2080, v1")
    for u in range(11):
        a(f"v_subrev_u32 v2, {u}, v1\nv_cvt_f32_u32 v4, v2")
        bf16_rne(a, 4, 4, 3)
        a(f"v_cvt_u32_f32 v4, v4\nv_mov_b32 v5, 2180\nv_cmp_gt_u32 vcc, 2048, v2\nv_cndmask_b32 v4, v5, v4, vcc\nv_lshlrev_b32 v6, 2, v4\nds_read_b32 v{16+u}, v6 offset:16384")
    a("s_waitcnt lgkmcnt(0)")
    for u in range(11):
        bf16_rne(a, 28+u, 16+u, 3)
        a(f"v_sub_f32 v{16+u}, v{16+u}, v{28+u}")
    a("v_lshlrev_b32 v1, 4, v60")
    for h,b in ((0,28),(1,16)):
        for sg in range(4):
            for m in range(4): a(f"v_cvt_pk_bf16_f32 v{40+m}, v{b+sg+2*m}, v{b+sg+2*m+1}")
            a(f"v_add_u32 v2, {(h*4+sg)*KP}, v1\nbuffer_store_dwordx4 v[40:43], v2, s[8:11], s22 offen\ns_nop 1")
    a("""s_cmp_lg_u32 s26, 0
s_cbranch_scc1 K1_END
s_mov_b32 s26, 1
v_add_u32 v60, 256, v0
v_cmp_gt_u32 vcc, 16, v0
s_and_saveexec_b64 s[24:25], vcc
s_cbranch_execz K1_END
s_branch K1_EX""")
    a("""K1_TR:
s_load_dwordx2 s[6:7], s[0:1], 80
s_load_dwordx2 s[28:29], s[0:1], 96
s_waitcnt lgkmcnt(0)
s_sub_u32 s3, s2, 640
s_cmp_ge_u32 s3, 648
s_cbranch_scc1 K1_TR2
s_mul_hi_u32 s20, s3, 0x38e38e4
s_mul_i32 s21, s20, 72
s_sub_u32 s21, s3, s21
s_mov_b32 s22, 9216
s_mov_b32 s23, 1152""")
    srd(a, 8, 6, 0, D*F*2)
    srd(a, 12, 4, W1T, D*F*2)
    a("""s_branch K1_TR3
K1_TR2:
s_sub_u32 s3, s3, 648
s_mul_hi_u32 s20, s3, 0x1c71c71d
s_mul_i32 s21, s20, 9
s_sub_u32 s21, s3, s21
s_mov_b32 s22, 1152
s_mov_b32 s23, 9472""")
    srd(a, 8, 28, 0, D*F*2)
    srd(a, 12, 4, W2T, D*PA)
    a("""K1_TR3:
v_lshrrev_b32 v1, 3, v0
v_and_b32 v2, 7, v0
s_lshl_b32 s24, s20, 6
s_lshl_b32 s25, s21, 6
v_add_u32 v3, s24, v1
v_mul_lo_u32 v3, v3, s22
v_lshlrev_b32 v4, 4, v2
s_lshl_b32 s26, s25, 1
v_add3_u32 v3, v3, v4, s26
s_lshl_b32 s27, s22, 5
v_add_u32 v5, s27, v3
buffer_load_dwordx4 v[8:11], v3, s[8:11], 0 offen
buffer_load_dwordx4 v[12:15], v5, s[8:11], 0 offen
v_mul_u32_u24 v6, 144, v1
v_add_u32 v6, v6, v4
s_waitcnt vmcnt(0)
ds_write_b128 v6, v[8:11]
ds_write_b128 v6, v[12:15] offset:4608
s_waitcnt lgkmcnt(0)
s_barrier
v_lshlrev_b32 v6, 1, v1
v_mul_u32_u24 v7, 1152, v2
v_add_u32 v6, v6, v7""")
    for p in range(2):
        for r in range(8): a(f"ds_read_u16 v{16+r}, v6 offset:{144*r+64*p}")
        a("s_waitcnt lgkmcnt(0)")
        for r in range(4): a(f"v_lshl_or_b32 v{8+r}, v{16+2*r+1}, 16, v{16+2*r}")
        a(f"""v_add_u32 v3, s25, v1
v_add_u32 v3, {32*p}, v3
v_mul_lo_u32 v3, v3, s23
s_lshl_b32 s26, s24, 1
v_add3_u32 v3, v3, v4, s26
buffer_store_dwordx4 v[8:11], v3, s[12:15], 0 offen
s_nop 1""")
    a("K1_END:\ns_endpgm")
    return a.text()
```

```python
from gen_common import *
from gen_v3 import *
EX = 83456
def gen_k2h():
    a = Asm()
    a(f"""k2f_kernel:
s_load_dwordx2 s[4:5], s[0:1], 120
s_mov_b32 s90, 0x7fff
s_cmp_ge_u32 s2, 256
s_cbranch_scc1 KF_END
s_waitcnt lgkmcnt(0)
s_memtime s[60:61]
s_waitcnt lgkmcnt(0)
s_and_b32 s20, s2, 7
s_lshl_b32 s20, s20, 1
s_bfe_u32 s22, s2, 0x10003
s_add_u32 s20, s20, s22
s_lshr_b32 s21, s2, 4""")
    srd(a, 8, 4, WI, 144*73728); srd(a, 12, 4, XN, L*D*2); srd(a, 28, 4, PART, 16*L*D*4); srd(a, 32, 4, B1F, F*4); srd(a, 44, 4, TB, 12288)
    a("""v_and_b32 v1, 63, v0
v_lshrrev_b32 v2, 6, v0
s_nop 0
v_readfirstlane_b32 s24, v2
v_and_b32 v3, 31, v1
v_lshrrev_b32 v4, 5, v1
s_lshl_b32 s25, s21, 7
s_lshl_b32 s26, s24, 5
s_add_u32 s26, s25, s26
v_add_u32 v5, s26, v3
v_mul_u32_u24 v6, 1152, v5
v_lshl_add_u32 v6, v4, 4, v6
v_lshlrev_b32 v7, 4, v1
s_mul_i32 s27, s24, 9216
s_mul_i32 s36, s20, 9
s_mul_i32 s37, s36, 73728
s_add_u32 s35, s37, 36864
s_add_u32 s37, s37, s27
s_mov_b32 s38, 0
s_mov_b32 s39, s27""")
    a.l[:] = [l.replace("s_add_u32 s35, s37, 36864","s_add_u32 s55, s37, 36864") for l in a.l]
    def dma(sg, lb):
        for g in range(3):
            a(f"s_add_u32 s40, s{lb}, {4096*g}\ns_add_u32 s41, s{sg}, {4096*g}\ns_mov_b32 m0, s40\ns_nop 0")
            for o in range(4 if g<2 else 1):
                a(f"buffer_load_dwordx4 v7, s[8:11], s41 offen offset:{1024*o} lds")
    dma(37, 39)
    a("s_lshl_b32 s48, s24, 10")
    for j in range(3):
        a(f"s_add_u32 s49, s48, {4096*j}\ns_add_u32 s40, s49, {LUT_LDS}\ns_mov_b32 m0, s40\ns_nop 0\nbuffer_load_dwordx4 v7, s[44:47], s49 offen lds")
    a(f"s_mov_b32 s50, 0x00010001\ns_mov_b32 s51, 0x000f000f\ns_mov_b32 s52, {(2*LUT_LO)*0x10001}\ns_mov_b32 s53, {(2*(LUT_LO+LUT_N-1))*0x10001}\ns_mov_b32 s54, {(2*LUT_N)*0x10001}")
    for ks in range(36):
        a(f"buffer_load_dwordx4 v[{16+4*ks}:{19+4*ks}], v6, s[12:15], 0 offen offset:{32*ks}")
    a(f"""v_mov_b32 v8, v7
v_lshlrev_b32 v10, 1, v7
v_add_u32 v10, 36864, v10
s_lshl_b32 s42, s36, 7
v_lshlrev_b32 v11, 4, v4
v_add_u32 v11, s42, v11
s_mul_i32 s56, s24, 18432
v_add_u32 v9, s56, v7
v_add_u32 v9, {EX}, v9
s_waitcnt vmcnt(36)
s_barrier
s_memtime s[62:63]
s_waitcnt lgkmcnt(0)
KF_L:""")
    for q in range(4): a(f"buffer_load_dwordx4 v[{232+4*q}:{235+4*q}], v11, s[32:35], 0 offen offset:{32*q}")
    a("""s_add_u32 s43, s38, 1
s_min_u32 s43, s43, 8
s_mul_i32 s43, s43, 73728
s_add_u32 s43, s43, s37
s_sub_u32 s39, 36864, s39
s_add_u32 s39, s39, s27
s_add_u32 s39, s39, s27""")
    dma(43, 39)
    def frag(i, base, off): a(f"ds_read_b128 v[{208+4*(i%4)}:{211+4*(i%4)}], v{base} offset:{off}")
    for i in range(3): frag(i, 8, 1024*i)
    for ks in range(36):
        if ks+3<36: frag(ks+3, 8, 1024*(ks+3)); a(f"s_waitcnt vmcnt({48-ks}) lgkmcnt(3)")
        else: a(f"s_waitcnt vmcnt({48-ks}) lgkmcnt({35-ks})")
        c = "0" if ks==0 else "v[192:207]"
        a(f"v_mfma_f32_32x32x16_bf16 v[192:207], v[{208+4*(ks%4)}:{211+4*(ks%4)}], v[{16+4*ks}:{19+4*ks}], {c}")
    a("s_waitcnt vmcnt(9)\ns_nop 7\ns_nop 7\ns_nop 7")
    X = LUT_LDS - 2*LUT_LO
    for p in range(8):
        r=192+2*p; b=232+2*p; t=248+4*(p%2)
        a(f"""v_cvt_pk_bf16_f32 v{t}, v{r}, v{r+1}
v_lshlrev_b32 v{r}, 16, v{t}
v_and_b32 v{r+1}, 0xffff0000, v{t}
v_pk_add_f32 v[{r}:{r+1}], v[{r}:{r+1}], v[{b}:{b+1}]
v_cvt_pk_bf16_f32 v{t}, v{r}, v{r+1}
v_lshlrev_b32 v{r}, 16, v{t}
v_and_b32 v{r+1}, 0xffff0000, v{t}
v_pk_lshlrev_b16 v{t+1}, s50, v{t}
v_pk_max_u16 v{t+1}, v{t+1}, s52
v_pk_min_u16 v{t+1}, v{t+1}, s53
v_pk_lshrrev_b16 v{t}, s51, v{t}
v_pk_mad_u16 v{t+1}, v{t}, s54, v{t+1}
v_and_b32 v{t+2}, 0xffff, v{t+1}
v_lshrrev_b32 v{t+3}, 16, v{t+1}
ds_read_u16_d16_hi v{b}, v{t+2} offset:{X}
ds_read_u16_d16_hi v{b+1}, v{t+3} offset:{X}""")
    for p in range(8):
        r=192+2*p; b=232+2*p
        a(f"s_waitcnt lgkmcnt({14-2*p})\nv_pk_mul_f32 v[{r}:{r+1}], v[{r}:{r+1}], v[{b}:{b+1}]\nv_cvt_pk_bf16_f32 v{224+p}, v{r}, v{r+1}")
    a("""ds_write_b128 v9, v[224:227]
ds_write_b128 v9, v[228:231] offset:1024
v_sub_u32 v8, v10, v8
v_add_u32 v9, 2048, v9
v_add_u32 v11, 128, v11
s_add_u32 s38, s38, 1
s_waitcnt vmcnt(0) lgkmcnt(0)
s_barrier
s_cmp_lt_u32 s38, 9
s_cbranch_scc1 KF_L
s_memtime s[64:65]
s_waitcnt lgkmcnt(0)""")
    a(f"""s_lshl_b32 s57, s24, 11
s_add_u32 s57, s57, s55
s_lshr_b32 s58, s24, 1
s_add_u32 s58, s58, 16
s_lshl_b32 s58, s58, 11
s_add_u32 s58, s58, s55
s_mul_i32 s44, s20, 4718592
s_mul_i32 s59, s21, 294912
s_add_u32 s44, s44, s59
s_lshl_b32 s59, s24, 14
s_add_u32 s59, s59, s44
v_add_u32 v12, s59, v7
s_lshr_b32 s59, s24, 1
s_add_u32 s59, s59, 16
s_lshl_b32 s59, s59, 14
s_and_b32 s66, s24, 1
s_lshl_b32 s66, s66, 13
s_add_u32 s59, s59, s66
s_add_u32 s59, s59, s44
v_add_u32 v13, s59, v7
v_add_u32 v9, {EX}, v7
v_add_u32 v14, 36864, v9""")
    NR=16
    frs=[(T,ks) for T in range(5) for ks in range(18)]
    q=[]
    def issue_load(n):
        T,ks=frs[n]
        rg=192+4*(n%NR)
        off=(ks>>1)*73728+(ks&1)*1024+(8192*T if T<4 else 0)
        a(f"s_add_u32 s67, s{57 if T<4 else 58}, {off}\nbuffer_load_dwordx4 v[{rg}:{rg+3}], v7, s[8:11], s67 offen")
        q.append(('L',n))
    for n in range(NR): issue_load(n)
    def areg(rt,ks):
        return f"a[{64*rt+4*ks}:{64*rt+4*ks+3}]" if ks<16 else f"v[{160+8*rt+4*(ks-16)}:{163+8*rt+4*(ks-16)}]"
    for rt in range(4):
        for ks in range(18):
            a(f"ds_read_b128 {areg(rt,ks)}, v{9 if rt<2 else 14} offset:{18432*(rt%2)+1024*ks}")
            if (rt*18+ks)%8==7: a("s_waitcnt lgkmcnt(4)")
    a("s_waitcnt lgkmcnt(0)")
    def stores(T):
        o=[]
        for r in range(4 if T<4 else 2):
            for g in range(4):
                rg=16+64*(T%2)+16*r+4*g
                if T<4: o.append(f"s_mov_b32 s70, {65536*T+4096*r}\nbuffer_store_dwordx4 v[{rg}:{rg+3}], v12, s[28:31], s70 offen offset:{1024*g}")
                else: o.append(f"s_mov_b32 s70, {4096*r}\nbuffer_store_dwordx4 v[{rg}:{rg+3}], v13, s[28:31], s70 offen offset:{1024*g}")
        return o
    def wait_for(n):
        idx=[i for i,x in enumerate(q) if x==('L',n)][0]
        allow=len(q)-1-idx
        a(f"s_waitcnt vmcnt({allow})")
        del q[:idx+1]
    def tile(T, rts, pend):
        for ks in range(18):
            n=T*18+ks
            wait_for(n)
            rg=192+4*(n%NR)
            for i,rt in enumerate(rts):
                d=16+64*(T%2)+16*i
                c="0" if ks==0 else f"v[{d}:{d+15}]"
                a(f"v_mfma_f32_32x32x16_bf16 v[{d}:{d+15}], v[{rg}:{rg+3}], {areg(rt,ks)}, {c}")
            if n+NR<len(frs): issue_load(n+NR)
            if pend and ks>=1:
                a(pend.pop(0)); q.append(('S',0))
        while pend: a(pend.pop(0)); q.append(('S',0))
    pend=[]
    for T in range(4):
        tile(T,[0,1,2,3],pend); pend=stores(T)
    a("s_and_b32 s66, s24, 1\ns_cmp_eq_u32 s66, 1\ns_cbranch_scc1 KF_H1")
    q0=list(q); p0=list(pend)
    tile(4,[0,1],pend); a("s_branch KF_H2\nKF_H1:")
    q[:]=q0
    tile(4,[2,3],p0); a("KF_H2:\ns_nop 7\ns_nop 7\ns_nop 7")
    for s in stores(4): a(s)
    a(f"""s_waitcnt vmcnt(0)
s_memtime s[66:67]
s_waitcnt lgkmcnt(0)
s_cmp_ge_u32 s2, 6
s_cbranch_scc1 KF_END
s_and_b32 s70, s2, 1
s_cmp_lg_u32 s70, 0
s_cbranch_scc1 KF_END
s_lshr_b32 s71, s2, 1
s_sub_u32 s62, s62, s60
s_sub_u32 s64, s64, s60
s_sub_u32 s66, s66, s60
s_lshl_b32 s68, s71, 4
s_add_u32 s68, s68, {ST}
v_mov_b32 v1, s68
v_mov_b32 v2, s62
v_mov_b32 v3, s64
v_mov_b32 v4, s66
s_getreg_b32 s69, hwreg(HW_REG_XCC_ID)
v_mov_b32 v5, s69
global_store_dwordx4 v1, v[2:5], s[4:5]""")
    a("KF_END:\ns_endpgm")
    return a.text()
```

```python
from gen_common import *
from gen_k23 import gen_k2
WI   = WS_END
PART = WI + 144*73728
YB   = PART + 16*L*D*4
ST = YB + L*D*2
TB = ST + 4096
B1F = TB + 12288
KP=4384; KSZ=8*KP
KR = B1F + 18432
XP = KR + 576*KSZ + 4096
YAT = XP + 576*5120 + 4096
LUT_LO=115<<7; LUT_N=2432; LUT_LDS=73728; BUF1=83456
def mish2(a, r, rb, t):
    bf16_rne(a, r, r, t)
    a(f"v_add_f32 v{r}, v{r}, v{rb}")
    bf16_rne(a, r, r, t)
    a(f"v_and_b32 v{t+1}, 0x7fffffff, v{r}\nv_mul_f32 v{t+1}, 0xbfb8aa3b, v{t+1}\nv_exp_f32 v{t+1}, v{t+1}\ns_nop 0")
    bf16_rne(a, t+1, t+1, t)
    a(f"""v_add_f32 v{t+2}, 1.0, v{t+1}
v_log_f32 v{t+3}, v{t+2}
v_subrev_f32 v{t+2}, 1.0, v{t+2}
v_rcp_f32 v{t+4}, v{t+2}
v_mul_f32 v{t+3}, 0x3f317218, v{t+3}
v_mul_f32 v{t+3}, v{t+3}, v{t+1}
v_mul_f32 v{t+3}, v{t+3}, v{t+4}
v_cmp_eq_f32 vcc, 0, v{t+2}
s_nop 1
v_cndmask_b32 v{t+3}, v{t+3}, v{t+1}, vcc""")
    bf16_rne(a, t+3, t+3, t)
    a(f"v_max_f32 v{t+2}, 0, v{r}\nv_add_f32 v{t+3}, v{t+3}, v{t+2}")
    bf16_rne(a, t+3, t+3, t)
    a(f"""v_mul_f32 v{t+3}, 0xc038aa3b, v{t+3}
v_exp_f32 v{t+3}, v{t+3}
s_nop 0
v_add_f32 v{t+2}, 1.0, v{t+3}
v_rcp_f32 v{t+2}, v{t+2}
v_sub_f32 v{t+3}, 1.0, v{t+3}
v_mul_f32 v{t+3}, v{t+3}, v{t+2}""")
    bf16_rne(a, t+3, t+3, t)
    a(f"v_mul_f32 v{r}, v{r}, v{t+3}")

def img_role(a):
    a("""K1_TR:
s_load_dwordx2 s[6:7], s[0:1], 80
s_load_dwordx2 s[28:29], s[0:1], 96
s_waitcnt lgkmcnt(0)
s_sub_u32 s3, s2, 640
s_mov_b32 s30, 0
s_cmp_lt_u32 s3, 1296
s_cbranch_scc1 K1_I1
s_sub_u32 s3, s3, 1296
s_mov_b32 s30, 1
K1_I1:
s_mul_hi_u32 s20, s3, 0x1c71c71d
s_mul_i32 s21, s20, 9
s_sub_u32 s21, s3, s21
s_lshl_b32 s21, s21, 8
v_add_u32 v1, s21, v0
s_mul_i32 s22, s20, 73728
v_lshlrev_b32 v2, 4, v1
v_add_u32 v2, s22, v2
v_and_b32 v3, 31, v1
s_cmp_eq_u32 s30, 1
s_cbranch_scc1 K1_I2""")
    srd(a, 8, 6, 0, D*F*2)
    a("""v_lshrrev_b32 v4, 5, v1
s_mov_b32 s23, 73728
v_mul_lo_u32 v4, v4, s23
s_lshl_b32 s24, s20, 6
v_lshl_add_u32 v4, v3, 1, v4
v_add_u32 v4, s24, v4""")
    for i in range(8):
        a(f"v_add_u32 v5, {9216*i}, v4\nbuffer_load_ushort v{8+i}, v5, s[8:11], 0 offen")
    a("s_branch K1_I3\nK1_I2:")
    srd(a, 8, 28, 0, D*F*2)
    a("""v_add_u32 v2, 36864, v2
v_lshrrev_b32 v4, 7, v1
v_lshlrev_b32 v4, 6, v4
v_lshl_add_u32 v4, v3, 1, v4
v_bfe_u32 v5, v1, 5, 2
v_lshrrev_b32 v6, 1, v5
v_and_b32 v5, 1, v5
v_lshlrev_b32 v6, 4, v6
v_lshl_add_u32 v5, v5, 2, v6
s_lshl_b32 s24, s20, 5
v_add_u32 v5, s24, v5
v_mul_u32_u24 v5, 1152, v5
v_add_u32 v4, v4, v5""")
    for i,f in enumerate((0,1,2,3,8,9,10,11)):
        a(f"v_add_u32 v5, {1152*f}, v4\nbuffer_load_ushort v{8+i}, v5, s[8:11], 0 offen")
    a("K1_I3:")
    srd(a, 12, 4, WI, 144*73728)
    a("s_waitcnt vmcnt(0)")
    for r in range(4): a(f"v_lshl_or_b32 v{16+r}, v{8+2*r+1}, 16, v{8+2*r}")
    a("buffer_store_dwordx4 v[16:19], v2, s[12:15], 0 offen")

def gen_k2f():
    a = Asm()
    a(f"""k2f_kernel:
s_load_dwordx2 s[4:5], s[0:1], 120
s_load_dwordx2 s[6:7], s[0:1], 88
s_mov_b32 s90, 0x7fff
s_cmp_ge_u32 s2, 256
s_cbranch_scc1 KF_END
s_waitcnt lgkmcnt(0)
s_memtime s[60:61]
s_waitcnt lgkmcnt(0)
s_and_b32 s20, s2, 7
s_lshl_b32 s20, s20, 1
s_bfe_u32 s22, s2, 0x10003
s_add_u32 s20, s20, s22
s_lshr_b32 s21, s2, 4""")
    srd(a, 8, 4, WI, 144*73728); srd(a, 12, 4, XN, L*D*2); srd(a, 28, 4, PART, 16*L*D*4); srd(a, 32, 4, B1F, F*4); srd(a, 44, 4, TB, 12288)
    a("""v_and_b32 v1, 63, v0
v_lshrrev_b32 v2, 6, v0
s_nop 0
v_readfirstlane_b32 s24, v2
v_and_b32 v3, 31, v1
v_lshrrev_b32 v4, 5, v1
s_lshl_b32 s25, s21, 7
s_lshl_b32 s26, s24, 5
s_add_u32 s25, s25, s26
v_add_u32 v5, s25, v3
v_mul_u32_u24 v6, 1152, v5
v_lshl_add_u32 v6, v4, 4, v6
v_lshlrev_b32 v7, 4, v1
s_mul_i32 s27, s24, 18432
s_mul_i32 s36, s20, 9
s_mul_i32 s37, s36, 73728
s_add_u32 s37, s37, s27
s_mov_b32 s38, 0""")
    def dma(sg, lb):
        for g in range(5):
            a(f"s_add_u32 s40, s{lb}, {4096*g}\ns_add_u32 s41, s{sg}, {4096*g}\ns_mov_b32 m0, s40\ns_nop 0")
            for o in range(4 if g<4 else 2):
                a(f"buffer_load_dwordx4 v7, s[8:11], s41 offen offset:{1024*o} lds")
    a("s_mov_b32 s39, s27")
    dma(37, 39)
    a("s_lshl_b32 s48, s24, 10")
    for j in range(3):
        a(f"s_add_u32 s49, s48, {4096*j}\ns_add_u32 s40, s49, {LUT_LDS}\ns_mov_b32 m0, s40\ns_nop 0\nbuffer_load_dwordx4 v7, s[44:47], s49 offen lds")
    a(f"s_mov_b32 s50, 0x00010001\ns_mov_b32 s51, 0x000f000f\ns_mov_b32 s52, {(2*LUT_LO)*0x10001}\ns_mov_b32 s53, {(2*(LUT_LO+LUT_N-1))*0x10001}\ns_mov_b32 s54, {(2*LUT_N)*0x10001}")
    for ks in range(36):
        a(f"buffer_load_dwordx4 v[{16+4*ks}:{19+4*ks}], v6, s[12:15], 0 offen offset:{32*ks}")
    for r in range(256): a(f"v_accvgpr_write_b32 a{r}, 0")
    for r in range(32): a(f"v_mov_b32 v{160+r}, 0")
    a(f"""v_mov_b32 v8, v7
v_add_u32 v9, 36864, v7
v_lshlrev_b32 v10, 1, v7
v_add_u32 v10, 83456, v10
s_lshl_b32 s42, s36, 7
v_lshlrev_b32 v11, 4, v4
v_add_u32 v11, s42, v11
s_waitcnt vmcnt(0)
s_barrier
s_memtime s[62:63]
s_waitcnt lgkmcnt(0)
KF_L:""")
    for q in range(4): a(f"buffer_load_dwordx4 v[{232+4*q}:{235+4*q}], v11, s[32:35], 0 offen offset:{32*q}")
    a("""s_add_u32 s43, s38, 1
s_min_u32 s43, s43, 8
s_mul_i32 s43, s43, 73728
s_add_u32 s43, s43, s37
s_sub_u32 s39, 83456, s39
s_add_u32 s39, s39, s27
s_add_u32 s39, s39, s27""")
    dma(43, 39)
    def frag(i, base, off): a(f"ds_read_b128 v[{208+4*(i%4)}:{211+4*(i%4)}], v{base} offset:{off}")
    for i in range(3): frag(i, 8, 1024*i)
    for ks in range(36):
        if ks+3<36: frag(ks+3, 8, 1024*(ks+3)); a("s_waitcnt lgkmcnt(3)")
        else: a(f"s_waitcnt lgkmcnt({35-ks})")
        c = "0" if ks==0 else "v[192:207]"
        a(f"v_mfma_f32_32x32x16_bf16 v[192:207], v[{208+4*(ks%4)}:{211+4*(ks%4)}], v[{16+4*ks}:{19+4*ks}], {c}")
    a("s_waitcnt vmcnt(18)\ns_nop 7\ns_nop 7\ns_nop 7")
    X = LUT_LDS - 2*LUT_LO
    for p in range(8):
        r=192+2*p; b=232+2*p; t=248+4*(p%2)
        a(f"""v_cvt_pk_bf16_f32 v{t}, v{r}, v{r+1}
v_lshlrev_b32 v{r}, 16, v{t}
v_and_b32 v{r+1}, 0xffff0000, v{t}
v_pk_add_f32 v[{r}:{r+1}], v[{r}:{r+1}], v[{b}:{b+1}]
v_cvt_pk_bf16_f32 v{t}, v{r}, v{r+1}
v_lshlrev_b32 v{r}, 16, v{t}
v_and_b32 v{r+1}, 0xffff0000, v{t}
v_pk_lshlrev_b16 v{t+1}, s50, v{t}
v_pk_max_u16 v{t+1}, v{t+1}, s52
v_pk_min_u16 v{t+1}, v{t+1}, s53
v_pk_lshrrev_b16 v{t}, s51, v{t}
v_pk_mad_u16 v{t+1}, v{t}, s54, v{t+1}
v_and_b32 v{t+2}, 0xffff, v{t+1}
v_lshrrev_b32 v{t+3}, 16, v{t+1}
ds_read_u16_d16_hi v{b}, v{t+2} offset:{X}
ds_read_u16_d16_hi v{b+1}, v{t+3} offset:{X}""")
    for i in range(3): frag(i, 9, 1024*i)
    for p in range(8):
        r=192+2*p; b=232+2*p
        a(f"s_waitcnt lgkmcnt({min(15,3+14-2*p)})\nv_pk_mul_f32 v[{r}:{r+1}], v[{r}:{r+1}], v[{b}:{b+1}]\nv_cvt_pk_bf16_f32 v{224+p}, v{r}, v{r+1}")
    a("s_nop 1")
    for i in range(36):
        if i+3<36: frag(i+3, 9, 1024*(i+3)); a("s_waitcnt lgkmcnt(3)")
        else: a(f"s_waitcnt lgkmcnt({35-i})")
        nt, ks = i//2, i%2
        acc = f"a[{16*nt}:{16*nt+15}]" if nt<16 else f"v[{160+16*(nt-16)}:{175+16*(nt-16)}]"
        a(f"v_mfma_f32_32x32x16_bf16 {acc}, v[{208+4*(i%4)}:{211+4*(i%4)}], v[{224+4*ks}:{227+4*ks}], {acc}")
    a("""v_sub_u32 v8, v10, v8
v_add_u32 v9, 36864, v8
v_add_u32 v11, 128, v11
s_add_u32 s38, s38, 1
s_waitcnt vmcnt(0)
s_barrier
s_cmp_lt_u32 s38, 9
s_cbranch_scc1 KF_L
s_memtime s[64:65]
s_waitcnt lgkmcnt(0)
s_nop 7
s_nop 7
s_mul_i32 s44, s20, 4718592
v_mul_u32_u24 v6, 2304, v5
v_lshl_add_u32 v6, v4, 4, v6
v_add_u32 v6, s44, v6""")
    for nt in range(18):
        for q in range(4):
            if nt<16:
                for e in range(4): a(f"v_accvgpr_read_b32 v{208+e}, a{16*nt+4*q+e}")
                a(f"buffer_store_dwordx4 v[208:211], v6, s[28:31], 0 offen offset:{128*nt+32*q}\ns_nop 1")
            else:
                r=160+16*(nt-16)+4*q
                a(f"buffer_store_dwordx4 v[{r}:{r+3}], v6, s[28:31], 0 offen offset:{128*nt+32*q}")
    a(f"""s_waitcnt vmcnt(0)
s_memtime s[66:67]
s_waitcnt lgkmcnt(0)
s_cmp_ge_u32 s2, 6
s_cbranch_scc1 KF_END
s_and_b32 s70, s2, 1
s_cmp_lg_u32 s70, 0
s_cbranch_scc1 KF_END
s_lshr_b32 s71, s2, 1
s_sub_u32 s62, s62, s60
s_sub_u32 s64, s64, s60
s_sub_u32 s66, s66, s60
s_lshl_b32 s68, s71, 4
s_add_u32 s68, s68, {ST}
v_mov_b32 v1, s68
v_mov_b32 v2, s62
v_mov_b32 v3, s64
v_mov_b32 v4, s66
s_getreg_b32 s69, hwreg(HW_REG_XCC_ID)
v_mov_b32 v5, s69
global_store_dwordx4 v1, v[2:5], s[4:5]""")
    a("KF_END:\ns_endpgm")
    return a.text()

def gen_red(a):
    a("""K3R:
s_waitcnt lgkmcnt(0)
s_sub_u32 s3, s2, 144""")
    srd(a, 8, 4, PART, 16*L*D*4); srd(a, 12, 4, YB, L*D*2)
    a("s_lshl_b32 s3, s3, 8\nv_add_u32 v1, s3, v0\nv_lshlrev_b32 v2, 4, v1\nv_lshlrev_b32 v3, 3, v1")
    for s in range(16):
        a(f"s_mov_b32 s20, {s*L*D*4}\nbuffer_load_dwordx4 v[{8+4*s}:{11+4*s}], v2, s[8:11], s20 offen")
    a("s_waitcnt vmcnt(0)")
    for st in (8,4,2,1):
        for s in range(st):
            for e in range(4): a(f"v_add_f32 v{8+4*s+e}, v{8+4*s+e}, v{8+4*(s+st)+e}")
    a("v_cvt_pk_bf16_f32 v4, v8, v9\nv_cvt_pk_bf16_f32 v5, v10, v11\nbuffer_store_dwordx2 v[4:5], v3, s[12:15], 0 offen\ns_branch K2_END")

def gen_k4():
    a = Asm()
    a("""k4f_kernel:
s_load_dwordx2 s[4:5], s[0:1], 120
s_load_dwordx2 s[6:7], s[0:1], 0
s_load_dwordx2 s[36:37], s[0:1], 104
s_mov_b32 s90, 0x7fff
s_cmp_ge_u32 s2, 576
s_cbranch_scc1 K4_END
s_waitcnt lgkmcnt(0)""")
    srd(a, 8, 6, 0, L*D*2); srd(a, 12, 4, YA, L*D*2); srd(a, 16, 4, YB, L*D*2); srd(a, 20, 36, 0, L*D*2)
    a("""s_lshl_b32 s3, s2, 12
v_lshlrev_b32 v1, 4, v0
v_add_u32 v1, s3, v1
buffer_load_dwordx4 v[4:7], v1, s[8:11], 0 offen
buffer_load_dwordx4 v[8:11], v1, s[12:15], 0 offen
buffer_load_dwordx4 v[12:15], v1, s[16:19], 0 offen
s_waitcnt vmcnt(0)""")
    for r in range(4):
        for h in range(2):
            op = "v_lshlrev_b32 v{d}, 16, v{s}" if h==0 else "v_and_b32 v{d}, 0xffff0000, v{s}"
            a(op.format(d=20,s=4+r)); a(op.format(d=21,s=8+r)); a(op.format(d=22,s=12+r))
            a("v_add_f32 v20, v20, v21"); bf16_rne(a,20,20,23)
            a(f"v_add_f32 v{24+h}, v20, v22")
        a(f"v_cvt_pk_bf16_f32 v{16+r}, v24, v25")
    a("buffer_store_dwordx4 v[16:19], v1, s[20:23], 0 offen")
    a(f"""s_cmp_lg_u32 s2, 0
s_cbranch_scc1 K4_END
s_load_dwordx2 s[40:41], s[0:1], 112
v_lshlrev_b32 v1, 2, v0
v_add_u32 v2, {ST}, v1
v_cmp_gt_u32 vcc, 24, v0
s_and_saveexec_b64 s[42:43], vcc
s_waitcnt vmcnt(0)
global_load_dword v3, v2, s[4:5]
s_waitcnt vmcnt(0) lgkmcnt(0)
global_store_dword v1, v3, s[40:41]""")
    a("K4_END:\ns_endpgm")
    return a.text()

def tab_role(a, first):
    a(f"""K1_TAB:
s_load_dwordx2 s[6:7], s[0:1], 88
s_waitcnt lgkmcnt(0)
s_sub_u32 s3, s2, {first}
s_lshl_b32 s3, s3, 8
v_add_u32 v1, s3, v0""")
    srd(a, 8, 6, 0, F*2); srd(a, 12, 4, B1F, F*4); srd(a, 16, 4, TB, 2*2*LUT_N)
    a(f"""v_lshlrev_b32 v2, 1, v1
buffer_load_ushort v3, v2, s[8:11], 0 offen
v_cmp_le_u32 vcc, {LUT_N}, v1
v_mov_b32 v4, {LUT_LO}
v_mov_b32 v5, {LUT_LO - LUT_N + 0x8000}
v_cndmask_b32 v4, v4, v5, vcc
v_add_u32 v4, v4, v1
v_lshlrev_b32 v4, 16, v4
v_mov_b32 v5, 0""")
    mish2(a, 4, 5, 8)
    a("""v_lshrrev_b32 v11, 16, v11
buffer_store_short v11, v2, s[16:19], 0 offen
s_waitcnt vmcnt(0)
v_lshlrev_b32 v3, 16, v3
v_lshlrev_b32 v2, 2, v1
buffer_store_dword v3, v2, s[12:15], 0 offen
s_branch K1_END""")
```

```python
from gen_common import *
import gen_k1c as gen_k1
from gen_conv2 import gen_k3c, gen_k4t
from gen_k2h import gen_k2h as gen_k2g
from gen_v3 import *
k1=gen_k1.gen_k1()
i=k1.index("K1_TR:"); j=k1.index("K1_END:")
a=Asm(); img_role(a)
a("s_branch K1_END"); tab_role(a,3232)
k1=k1[:i]+a.text()+k1[j:]
k1=k1.replace("s_cmp_ge_u32 s2, 1936","s_cmp_ge_u32 s2, 3251\n    s_cbranch_scc1 K1_END\n    s_cmp_ge_u32 s2, 3232\n    s_cbranch_scc1 K1_TAB\n    s_cmp_ge_u32 s2, 3251")
k3=gen_k3c()
ref=open(f"cdna_kernels/{NAME}.s.ref").read().split("\n")
out="\n".join(l for l in ref if l.startswith(";") and "@launch" not in l)+"\n"
out+="; @launch kernel=k1_kernel grid=(3251,1,1) block=(256,1,1) lds=40960\n"
out+="; @launch kernel=k2f_kernel grid=(256,1,1) block=(256,1,1) lds=157184\n"
out+="; @launch kernel=k3c_kernel grid=(1728,1,1) block=(256,1,1) lds=47104\n"
out+="; @launch kernel=k4f_kernel grid=(288,1,1) block=(256,1,1) lds=9216\n"
out+='.amdgcn_target "amdgcn-amd-amdhsa--gfx950"\n.text\n'
def stamp(t, n, idx):
    st=f"""    s_cmp_lg_u32 s2, 0
    s_cbranch_scc1 STK{idx}
    s_load_dwordx2 s[96:97], s[0:1], 120
    s_memrealtime s[98:99]
    s_waitcnt lgkmcnt(0)
    v_mov_b32 v1, {ST+48+4*idx}
    v_mov_b32 v2, s98
    global_store_dword v1, v2, s[96:97]
STK{idx}:
"""
    return t.replace(n+":\n", n+":\n"+st, 1)
for idx,(n,t) in enumerate((("k1_kernel",k1),("k2f_kernel",gen_k2g()),("k3c_kernel",k3),("k4f_kernel",gen_k4t()))):
    t=stamp(t,n,idx)
    out+=f".globl {n}\n.p2align 8\n.type {n},@function\n"+t
out+='.section .rodata,"a"\n'
for n,v,ac in (("k1_kernel",180,180),("k2f_kernel",512,256),("k3c_kernel",96,96),("k4f_kernel",64,64)):
    out+=".p2align 6\n"+kd(n,v,102,ac)
import sys
open(sys.argv[1] if len(sys.argv)>1 else f"cdna_kernels/{NAME}.s","w").write(out)
```

```python
from gen_common import *
from gen_v3 import *
C=2080
KC=10240
def conv_steps(a, qs, tag):
    qmax=qs[-1]
    def reads(n, q):
        o = 16*(n%2)
        dl = (q+1)//2 if q%2 else q//2
        ks = 1 if q%2 else 0
        k8 = 4*(qmax-q)
        a(f"ds_read2_b64 v[{16+o}:{19+o}], v12 offset0:{k8} offset1:{k8+1}\nds_read2_b64 v[{20+o}:{23+o}], v13 offset0:{k8} offset1:{k8+1}")
        js = [0,1] if dl<=31 else [1]
        for j in js:
            off = 5120+80*(32*j-dl)+32*ks
            a(f"ds_read_b128 v[{24+4*j+o}:{27+4*j+o}], v14 offset:{off}")
        return js
    js=reads(0,qs[0])
    for n,q in enumerate(qs):
        o=16*(n%2)
        if n+1<len(qs):
            jn=reads(n+1,qs[n+1]); a(f"s_waitcnt lgkmcnt({2+len(jn)})")
        else: a("s_waitcnt lgkmcnt(0)")
        for j in js:
            for h in range(2):
                a(f"v_mfma_f32_32x32x16_bf16 v[{64+16*j}:{79+16*j}], v[{16+4*h+o}:{19+4*h+o}], v[{24+4*j+o}:{27+4*j+o}], v[{64+16*j}:{79+16*j}]")
        if n+1<len(qs): js=jn

def gen_k3c():
    a=Asm()
    a("""k3c_kernel:
s_load_dwordx2 s[4:5], s[0:1], 120
s_load_dwordx2 s[6:7], s[0:1], 64
s_mov_b32 s90, 0x7fff
s_cmp_ge_u32 s2, 1728
s_cbranch_scc1 K3_END
s_cmp_ge_u32 s2, 576
s_cbranch_scc1 K3R
s_waitcnt lgkmcnt(0)""")
    srd(a, 8, 4, XP, 576*5120); srd(a, 12, 4, KR, 576*KSZ+4096); srd(a, 28, 4, YAT, L*D*2); srd(a, 32, 6, 0, D*2)
    a(f"""v_lshrrev_b32 v1, 6, v0
s_nop 0
v_readfirstlane_b32 s20, v1
v_and_b32 v2, 63, v0
v_lshlrev_b32 v3, 4, v2
s_lshl_b32 s22, s20, 10
s_mul_i32 s23, s2, 5120
s_add_u32 s23, s23, s22
s_add_u32 s24, s22, 5120
s_mov_b32 m0, s24
s_mul_i32 s25, s2, {KSZ}
s_add_u32 s25, s25, s22
buffer_load_dwordx4 v3, s[8:11], s23 offen lds
s_cmp_lg_u32 s20, 0
s_cbranch_scc1 K3_X1
s_mov_b32 m0, 9216
s_add_u32 s23, s23, 4096
s_nop 0
buffer_load_dwordx4 v3, s[8:11], s23 offen lds
K3_X1:""")
    for b in range(9):
        a(f"s_add_u32 s24, s22, {KC+4096*b}\ns_add_u32 s26, s25, {4096*b}\ns_mov_b32 m0, s24\ns_nop 0\nbuffer_load_dwordx4 v3, s[12:15], s26 offen lds")
    a(f"""v_lshlrev_b32 v4, 4, v0
v_mov_b32 v8, 0
v_mov_b32 v9, 0
v_mov_b32 v10, 0
v_mov_b32 v11, 0
ds_write_b128 v4, v[8:11]
ds_write_b128 v4, v[8:11] offset:1024
s_lshl_b32 s27, s2, 1
v_mov_b32 v5, s27
buffer_load_ushort v5, v5, s[32:35], 0 offen
v_and_b32 v10, 31, v2
v_lshrrev_b32 v11, 5, v2
v_lshlrev_b32 v12, 3, v11
v_sub_u32 v12, v12, v10
v_add_u32 v12, {C}, v12
v_and_b32 v13, 3, v12
v_mul_u32_u24 v13, {KP}, v13
v_and_b32 v12, -4, v12
v_lshl_add_u32 v12, v12, 1, v13
v_add_u32 v12, {KC}, v12
v_mul_u32_u24 v14, 80, v10
v_lshl_add_u32 v14, v11, 4, v14""")
    for r in range(32): a(f"v_mov_b32 v{64+r}, 0")
    a("""s_waitcnt vmcnt(0) lgkmcnt(0)
s_barrier
s_cmp_eq_u32 s20, 1
s_cbranch_scc1 K3_W1
s_cmp_eq_u32 s20, 2
s_cbranch_scc1 K3_W2
s_cmp_eq_u32 s20, 3
s_cbranch_scc1 K3_W3""")
    rng=[(-1,23),(23,47),(47,78),(78,128)]
    for w,(qa,qb) in enumerate(rng):
        if w: a(f"K3_W{w}:")
        qs=list(range(qa,qb))
        a(f"v_subrev_u32 v12, {32*qs[-1]}, v12\nv_add_u32 v13, {4*KP}, v12")
        conv_steps(a, qs, w)
        a("s_branch K3_F")
    a(f"""K3_F:
s_nop 7
s_nop 7
s_barrier
s_lshl_b32 s21, s20, 13
v_add_u32 v4, s21, v3""")
    for g in range(8): a(f"ds_write_b128 v4, v[{64+4*g}:{67+4*g}] offset:{KC+1024*g}")
    a(f"""s_waitcnt lgkmcnt(0)
s_barrier
s_lshl_b32 s21, s20, 11
v_add_u32 v4, s21, v3""")
    for e in range(2):
        for ww in range(4): a(f"ds_read_b128 v[{16+16*e+4*ww}:{19+16*e+4*ww}], v4 offset:{KC+8192*ww+1024*e}")
    a("""s_lshr_b32 s21, s20, 1
s_lshl_b32 s21, s21, 10
s_and_b32 s22, s20, 1
s_lshl_b32 s22, s22, 4
s_add_u32 s21, s21, s22
v_lshlrev_b32 v6, 5, v10
v_lshl_add_u32 v6, v11, 2, v6
v_add_u32 v6, s21, v6
v_lshrrev_b32 v7, 5, v6
v_and_b32 v9, 31, v6
v_mul_u32_u24 v7, 80, v7
v_lshl_add_u32 v7, v9, 1, v7
v_lshlrev_b32 v6, 1, v6
ds_read_b64 v[48:49], v7 offset:5120
ds_read_b64 v[50:51], v7 offset:5136
s_lshl_b32 s23, s2, 12
s_waitcnt vmcnt(0) lgkmcnt(0)
v_lshlrev_b32 v5, 16, v5""")
    for e in range(2):
        for r in range(4):
            b=16+16*e+r
            a(f"v_add_f32 v{b}, v{b}, v{b+4}\nv_add_f32 v{b+8}, v{b+8}, v{b+12}\nv_add_f32 v{b}, v{b}, v{b+8}")
            bf16_rne(a, b, b, 7)
            src=48+2*e+r//2
            a(f"v_lshlrev_b32 v8, 16, v{src}" if r%2==0 else f"v_and_b32 v8, 0xffff0000, v{src}")
            a("v_mul_f32 v8, v8, v5")
            bf16_rne(a, 8, 8, 7)
            a(f"v_add_f32 v{b}, v{b}, v8")
        b=16+16*e
        a(f"v_cvt_pk_bf16_f32 v52, v{b}, v{b+1}\nv_cvt_pk_bf16_f32 v53, v{b+2}, v{b+3}\nbuffer_store_dwordx2 v[52:53], v6, s[28:31], s23 offen offset:{16*e}\ns_nop 1")
    a("s_branch K3_END")
    a("""K3R:
s_waitcnt lgkmcnt(0)
s_sub_u32 s3, s2, 576""")
    srd(a, 8, 4, PART, 16*L*D*4); srd(a, 12, 4, YB, L*D*2)
    a("""s_lshl_b32 s21, s3, 8
v_lshrrev_b32 v1, 6, v0
v_lshlrev_b32 v1, 14, v1
v_and_b32 v2, 63, v0
v_lshl_add_u32 v2, v2, 4, v1
s_lshl_b32 s21, s3, 16
s_mul_hi_u32 s22, s3, 0x38e38e4
s_mul_i32 s23, s22, 72
s_sub_u32 s23, s3, s23
s_and_b32 s24, s23, 3
s_lshr_b32 s25, s23, 2
s_lshl_b32 s22, s22, 7
s_lshl_b32 s24, s24, 5
s_add_u32 s22, s22, s24
s_mul_i32 s22, s22, 1152
s_lshl_b32 s25, s25, 6
s_add_u32 s22, s22, s25
v_and_b32 v3, 31, v0
v_mul_u32_u24 v3, 1152, v3
v_lshrrev_b32 v4, 5, v0
v_lshl_add_u32 v3, v4, 3, v3
v_add_u32 v3, s22, v3""")
    for s in range(16):
        a(f"s_add_u32 s20, s21, {4096*(s//4)}\nbuffer_load_dwordx4 v[{8+4*s}:{11+4*s}], v2, s[8:11], s20 offen offset:{1024*(s%4)}")
    a("s_waitcnt vmcnt(0)")
    for st in (8,4,2,1):
        for s in range(st):
            for e in range(4): a(f"v_add_f32 v{8+4*s+e}, v{8+4*s+e}, v{8+4*(s+st)+e}")
    a("v_cvt_pk_bf16_f32 v4, v8, v9\nv_cvt_pk_bf16_f32 v5, v10, v11\nbuffer_store_dwordx2 v[4:5], v3, s[12:15], 0 offen")
    a("K3_END:\ns_endpgm")
    return a.text()

def gen_k4t():
    a = Asm()
    a("""k4f_kernel:
s_load_dwordx2 s[4:5], s[0:1], 120
s_load_dwordx2 s[6:7], s[0:1], 0
s_load_dwordx2 s[36:37], s[0:1], 104
s_mov_b32 s90, 0x7fff
s_cmp_ge_u32 s2, 288
s_cbranch_scc1 K4_END
s_waitcnt lgkmcnt(0)""")
    srd(a, 8, 6, 0, L*D*2); srd(a, 12, 4, YAT, L*D*2); srd(a, 16, 4, YB, L*D*2); srd(a, 20, 36, 0, L*D*2)
    a("""s_mul_hi_u32 s24, s2, 0x1c71c71d
s_mul_i32 s25, s24, 9
s_sub_u32 s25, s2, s25
v_lshrrev_b32 v1, 2, v0
v_and_b32 v2, 3, v0
s_lshl_b32 s26, s25, 18
s_lshl_b32 s27, s24, 7
s_add_u32 s26, s26, s27
v_lshlrev_b32 v3, 12, v1
v_lshl_add_u32 v3, v2, 5, v3
buffer_load_dwordx4 v[4:7], v3, s[12:15], s26 offen
buffer_load_dwordx4 v[8:11], v3, s[12:15], s26 offen offset:16
s_mul_i32 s28, s24, 73728
s_lshl_b32 s29, s25, 7
s_add_u32 s28, s28, s29
v_mul_u32_u24 v12, 1152, v1
v_lshl_add_u32 v12, v2, 5, v12
buffer_load_dwordx4 v[16:19], v12, s[8:11], s28 offen
buffer_load_dwordx4 v[20:23], v12, s[8:11], s28 offen offset:16
buffer_load_dwordx4 v[24:27], v12, s[16:19], s28 offen
buffer_load_dwordx4 v[28:31], v12, s[16:19], s28 offen offset:16
v_mul_u32_u24 v13, 144, v1
v_lshl_add_u32 v13, v2, 5, v13
s_waitcnt vmcnt(4)
ds_write_b128 v13, v[4:7]
ds_write_b128 v13, v[8:11] offset:16
v_mul_u32_u24 v14, 2304, v2
v_lshl_add_u32 v14, v1, 1, v14
s_waitcnt lgkmcnt(0)
s_barrier""")
    for e in range(16): a(f"ds_read_u16 v{32+e}, v14 offset:{144*e}")
    a("s_waitcnt vmcnt(0) lgkmcnt(0)")
    for r in range(8):
        for h in range(2):
            op = "v_lshlrev_b32 v{d}, 16, v{s}" if h==0 else "v_and_b32 v{d}, 0xffff0000, v{s}"
            a(op.format(d=50,s=16+r)); a(f"v_lshlrev_b32 v51, 16, v{32+2*r+h}"); a(op.format(d=52,s=24+r))
            a("v_add_f32 v50, v50, v51"); bf16_rne(a,50,50,53)
            a(f"v_add_f32 v{54+h}, v50, v52")
        a(f"v_cvt_pk_bf16_f32 v{4+r}, v54, v55")
    a("buffer_store_dwordx4 v[4:7], v12, s[20:23], s28 offen\nbuffer_store_dwordx4 v[8:11], v12, s[20:23], s28 offen offset:16")
    a(f"""s_cmp_lg_u32 s2, 0
s_cbranch_scc1 K4_END
s_load_dwordx2 s[40:41], s[0:1], 112
v_lshlrev_b32 v1, 2, v0
v_add_u32 v2, {ST}, v1
v_cmp_gt_u32 vcc, 16, v0
s_and_saveexec_b64 s[42:43], vcc
s_waitcnt vmcnt(0)
global_load_dword v3, v2, s[4:5]
s_waitcnt vmcnt(0) lgkmcnt(0)
global_store_dword v1, v3, s[40:41]""")
    a("K4_END:\ns_endpgm")
    return a.text()
```

```python
from gen_common import *
from gen_v3 import *
EX = 83456
def gen_k2h():
    a = Asm()
    a(f"""k2f_kernel:
s_load_dwordx2 s[4:5], s[0:1], 120
s_mov_b32 s90, 0x7fff
s_cmp_ge_u32 s2, 256
s_cbranch_scc1 KF_END
s_waitcnt lgkmcnt(0)
s_memtime s[60:61]
s_waitcnt lgkmcnt(0)
s_and_b32 s20, s2, 7
s_lshl_b32 s20, s20, 1
s_bfe_u32 s22, s2, 0x10003
s_add_u32 s20, s20, s22
s_lshr_b32 s21, s2, 4""")
    srd(a, 8, 4, WI, 144*73728); srd(a, 12, 4, XN, L*D*2); srd(a, 28, 4, PART, 16*L*D*4); srd(a, 32, 4, B1F, F*4); srd(a, 44, 4, TB, 12288)
    a("""v_and_b32 v1, 63, v0
v_lshrrev_b32 v2, 6, v0
s_nop 0
v_readfirstlane_b32 s24, v2
v_and_b32 v3, 31, v1
v_lshrrev_b32 v4, 5, v1
s_lshl_b32 s25, s21, 7
s_lshl_b32 s26, s24, 5
s_add_u32 s26, s25, s26
v_add_u32 v5, s26, v3
v_mul_u32_u24 v6, 1152, v5
v_lshl_add_u32 v6, v4, 4, v6
v_lshlrev_b32 v7, 4, v1
s_mul_i32 s27, s24, 9216
s_mul_i32 s36, s20, 9
s_mul_i32 s37, s36, 73728
s_add_u32 s35, s37, 36864
s_add_u32 s37, s37, s27
s_mov_b32 s38, 0
s_mov_b32 s39, s27""")
    a.l[:] = [l.replace("s_add_u32 s35, s37, 36864","s_add_u32 s55, s37, 36864") for l in a.l]
    def dma(sg, lb):
        for g in range(3):
            a(f"s_add_u32 s40, s{lb}, {4096*g}\ns_add_u32 s41, s{sg}, {4096*g}\ns_mov_b32 m0, s40\ns_nop 0")
            for o in range(4 if g<2 else 1):
                a(f"buffer_load_dwordx4 v7, s[8:11], s41 offen offset:{1024*o} lds")
    dma(37, 39)
    a("s_lshl_b32 s48, s24, 10")
    for j in range(3):
        a(f"s_add_u32 s49, s48, {4096*j}\ns_add_u32 s40, s49, {LUT_LDS}\ns_mov_b32 m0, s40\ns_nop 0\nbuffer_load_dwordx4 v7, s[44:47], s49 offen lds")
    a(f"s_mov_b32 s50, 0x00010001\ns_mov_b32 s51, 0x000f000f\ns_mov_b32 s52, {(2*LUT_LO)*0x10001}\ns_mov_b32 s53, {(2*(LUT_LO+LUT_N-1))*0x10001}\ns_mov_b32 s54, {(2*LUT_N)*0x10001}")
    for ks in range(36):
        a(f"buffer_load_dwordx4 v[{16+4*ks}:{19+4*ks}], v6, s[12:15], 0 offen offset:{32*ks}")
    a(f"""v_mov_b32 v8, v7
v_lshlrev_b32 v10, 1, v7
v_add_u32 v10, 36864, v10
s_lshl_b32 s42, s36, 7
v_lshlrev_b32 v11, 4, v4
v_add_u32 v11, s42, v11
s_mul_i32 s56, s24, 18432
v_add_u32 v9, s56, v7
v_add_u32 v9, {EX}, v9
s_waitcnt vmcnt(36)
s_barrier
s_memtime s[62:63]
s_waitcnt lgkmcnt(0)
KF_L:""")
    for q in range(4): a(f"buffer_load_dwordx4 v[{232+4*q}:{235+4*q}], v11, s[32:35], 0 offen offset:{32*q}")
    a("""s_add_u32 s43, s38, 1
s_min_u32 s43, s43, 8
s_mul_i32 s43, s43, 73728
s_add_u32 s43, s43, s37
s_sub_u32 s39, 36864, s39
s_add_u32 s39, s39, s27
s_add_u32 s39, s39, s27""")
    dma(43, 39)
    def frag(i, base, off): a(f"ds_read_b128 v[{208+4*(i%4)}:{211+4*(i%4)}], v{base} offset:{off}")
    for i in range(3): frag(i, 8, 1024*i)
    for ks in range(36):
        if ks+3<36: frag(ks+3, 8, 1024*(ks+3)); a(f"s_waitcnt vmcnt({48-ks}) lgkmcnt(3)")
        else: a(f"s_waitcnt vmcnt({48-ks}) lgkmcnt({35-ks})")
        c = "0" if ks==0 else "v[192:207]"
        a(f"v_mfma_f32_32x32x16_bf16 v[192:207], v[{208+4*(ks%4)}:{211+4*(ks%4)}], v[{16+4*ks}:{19+4*ks}], {c}")
    a("s_waitcnt vmcnt(9)\ns_nop 7\ns_nop 7\ns_nop 7")
    X = LUT_LDS - 2*LUT_LO
    for p in range(8):
        r=192+2*p; b=232+2*p; t=248+4*(p%2)
        a(f"""v_cvt_pk_bf16_f32 v{t}, v{r}, v{r+1}
v_lshlrev_b32 v{r}, 16, v{t}
v_and_b32 v{r+1}, 0xffff0000, v{t}
v_pk_add_f32 v[{r}:{r+1}], v[{r}:{r+1}], v[{b}:{b+1}]
v_cvt_pk_bf16_f32 v{t}, v{r}, v{r+1}
v_lshlrev_b32 v{r}, 16, v{t}
v_and_b32 v{r+1}, 0xffff0000, v{t}
v_pk_lshlrev_b16 v{t+1}, s50, v{t}
v_pk_max_u16 v{t+1}, v{t+1}, s52
v_pk_min_u16 v{t+1}, v{t+1}, s53
v_pk_lshrrev_b16 v{t}, s51, v{t}
v_pk_mad_u16 v{t+1}, v{t}, s54, v{t+1}
v_and_b32 v{t+2}, 0xffff, v{t+1}
v_lshrrev_b32 v{t+3}, 16, v{t+1}
ds_read_u16_d16_hi v{b}, v{t+2} offset:{X}
ds_read_u16_d16_hi v{b+1}, v{t+3} offset:{X}""")
    for p in range(8):
        r=192+2*p; b=232+2*p
        a(f"s_waitcnt lgkmcnt({14-2*p})\nv_pk_mul_f32 v[{r}:{r+1}], v[{r}:{r+1}], v[{b}:{b+1}]\nv_cvt_pk_bf16_f32 v{224+p}, v{r}, v{r+1}")
    a("""ds_write_b128 v9, v[224:227]
ds_write_b128 v9, v[228:231] offset:1024
v_sub_u32 v8, v10, v8
v_add_u32 v9, 2048, v9
v_add_u32 v11, 128, v11
s_add_u32 s38, s38, 1
s_waitcnt vmcnt(0) lgkmcnt(0)
s_barrier
s_cmp_lt_u32 s38, 9
s_cbranch_scc1 KF_L
s_memtime s[64:65]
s_waitcnt lgkmcnt(0)""")
    a(f"""s_lshl_b32 s57, s24, 11
s_add_u32 s57, s57, s55
s_lshr_b32 s58, s24, 1
s_add_u32 s58, s58, 16
s_lshl_b32 s58, s58, 11
s_add_u32 s58, s58, s55
s_lshl_b32 s44, s20, 10
s_mul_i32 s59, s21, 4718592
s_add_u32 s44, s44, s59
s_lshl_b32 s59, s24, 18
s_add_u32 s59, s59, s44
v_add_u32 v12, s59, v7
s_lshr_b32 s59, s24, 1
s_add_u32 s59, s59, 16
s_lshl_b32 s59, s59, 18
s_and_b32 s66, s24, 1
s_lshl_b32 s66, s66, 17
s_add_u32 s59, s59, s66
s_add_u32 s59, s59, s44
v_add_u32 v13, s59, v7
v_add_u32 v9, {EX}, v7
v_add_u32 v14, 36864, v9""")
    NR=16
    frs=[(T,ks) for T in range(5) for ks in range(18)]
    q=[]
    def issue_load(n):
        T,ks=frs[n]
        rg=192+4*(n%NR)
        off=(ks>>1)*73728+(ks&1)*1024+(8192*T if T<4 else 0)
        a(f"s_add_u32 s67, s{57 if T<4 else 58}, {off}\nbuffer_load_dwordx4 v[{rg}:{rg+3}], v7, s[8:11], s67 offen")
        q.append(('L',n))
    for n in range(NR): issue_load(n)
    def areg(rt,ks):
        return f"a[{64*rt+4*ks}:{64*rt+4*ks+3}]" if ks<16 else f"v[{160+8*rt+4*(ks-16)}:{163+8*rt+4*(ks-16)}]"
    for rt in range(4):
        for ks in range(18):
            a(f"ds_read_b128 {areg(rt,ks)}, v{9 if rt<2 else 14} offset:{18432*(rt%2)+1024*ks}")
            if (rt*18+ks)%8==7: a("s_waitcnt lgkmcnt(4)")
    a("s_waitcnt lgkmcnt(0)")
    def stores(T):
        o=[]
        for r in range(4 if T<4 else 2):
            for g in range(4):
                rg=16+64*(T%2)+16*r+4*g
                if T<4: o.append(f"s_mov_b32 s70, {1048576*T+65536*r+16384*g}\nbuffer_store_dwordx4 v[{rg}:{rg+3}], v12, s[28:31], s70 offen")
                else: o.append(f"s_mov_b32 s70, {65536*r+16384*g}\nbuffer_store_dwordx4 v[{rg}:{rg+3}], v13, s[28:31], s70 offen")
        return o
    def wait_for(n):
        idx=[i for i,x in enumerate(q) if x==('L',n)][0]
        allow=len(q)-1-idx
        a(f"s_waitcnt vmcnt({allow})")
        del q[:idx+1]
    def tile(T, rts, pend):
        for ks in range(18):
            n=T*18+ks
            wait_for(n)
            rg=192+4*(n%NR)
            for i,rt in enumerate(rts):
                d=16+64*(T%2)+16*i
                c="0" if ks==0 else f"v[{d}:{d+15}]"
                a(f"v_mfma_f32_32x32x16_bf16 v[{d}:{d+15}], v[{rg}:{rg+3}], {areg(rt,ks)}, {c}")
            if n+NR<len(frs): issue_load(n+NR)
            if pend and ks>=1:
                a(pend.pop(0)); q.append(('S',0))
        while pend: a(pend.pop(0)); q.append(('S',0))
    pend=[]
    for T in range(4):
        tile(T,[0,1,2,3],pend); pend=stores(T)
    a("s_and_b32 s66, s24, 1\ns_cmp_eq_u32 s66, 1\ns_cbranch_scc1 KF_H1")
    q0=list(q); p0=list(pend)
    tile(4,[0,1],pend); a("s_branch KF_H2\nKF_H1:")
    q[:]=q0
    tile(4,[2,3],p0); a("KF_H2:\ns_nop 7\ns_nop 7\ns_nop 7")
    for s in stores(4): a(s)
    a(f"""s_waitcnt vmcnt(0)
s_memtime s[66:67]
s_waitcnt lgkmcnt(0)
s_cmp_ge_u32 s2, 6
s_cbranch_scc1 KF_END
s_and_b32 s70, s2, 1
s_cmp_lg_u32 s70, 0
s_cbranch_scc1 KF_END
s_lshr_b32 s71, s2, 1
s_sub_u32 s62, s62, s60
s_sub_u32 s64, s64, s60
s_sub_u32 s66, s66, s60
s_lshl_b32 s68, s71, 4
s_add_u32 s68, s68, {ST}
v_mov_b32 v1, s68
v_mov_b32 v2, s62
v_mov_b32 v3, s64
v_mov_b32 v4, s66
s_getreg_b32 s69, hwreg(HW_REG_XCC_ID)
v_mov_b32 v5, s69
global_store_dwordx4 v1, v[2:5], s[4:5]""")
    a("KF_END:\ns_endpgm")
    return a.text()
```

```python
from gen_common import *
import gen_k1c as gen_k1
from gen_conv3 import gen_k3c, gen_k4t
from gen_k2i import gen_k2h as gen_k2g
from gen_v3 import *
k1=gen_k1.gen_k1()
i=k1.index("K1_TR:"); j=k1.index("K1_END:")
a=Asm(); img_role(a)
a("s_branch K1_END"); tab_role(a,3232)
k1=k1[:i]+a.text()+k1[j:]
k1=k1.replace("s_cmp_ge_u32 s2, 1936","s_cmp_ge_u32 s2, 3251\n    s_cbranch_scc1 K1_END\n    s_cmp_ge_u32 s2, 3232\n    s_cbranch_scc1 K1_TAB\n    s_cmp_ge_u32 s2, 3251")
k3=gen_k3c()
ref=open(f"cdna_kernels/{NAME}.s.ref").read().split("\n")
out="\n".join(l for l in ref if l.startswith(";") and "@launch" not in l)+"\n"
out+="; @launch kernel=k1_kernel grid=(3251,1,1) block=(256,1,1) lds=40960\n"
out+="; @launch kernel=k2f_kernel grid=(256,1,1) block=(256,1,1) lds=157184\n"
out+="; @launch kernel=k3c_kernel grid=(1728,1,1) block=(256,1,1) lds=47104\n"
out+="; @launch kernel=k4f_kernel grid=(288,1,1) block=(256,1,1) lds=9216\n"
out+='.amdgcn_target "amdgcn-amd-amdhsa--gfx950"\n.text\n'
def stamp(t, n, idx):
    st=f"""    s_cmp_lg_u32 s2, 0
    s_cbranch_scc1 STK{idx}
    s_load_dwordx2 s[96:97], s[0:1], 120
    s_memrealtime s[98:99]
    s_waitcnt lgkmcnt(0)
    v_mov_b32 v1, {ST+48+4*idx}
    v_mov_b32 v2, s98
    global_store_dword v1, v2, s[96:97]
STK{idx}:
"""
    return t.replace(n+":\n", n+":\n"+st, 1)
for idx,(n,t) in enumerate((("k1_kernel",k1),("k2f_kernel",gen_k2g()),("k3c_kernel",k3),("k4f_kernel",gen_k4t()))):
    t=stamp(t,n,idx)
    out+=f".globl {n}\n.p2align 8\n.type {n},@function\n"+t
out+='.section .rodata,"a"\n'
for n,v,ac in (("k1_kernel",180,180),("k2f_kernel",512,256),("k3c_kernel",96,96),("k4f_kernel",64,64)):
    out+=".p2align 6\n"+kd(n,v,102,ac)
import sys
open(sys.argv[1] if len(sys.argv)>1 else f"cdna_kernels/{NAME}.s","w").write(out)
```

```python
from gen_common import *
from gen_v3 import KR, KP, KSZ, XP
import math
def gen_k1():
    a = Asm()
    a(f"""k1_kernel:
s_load_dwordx2 s[4:5], s[0:1], 120
s_mov_b32 s90, 0x7fff
s_cmp_ge_u32 s2, 1936
s_cbranch_scc1 K1_END
s_cmp_ge_u32 s2, 640
s_cbranch_scc1 K1_TR
s_cmp_ge_u32 s2, 64
s_cbranch_scc1 K1_KGEN""")
    a("s_load_dwordx2 s[6:7], s[0:1], 0\ns_waitcnt lgkmcnt(0)")
    srd(a, 8, 6, 0, L*D*2)
    srd(a, 12, 4, XN, L*D*2)
    srd(a, 16, 4, XP, 576*5120)
    a("""v_lshrrev_b32 v1, 6, v0
v_and_b32 v2, 63, v0
s_lshl_b32 s20, s2, 5
v_lshlrev_b32 v3, 3, v1
v_add_u32 v3, s20, v3
s_mov_b32 s21, 1152
v_mul_lo_u32 v4, v3, s21
v_lshl_add_u32 v4, v2, 2, v4
v_cmp_gt_u32 s[22:23], 32, v2""")
    for i in range(8):
        for j in range(4):
            a(f"buffer_load_dword v{16+5*i+j}, v4, s[8:11], 0 offen offset:{1152*i+256*j}" if 1152*i+256*j < 4096 else
              f"v_add_u32 v5, {1152*i+256*j}, v4\nbuffer_load_dword v{16+5*i+j}, v5, s[8:11], 0 offen")
        a(f"v_mov_b32 v{16+5*i+4}, 0")
    a("s_mov_b64 s[24:25], exec\ns_mov_b64 exec, s[22:23]")
    for i in range(8):
        a(f"v_add_u32 v5, {1152*i+1024}, v4\nbuffer_load_dword v{16+5*i+4}, v5, s[8:11], 0 offen")
    a("s_mov_b64 exec, s[24:25]\ns_waitcnt vmcnt(0)")
    for i in range(8):
        for j in range(5):
            a(f"v_lshlrev_b32 v{64+10*i+2*j}, 16, v{16+5*i+j}\nv_and_b32 v{64+10*i+2*j+1}, 0xffff0000, v{16+5*i+j}")
    def reduce8(base):
        for k in (1,2,4,8,16,32):
            a(f"v_xor_b32 v6, {k}, v2\nv_lshlrev_b32 v6, 2, v6")
            for i in range(8): a(f"ds_bpermute_b32 v{8+i}, v6, v{base+i}")
            a("s_waitcnt lgkmcnt(0)")
            for i in range(8): a(f"v_add_f32 v{base+i}, v{base+i}, v{8+i}")
    for i in range(8):
        a(f"v_add_f32 v{150+i}, v{64+10*i}, v{64+10*i+1}")
        for j in range(2,10): a(f"v_add_f32 v{150+i}, v{150+i}, v{64+10*i+j}")
    reduce8(150)
    a("s_mov_b32 s26, 0x3ae38e39")
    for i in range(8): a(f"v_mul_f32 v{150+i}, s26, v{150+i}")
    for i in range(8):
        a(f"v_mov_b32 v{160+i}, 0")
        for j in range(10):
            a(f"v_sub_f32 v7, v{64+10*i+j}, v{150+i}")
            if j >= 8: a(f"v_cndmask_b32 v7, 0, v7, s[22:23]")
            a(f"v_fmac_f32 v{160+i}, v7, v7")
    reduce8(160)
    for i in range(8):
        a(f"v_mul_f32 v{160+i}, s26, v{160+i}")
        bf16_rne(a, 150+i, 150+i, 7)
        bf16_rne(a, 160+i, 160+i, 7)
        a(f"v_add_f32 v{160+i}, 0x3727c5ac, v{160+i}")
        bf16_rne(a, 160+i, 160+i, 7)
        a(f"v_sqrt_f32 v{160+i}, v{160+i}\ns_nop 0")
        bf16_rne(a, 160+i, 160+i, 7)
        a(f"v_rcp_f32 v{170+i}, v{160+i}\ns_nop 0")
    a("v_mul_u32_u24 v8, 1168, v1\nv_lshlrev_b32 v8, 3, v8\nv_lshl_add_u32 v8, v2, 2, v8")
    for i in range(8):
        for j in range(10):
            r = 64+10*i+j
            a(f"v_sub_f32 v{r}, v{r}, v{150+i}")
            bf16_rne(a, r, r, 7)
            a(f"v_mul_f32 v7, v{r}, v{170+i}\nv_fma_f32 v{r}, -v7, v{160+i}, v{r}\nv_fma_f32 v{r}, v{r}, v{170+i}, v7")
        for j in range(5):
            a(f"v_cvt_pk_bf16_f32 v{16+5*i+j}, v{64+10*i+2*j}, v{64+10*i+2*j+1}")
    for i in range(8):
        for j in range(4):
            a(f"ds_write_b32 v8, v{16+5*i+j} offset:{1168*i+256*j}")
    a("s_mov_b64 exec, s[22:23]")
    for i in range(8):
        a(f"ds_write_b32 v8, v{16+5*i+4} offset:{1168*i+1024}")
    a("s_mov_b64 exec, s[24:25]\ns_waitcnt lgkmcnt(0)\ns_barrier")
    a("""v_and_b32 v9, 31, v0
v_mul_u32_u24 v9, 1168, v9
v_lshrrev_b32 v10, 5, v0
v_lshl_add_u32 v9, v10, 4, v9
v_lshlrev_b32 v10, 4, v0
s_mul_i32 s27, s2, 36864""")
    for q in range(9): a(f"ds_read_b128 v[{100+4*q}:{103+4*q}], v9 offset:{128*q}")
    for q in range(9):
        a(f"s_waitcnt lgkmcnt({8-q})\nbuffer_store_dwordx4 v[{100+4*q}:{103+4*q}], v10, s[12:15], s27 offen\ns_add_u32 s27, s27, 4096")
    for p in range(3):
        a(f"v_add_u32 v9, {256*p}, v0")
        if p == 2: a("v_cmp_gt_u32 vcc, 576, v9\ns_and_saveexec_b64 s[24:25], vcc")
        a("v_lshlrev_b32 v10, 1, v9")
        for r in range(32): a(f"ds_read_u16 v{16+r}, v10 offset:{1168*r}")
        a("s_waitcnt lgkmcnt(0)")
        for r in range(16): a(f"v_lshl_or_b32 v{64+r}, v{16+2*r+1}, 16, v{16+2*r}")
        a("v_mul_u32_u24 v11, 5120, v9\ns_mul_i32 s27, s2, 80\nv_add_u32 v11, s27, v11")
        for q in range(4): a(f"buffer_store_dwordx4 v[{64+4*q}:{64+4*q+3}], v11, s[16:19], 0 offen offset:{16*q}")
        a("s_nop 1")
    a("s_branch K1_END")
    a("""K1_KGEN:
s_load_dwordx8 s[8:15], s[0:1], 8
s_load_dwordx4 s[16:19], s[0:1], 40
s_load_dwordx2 s[20:21], s[0:1], 56
s_sub_u32 s3, s2, 64
s_waitcnt lgkmcnt(0)
s_lshl_b32 s22, s3, 8
v_lshlrev_b32 v1, 1, v0
v_add_u32 v1, s22, v1
v_cmp_gt_u32 vcc, 128, v0
s_and_saveexec_b64 s[24:25], vcc
global_load_ushort v2, v1, s[8:9]
global_load_ushort v3, v1, s[10:11]
global_load_ushort v4, v1, s[12:13]
global_load_ushort v5, v1, s[14:15]
global_load_ushort v6, v1, s[16:17]
global_load_ushort v7, v1, s[18:19]
s_lshl_b32 s23, s3, 1
v_mov_b32 v8, s23
global_load_ushort v8, v8, s[20:21]
s_waitcnt vmcnt(0)
v_lshlrev_b32 v2, 16, v2
v_lshlrev_b32 v3, 16, v3
v_lshlrev_b32 v4, 16, v4
v_lshlrev_b32 v5, 16, v5
v_lshlrev_b32 v6, 16, v6
v_lshlrev_b32 v7, 16, v7
v_lshlrev_b32 v8, 16, v8
v_mul_f32 v8, 0x3fb8aa3b, v8
v_exp_f32 v8, v8
s_nop 0""")
    bf16_rne(a, 8, 8, 9)
    a("""v_mul_f32 v2, v8, v2
v_mul_f32 v3, v8, v3
v_mul_f32 v4, v8, v4
v_mul_f32 v5, v8, v5
v_mul_f32 v10, v6, v4
v_fma_f32 v10, -v7, v5, v10
v_mul_f32 v11, v6, v5
v_fma_f32 v11, v7, v4, v11
v_mov_b32 v8, v2
v_mul_f32 v9, 0x3e22f983, v3
v_lshlrev_b32 v12, 4, v0
ds_write_b128 v12, v[8:11]
s_mov_b64 exec, s[24:25]
s_waitcnt lgkmcnt(0)
s_barrier""")
    a("""v_and_b32 v12, 63, v0
v_lshrrev_b32 v13, 6, v0
v_and_b32 v14, 15, v12
v_lshrrev_b32 v15, 4, v12
v_lshl_add_u32 v16, v13, 5, v15
v_lshlrev_b32 v16, 4, v16""")
    for t in range(8): a(f"ds_read_b128 v[{40+4*t}:{43+4*t}], v16 offset:{64*t}")
    a("""v_and_b32 v17, 7, v14
v_lshrrev_b32 v18, 3, v14
v_lshl_add_u32 v20, v18, 7, v17
v_and_b32 v17, 3, v14
v_lshlrev_b32 v17, 1, v17
v_bfe_u32 v18, v14, 2, 1
v_lshl_add_u32 v17, v18, 7, v17
v_add_u32 v17, 256, v17
v_and_b32 v18, 1, v14
v_lshlrev_b32 v18, 2, v18
v_bfe_u32 v19, v14, 1, 2
v_lshl_add_u32 v18, v19, 7, v18
v_add_u32 v18, 512, v18
v_cmp_gt_u32 vcc, 8, v14
v_cndmask_b32 v21, v18, v17, vcc
v_lshlrev_b32 v17, 7, v14
v_add_u32 v17, 1024, v17
v_mov_b32 v18, 2056
v_cmp_gt_u32 vcc, 9, v14
v_cndmask_b32 v22, v18, v17, vcc
v_lshlrev_b32 v23, 3, v14
v_cmp_gt_u32 vcc, 16, v0
s_and_saveexec_b64 s[24:25], vcc
v_lshlrev_b32 v17, 2, v14
ds_write_b32 v17, v20 offset:2048
ds_write_b32 v17, v21 offset:2112
ds_write_b32 v17, v22 offset:2176
v_mov_b32 v18, 0
v_mov_b32 v19, 0
ds_write_b32 v18, v19 offset:25104
s_mov_b64 exec, s[24:25]
v_cvt_f32_u32 v20, v20
v_cvt_f32_u32 v21, v21
v_cvt_f32_u32 v22, v22
v_cvt_f32_u32 v23, v23
s_waitcnt lgkmcnt(0)""")
    for t in range(8):
        ar,ai,wr,wi = 40+4*t,41+4*t,42+4*t,43+4*t
        T=lambda e,k: 80+6*e+k
        for e in range(4): a(f"v_mul_f32 v{T(e,0)}, v{ar}, v{20+e}\nv_mul_f32 v{T(e,1)}, v{ai}, v{20+e}")
        for e in range(4): a(f"v_mul_f32 v{T(e,0)}, 0x3fb8aa3b, v{T(e,0)}\nv_fract_f32 v{T(e,1)}, v{T(e,1)}")
        for e in range(4): a(f"v_exp_f32 v{T(e,0)}, v{T(e,0)}\nv_sin_f32 v{T(e,2)}, v{T(e,1)}\nv_cos_f32 v{T(e,1)}, v{T(e,1)}")
        for e in range(4): a(f"v_mul_f32 v{T(e,1)}, v{T(e,0)}, v{T(e,1)}\nv_mul_f32 v{T(e,2)}, v{T(e,0)}, v{T(e,2)}")
        for e in range(3):
            a(f"""v_mul_f32 v{T(e,3)}, v{wi}, v{T(e,2)}
v_fma_f32 v{T(e,3)}, v{wr}, v{T(e,1)}, -v{T(e,3)}
v_mul_f32 v{T(e,4)}, v{wi}, v{T(e,1)}
v_fma_f32 v{T(e,4)}, -v{wr}, v{T(e,2)}, -v{T(e,4)}""")
        a("s_nop 1")
        for e in range(3):
            c = "0" if t==0 else f"v[{24+4*e}:{27+4*e}]"
            a(f"v_mfma_f32_16x16x4_f32 v[{24+4*e}:{27+4*e}], v{T(e,3)}, v{T(3,1)}, {c}")
        for e in range(3):
            a(f"v_mfma_f32_16x16x4_f32 v[{24+4*e}:{27+4*e}], v{T(e,4)}, v{T(3,2)}, v[{24+4*e}:{27+4*e}]")
        a("s_nop 1")
    a("""s_nop 7
s_nop 7
v_mul_u32_u24 v17, 3072, v13
v_lshl_add_u32 v17, v12, 4, v17
ds_write_b128 v17, v[24:27] offset:4096
ds_write_b128 v17, v[28:31] offset:5120
ds_write_b128 v17, v[32:35] offset:6144
s_waitcnt lgkmcnt(0)
s_barrier
v_cmp_gt_u32 vcc, 192, v0
s_and_saveexec_b64 s[24:25], vcc
v_lshlrev_b32 v17, 10, v13
v_lshl_add_u32 v17, v12, 4, v17
ds_read_b128 v[24:27], v17 offset:4096
ds_read_b128 v[28:31], v17 offset:7168
ds_read_b128 v[32:35], v17 offset:10240
ds_read_b128 v[36:39], v17 offset:13312
v_lshlrev_b32 v18, 6, v13
v_lshl_add_u32 v18, v15, 4, v18
ds_read_b128 v[40:43], v18 offset:2048
v_lshlrev_b32 v19, 3, v14
s_waitcnt lgkmcnt(0)""")
    for r in range(4):
        a(f"""v_add_f32 v{24+r}, v{24+r}, v{28+r}
v_add_f32 v{32+r}, v{32+r}, v{36+r}
v_add_f32 v{24+r}, v{24+r}, v{32+r}
v_add_u32 v{40+r}, v{40+r}, v19
v_lshlrev_b32 v{40+r}, 2, v{40+r}
ds_write_b32 v{40+r}, v{24+r} offset:16384""")
    a("""s_mov_b64 exec, s[24:25]
s_waitcnt lgkmcnt(0)
s_barrier""")
    srd(a, 8, 4, KR, 576*KSZ)
    a(f"s_mul_i32 s22, s3, {KSZ}\ns_mov_b32 s26, 0\nv_mov_b32 v60, v0\nK1_EX:")
    a("v_lshlrev_b32 v1, 3, v60\nv_sub_u32 v1, 2080, v1")
    for u in range(11):
        a(f"v_subrev_u32 v2, {u}, v1\nv_cvt_f32_u32 v4, v2")
        bf16_rne(a, 4, 4, 3)
        a(f"v_cvt_u32_f32 v4, v4\nv_mov_b32 v5, 2180\nv_cmp_gt_u32 vcc, 2048, v2\nv_cndmask_b32 v4, v5, v4, vcc\nv_lshlrev_b32 v6, 2, v4\nds_read_b32 v{16+u}, v6 offset:16384")
    a("s_waitcnt lgkmcnt(0)")
    for u in range(11):
        bf16_rne(a, 28+u, 16+u, 3)
        a(f"v_sub_f32 v{16+u}, v{16+u}, v{28+u}")
    a("v_lshlrev_b32 v1, 4, v60")
    for h,b in ((0,28),(1,16)):
        for sg in range(4):
            for m in range(4): a(f"v_cvt_pk_bf16_f32 v{40+m}, v{b+sg+2*m}, v{b+sg+2*m+1}")
            a(f"v_add_u32 v2, {(h*4+sg)*KP}, v1\nbuffer_store_dwordx4 v[40:43], v2, s[8:11], s22 offen\ns_nop 1")
    a("""s_cmp_lg_u32 s26, 0
s_cbranch_scc1 K1_END
s_mov_b32 s26, 1
v_add_u32 v60, 256, v0
v_cmp_gt_u32 vcc, 16, v0
s_and_saveexec_b64 s[24:25], vcc
s_cbranch_execz K1_END
s_branch K1_EX""")
    a("""K1_TR:
s_load_dwordx2 s[6:7], s[0:1], 80
s_load_dwordx2 s[28:29], s[0:1], 96
s_waitcnt lgkmcnt(0)
s_sub_u32 s3, s2, 640
s_cmp_ge_u32 s3, 648
s_cbranch_scc1 K1_TR2
s_mul_hi_u32 s20, s3, 0x38e38e4
s_mul_i32 s21, s20, 72
s_sub_u32 s21, s3, s21
s_mov_b32 s22, 9216
s_mov_b32 s23, 1152""")
    srd(a, 8, 6, 0, D*F*2)
    srd(a, 12, 4, W1T, D*F*2)
    a("""s_branch K1_TR3
K1_TR2:
s_sub_u32 s3, s3, 648
s_mul_hi_u32 s20, s3, 0x1c71c71d
s_mul_i32 s21, s20, 9
s_sub_u32 s21, s3, s21
s_mov_b32 s22, 1152
s_mov_b32 s23, 9472""")
    srd(a, 8, 28, 0, D*F*2)
    srd(a, 12, 4, W2T, D*PA)
    a("""K1_TR3:
v_lshrrev_b32 v1, 3, v0
v_and_b32 v2, 7, v0
s_lshl_b32 s24, s20, 6
s_lshl_b32 s25, s21, 6
v_add_u32 v3, s24, v1
v_mul_lo_u32 v3, v3, s22
v_lshlrev_b32 v4, 4, v2
s_lshl_b32 s26, s25, 1
v_add3_u32 v3, v3, v4, s26
s_lshl_b32 s27, s22, 5
v_add_u32 v5, s27, v3
buffer_load_dwordx4 v[8:11], v3, s[8:11], 0 offen
buffer_load_dwordx4 v[12:15], v5, s[8:11], 0 offen
v_mul_u32_u24 v6, 144, v1
v_add_u32 v6, v6, v4
s_waitcnt vmcnt(0)
ds_write_b128 v6, v[8:11]
ds_write_b128 v6, v[12:15] offset:4608
s_waitcnt lgkmcnt(0)
s_barrier
v_lshlrev_b32 v6, 1, v1
v_mul_u32_u24 v7, 1152, v2
v_add_u32 v6, v6, v7""")
    for p in range(2):
        for r in range(8): a(f"ds_read_u16 v{16+r}, v6 offset:{144*r+64*p}")
        a("s_waitcnt lgkmcnt(0)")
        for r in range(4): a(f"v_lshl_or_b32 v{8+r}, v{16+2*r+1}, 16, v{16+2*r}")
        a(f"""v_add_u32 v3, s25, v1
v_add_u32 v3, {32*p}, v3
v_mul_lo_u32 v3, v3, s23
s_lshl_b32 s26, s24, 1
v_add3_u32 v3, v3, v4, s26
buffer_store_dwordx4 v[8:11], v3, s[12:15], 0 offen
s_nop 1""")
    a("K1_END:\ns_endpgm")
    return a.text()
```

```python
from gen_common import *
from gen_v3 import *
EX = 83456
def gen_k2h():
    a = Asm()
    a(f"""k2f_kernel:
s_load_dwordx2 s[4:5], s[0:1], 120
s_mov_b32 s90, 0x7fff
s_cmp_ge_u32 s2, 256
s_cbranch_scc1 KF_END
s_waitcnt lgkmcnt(0)
s_memtime s[60:61]
s_waitcnt lgkmcnt(0)
s_and_b32 s20, s2, 7
s_lshl_b32 s20, s20, 1
s_bfe_u32 s22, s2, 0x10003
s_add_u32 s20, s20, s22
s_lshr_b32 s21, s2, 4""")
    srd(a, 8, 4, WI, 144*73728); srd(a, 12, 4, XN, L*D*2); srd(a, 28, 4, PART, 16*L*D*4); srd(a, 32, 4, B1F, F*4); srd(a, 44, 4, TB, 12288)
    a("""v_and_b32 v1, 63, v0
v_lshrrev_b32 v2, 6, v0
s_nop 0
v_readfirstlane_b32 s24, v2
v_and_b32 v3, 31, v1
v_lshrrev_b32 v4, 5, v1
s_lshl_b32 s25, s21, 7
s_lshl_b32 s26, s24, 5
s_add_u32 s26, s25, s26
v_lshlrev_b32 v7, 4, v1
s_mul_i32 s26, s26, 1152
v_add_u32 v6, s26, v7
s_mul_i32 s27, s24, 9216
s_mul_i32 s36, s20, 9
s_mul_i32 s37, s36, 73728
s_add_u32 s35, s37, 36864
s_add_u32 s37, s37, s27
s_mov_b32 s38, 0
s_mov_b32 s39, s27""")
    a.l[:] = [l.replace("s_add_u32 s35, s37, 36864","s_add_u32 s55, s37, 36864") for l in a.l]
    def dma(sg, lb):
        for g in range(3):
            a(f"s_add_u32 s40, s{lb}, {4096*g}\ns_add_u32 s41, s{sg}, {4096*g}\ns_mov_b32 m0, s40\ns_nop 0")
            for o in range(4 if g<2 else 1):
                a(f"buffer_load_dwordx4 v7, s[8:11], s41 offen offset:{1024*o} lds")
    dma(37, 39)
    a("s_lshl_b32 s48, s24, 10")
    for j in range(3):
        a(f"s_add_u32 s49, s48, {4096*j}\ns_add_u32 s40, s49, {LUT_LDS}\ns_mov_b32 m0, s40\ns_nop 0\nbuffer_load_dwordx4 v7, s[44:47], s49 offen lds")
    a(f"s_mov_b32 s50, 0x00010001\ns_mov_b32 s51, 0x000f000f\ns_mov_b32 s52, {(2*LUT_LO)*0x10001}\ns_mov_b32 s53, {(2*(LUT_LO+LUT_N-1))*0x10001}\ns_mov_b32 s54, {(2*LUT_N)*0x10001}")
    for ks in range(36):
        a(f"s_mov_b32 s49, {4096*(ks//4)}\nbuffer_load_dwordx4 v[{16+4*ks}:{19+4*ks}], v6, s[12:15], s49 offen offset:{1024*(ks%4)}")
    a(f"""v_mov_b32 v8, v7
v_lshlrev_b32 v10, 1, v7
v_add_u32 v10, 36864, v10
s_lshl_b32 s42, s36, 7
v_lshlrev_b32 v11, 4, v4
v_add_u32 v11, s42, v11
s_mul_i32 s56, s24, 18432
v_add_u32 v9, s56, v7
v_add_u32 v9, {EX}, v9
s_waitcnt vmcnt(36)
s_barrier
s_memtime s[62:63]
s_waitcnt lgkmcnt(0)
KF_L:""")
    for q in range(4): a(f"buffer_load_dwordx4 v[{232+4*q}:{235+4*q}], v11, s[32:35], 0 offen offset:{32*q}")
    a("""s_add_u32 s43, s38, 1
s_min_u32 s43, s43, 8
s_mul_i32 s43, s43, 73728
s_add_u32 s43, s43, s37
s_sub_u32 s39, 36864, s39
s_add_u32 s39, s39, s27
s_add_u32 s39, s39, s27""")
    dma(43, 39)
    def frag(i, base, off): a(f"ds_read_b128 v[{208+4*(i%4)}:{211+4*(i%4)}], v{base} offset:{off}")
    for i in range(3): frag(i, 8, 1024*i)
    for ks in range(36):
        if ks+3<36: frag(ks+3, 8, 1024*(ks+3)); a(f"s_waitcnt vmcnt({48-ks}) lgkmcnt(3)")
        else: a(f"s_waitcnt vmcnt({48-ks}) lgkmcnt({35-ks})")
        c = "0" if ks==0 else "v[192:207]"
        a(f"v_mfma_f32_32x32x16_bf16 v[192:207], v[{208+4*(ks%4)}:{211+4*(ks%4)}], v[{16+4*ks}:{19+4*ks}], {c}")
    a("s_waitcnt vmcnt(9)\ns_nop 7\ns_nop 7\ns_nop 7")
    X = LUT_LDS - 2*LUT_LO
    for p in range(8):
        r=192+2*p; b=232+2*p; t=248+4*(p%2)
        a(f"""v_cvt_pk_bf16_f32 v{t}, v{r}, v{r+1}
v_lshlrev_b32 v{r}, 16, v{t}
v_and_b32 v{r+1}, 0xffff0000, v{t}
v_pk_add_f32 v[{r}:{r+1}], v[{r}:{r+1}], v[{b}:{b+1}]
v_cvt_pk_bf16_f32 v{t}, v{r}, v{r+1}
v_lshlrev_b32 v{r}, 16, v{t}
v_and_b32 v{r+1}, 0xffff0000, v{t}
v_pk_lshlrev_b16 v{t+1}, s50, v{t}
v_pk_max_u16 v{t+1}, v{t+1}, s52
v_pk_min_u16 v{t+1}, v{t+1}, s53
v_pk_lshrrev_b16 v{t}, s51, v{t}
v_pk_mad_u16 v{t+1}, v{t}, s54, v{t+1}
v_and_b32 v{t+2}, 0xffff, v{t+1}
v_lshrrev_b32 v{t+3}, 16, v{t+1}
ds_read_u16_d16_hi v{b}, v{t+2} offset:{X}
ds_read_u16_d16_hi v{b+1}, v{t+3} offset:{X}""")
    for p in range(8):
        r=192+2*p; b=232+2*p
        a(f"s_waitcnt lgkmcnt({14-2*p})\nv_pk_mul_f32 v[{r}:{r+1}], v[{r}:{r+1}], v[{b}:{b+1}]\nv_cvt_pk_bf16_f32 v{224+p}, v{r}, v{r+1}")
    a("""ds_write_b128 v9, v[224:227]
ds_write_b128 v9, v[228:231] offset:1024
v_sub_u32 v8, v10, v8
v_add_u32 v9, 2048, v9
v_add_u32 v11, 128, v11
s_add_u32 s38, s38, 1
s_waitcnt vmcnt(0) lgkmcnt(0)
s_barrier
s_cmp_lt_u32 s38, 9
s_cbranch_scc1 KF_L
s_memtime s[64:65]
s_waitcnt lgkmcnt(0)""")
    a(f"""s_lshl_b32 s57, s24, 11
s_add_u32 s57, s57, s55
s_lshr_b32 s58, s24, 1
s_add_u32 s58, s58, 16
s_lshl_b32 s58, s58, 11
s_add_u32 s58, s58, s55
s_lshl_b32 s44, s20, 10
s_mul_i32 s59, s21, 4718592
s_add_u32 s44, s44, s59
s_lshl_b32 s59, s24, 18
s_add_u32 s59, s59, s44
v_add_u32 v12, s59, v7
s_lshr_b32 s59, s24, 1
s_add_u32 s59, s59, 16
s_lshl_b32 s59, s59, 18
s_and_b32 s66, s24, 1
s_lshl_b32 s66, s66, 17
s_add_u32 s59, s59, s66
s_add_u32 s59, s59, s44
v_add_u32 v13, s59, v7
v_add_u32 v9, {EX}, v7
v_add_u32 v14, 36864, v9""")
    NR=16
    frs=[(T,ks) for T in range(5) for ks in range(18)]
    q=[]
    def issue_load(n):
        T,ks=frs[n]
        rg=192+4*(n%NR)
        off=(ks>>1)*73728+(ks&1)*1024+(8192*T if T<4 else 0)
        a(f"s_add_u32 s67, s{57 if T<4 else 58}, {off}\nbuffer_load_dwordx4 v[{rg}:{rg+3}], v7, s[8:11], s67 offen")
        q.append(('L',n))
    for n in range(NR): issue_load(n)
    def areg(rt,ks):
        return f"a[{64*rt+4*ks}:{64*rt+4*ks+3}]" if ks<16 else f"v[{160+8*rt+4*(ks-16)}:{163+8*rt+4*(ks-16)}]"
    for rt in range(4):
        for ks in range(18):
            a(f"ds_read_b128 {areg(rt,ks)}, v{9 if rt<2 else 14} offset:{18432*(rt%2)+1024*ks}")
            if (rt*18+ks)%8==7: a("s_waitcnt lgkmcnt(4)")
    a("s_waitcnt lgkmcnt(0)")
    def stores(T):
        o=[]
        for r in range(4 if T<4 else 2):
            for g in range(4):
                rg=16+64*(T%2)+16*r+4*g
                if T<4: o.append(f"s_mov_b32 s70, {1048576*T+65536*r+16384*g}\nbuffer_store_dwordx4 v[{rg}:{rg+3}], v12, s[28:31], s70 offen")
                else: o.append(f"s_mov_b32 s70, {65536*r+16384*g}\nbuffer_store_dwordx4 v[{rg}:{rg+3}], v13, s[28:31], s70 offen")
        return o
    def wait_for(n):
        idx=[i for i,x in enumerate(q) if x==('L',n)][0]
        allow=len(q)-1-idx
        a(f"s_waitcnt vmcnt({allow})")
        del q[:idx+1]
    def tile(T, rts, pend):
        for ks in range(18):
            n=T*18+ks
            wait_for(n)
            rg=192+4*(n%NR)
            for i,rt in enumerate(rts):
                d=16+64*(T%2)+16*i
                c="0" if ks==0 else f"v[{d}:{d+15}]"
                a(f"v_mfma_f32_32x32x16_bf16 v[{d}:{d+15}], v[{rg}:{rg+3}], {areg(rt,ks)}, {c}")
            if n+NR<len(frs): issue_load(n+NR)
            if pend and ks>=1:
                a(pend.pop(0)); q.append(('S',0))
        while pend: a(pend.pop(0)); q.append(('S',0))
    pend=[]
    for T in range(4):
        tile(T,[0,1,2,3],pend); pend=stores(T)
    a("s_and_b32 s66, s24, 1\ns_cmp_eq_u32 s66, 1\ns_cbranch_scc1 KF_H1")
    q0=list(q); p0=list(pend)
    tile(4,[0,1],pend); a("s_branch KF_H2\nKF_H1:")
    q[:]=q0
    tile(4,[2,3],p0); a("KF_H2:\ns_nop 7\ns_nop 7\ns_nop 7")
    for s in stores(4): a(s)
    a(f"""s_waitcnt vmcnt(0)
s_memtime s[66:67]
s_waitcnt lgkmcnt(0)
s_cmp_ge_u32 s2, 6
s_cbranch_scc1 KF_END
s_and_b32 s70, s2, 1
s_cmp_lg_u32 s70, 0
s_cbranch_scc1 KF_END
s_lshr_b32 s71, s2, 1
s_sub_u32 s62, s62, s60
s_sub_u32 s64, s64, s60
s_sub_u32 s66, s66, s60
s_lshl_b32 s68, s71, 4
s_add_u32 s68, s68, {ST}
v_mov_b32 v1, s68
v_mov_b32 v2, s62
v_mov_b32 v3, s64
v_mov_b32 v4, s66
s_getreg_b32 s69, hwreg(HW_REG_XCC_ID)
v_mov_b32 v5, s69
global_store_dwordx4 v1, v[2:5], s[4:5]""")
    a("KF_END:\ns_endpgm")
    return a.text()
```

```python
from gen_common import *
import gen_k1d as gen_k1
from gen_conv3 import gen_k3c, gen_k4t
from gen_k2j import gen_k2h as gen_k2g
from gen_v3 import *
k1=gen_k1.gen_k1()
i=k1.index("K1_TR:"); j=k1.index("K1_END:")
a=Asm(); img_role(a)
a("s_branch K1_END"); tab_role(a,3232)
k1=k1[:i]+a.text()+k1[j:]
k1=k1.replace("s_cmp_ge_u32 s2, 1936","s_cmp_ge_u32 s2, 3251\n    s_cbranch_scc1 K1_END\n    s_cmp_ge_u32 s2, 3232\n    s_cbranch_scc1 K1_TAB\n    s_cmp_ge_u32 s2, 3251")
k3=gen_k3c()
ref=open(f"cdna_kernels/{NAME}.s.ref").read().split("\n")
out="\n".join(l for l in ref if l.startswith(";") and "@launch" not in l)+"\n"
out+="; @launch kernel=k1_kernel grid=(3251,1,1) block=(256,1,1) lds=40960\n"
out+="; @launch kernel=k2f_kernel grid=(256,1,1) block=(256,1,1) lds=157184\n"
out+="; @launch kernel=k3c_kernel grid=(1728,1,1) block=(256,1,1) lds=47104\n"
out+="; @launch kernel=k4f_kernel grid=(288,1,1) block=(256,1,1) lds=9216\n"
out+='.amdgcn_target "amdgcn-amd-amdhsa--gfx950"\n.text\n'
def stamp(t, n, idx):
    st=f"""    s_cmp_lg_u32 s2, 0
    s_cbranch_scc1 STK{idx}
    s_load_dwordx2 s[96:97], s[0:1], 120
    s_memrealtime s[98:99]
    s_waitcnt lgkmcnt(0)
    v_mov_b32 v1, {ST+48+4*idx}
    v_mov_b32 v2, s98
    global_store_dword v1, v2, s[96:97]
STK{idx}:
"""
    return t.replace(n+":\n", n+":\n"+st, 1)
for idx,(n,t) in enumerate((("k1_kernel",k1),("k2f_kernel",gen_k2g()),("k3c_kernel",k3),("k4f_kernel",gen_k4t()))):
    t=stamp(t,n,idx)
    out+=f".globl {n}\n.p2align 8\n.type {n},@function\n"+t
out+='.section .rodata,"a"\n'
for n,v,ac in (("k1_kernel",180,180),("k2f_kernel",512,256),("k3c_kernel",96,96),("k4f_kernel",64,64)):
    out+=".p2align 6\n"+kd(n,v,102,ac)
import sys
open(sys.argv[1] if len(sys.argv)>1 else f"cdna_kernels/{NAME}.s","w").write(out)
```

```python
from gen_common import *
from gen_v3 import *
EX = 83456
class Q:
    def __init__(s, a, name, mx): s.a=a; s.q=[]; s.n=name; s.mx=mx
    def push(s, tag): s.q.append(tag)
    def wait(s, tag):
        if tag not in s.q: return
        idx=max(i for i,x in enumerate(s.q) if x==tag)
        allow=min(len(s.q)-1-idx, s.mx)
        s.a(f"s_waitcnt {s.n}({allow})")
        s.q[:]=s.q[len(s.q)-allow:] if allow else []
    def all(s):
        if s.q: s.a(f"s_waitcnt {s.n}(0)"); s.q[:]=[]

def gen_k2k(SIDE=4, RA=5):
    a = Asm()
    a(f"""k2f_kernel:
s_load_dwordx2 s[4:5], s[0:1], 120
s_mov_b32 s90, 0x7fff
s_cmp_ge_u32 s2, 256
s_cbranch_scc1 KF_END
s_waitcnt lgkmcnt(0)
s_memtime s[60:61]
s_waitcnt lgkmcnt(0)
s_and_b32 s20, s2, 7
s_lshl_b32 s20, s20, 1
s_bfe_u32 s22, s2, 0x10003
s_add_u32 s20, s20, s22
s_lshr_b32 s21, s2, 4""")
    srd(a, 8, 4, WI, 144*73728); srd(a, 12, 4, XN, L*D*2); srd(a, 28, 4, PART, 16*L*D*4); srd(a, 32, 4, B1F, F*4); srd(a, 44, 4, TB, 12288)
    a(f"""v_and_b32 v1, 63, v0
v_lshrrev_b32 v2, 6, v0
s_nop 0
v_readfirstlane_b32 s24, v2
v_lshrrev_b32 v4, 5, v1
v_lshlrev_b32 v7, 4, v1
s_lshr_b32 s22, s24, 1
s_and_b32 s23, s24, 1
s_lshl_b32 s25, s21, 2
s_lshl_b32 s26, s22, 1
s_add_u32 s26, s25, s26
s_mul_i32 s26, s26, 36864
v_add_u32 v6, s26, v7
s_mul_i32 s27, s24, 9216
s_mul_i32 s36, s20, 9
s_mul_i32 s37, s36, 73728
s_add_u32 s55, s37, 36864
s_add_u32 s38, s37, s27
s_add_u32 s38, s38, {8*73728}
s_mul_i32 s39, s22, 73728
s_add_u32 s37, s37, s39
s_mul_i32 s39, s23, 9216
s_add_u32 s37, s37, s39
s_mul_i32 s39, s23, 18432
v_add_u32 v8, s39, v7
s_lshl_b32 s42, s36, 7
v_lshlrev_b32 v10, 4, v4
v_add_u32 v10, s42, v10
s_lshl_b32 s39, s23, 7
v_add_u32 v11, s39, v10
v_add_u32 v10, 1024, v10
s_mul_i32 s39, s22, 36864
s_lshl_b32 s40, s23, 11
s_add_u32 s39, s39, s40
s_add_u32 s39, s39, {EX}
v_add_u32 v9, s39, v7
s_mul_i32 s39, s24, 18432
s_add_u32 s39, s39, {EX+16384}
v_add_u32 v14, s39, v7""")
    vq=Q(a,"vmcnt",63); lq=Q(a,"lgkmcnt",15)
    def dma(s):
        sg = 38 if s==8 else 37
        go = 0 if s==8 else (s>>1)*2*73728+(s&1)*18432
        for g in range(3):
            a(f"s_add_u32 s40, s27, {36864*(s&1)+4096*g}\ns_add_u32 s41, s{sg}, {go+4096*g}\ns_mov_b32 m0, s40\ns_nop 0")
            for o in range(4 if g<2 else 1):
                a(f"buffer_load_dwordx4 v7, s[8:11], s41 offen offset:{1024*o} lds"); vq.push(('D',s))
    def bias(P):
        for q in range(4):
            rg=136+16*(P&1)+4*q
            if P<4: a(f"buffer_load_dwordx4 v[{rg}:{rg+3}], v11, s[32:35], 0 offen offset:{256*P+32*q}")
            else: a(f"buffer_load_dwordx4 v[{rg}:{rg+3}], v10, s[32:35], 0 offen offset:{32*q}")
            vq.push(('B',P))
    def X(r,ks):
        m=36*r+ks
        return f"a[{4*m}:{4*m+3}]" if m<64 else f"v[{16+4*(m-64)}:{19+4*(m-64)}]"
    dma(0)
    a("s_lshl_b32 s48, s24, 10")
    for j in range(3):
        a(f"s_add_u32 s49, s48, {4096*j}\ns_add_u32 s40, s49, {LUT_LDS}\ns_mov_b32 m0, s40\ns_nop 0\nbuffer_load_dwordx4 v7, s[44:47], s49 offen lds"); vq.push(('D',0))
    a(f"s_mov_b32 s50, 0x00010001\ns_mov_b32 s51, 0x000f000f\ns_mov_b32 s52, {(2*LUT_LO)*0x10001}\ns_mov_b32 s53, {(2*(LUT_LO+LUT_N-1))*0x10001}\ns_mov_b32 s54, {(2*LUT_N)*0x10001}")
    for ks in range(36):
        if ks==8: dma(1)
        for r in range(2):
            o=36864*r+1024*ks
            a(f"s_mov_b32 s49, {o&~4095}\nbuffer_load_dwordx4 {X(r,ks)}, v6, s[12:15], s49 offen offset:{o&4095}"); vq.push(('X',ks))
    for r in range(16): a(f"v_mov_b32 v{168+r}, 0")
    vq.wait(('D',0))
    a("s_barrier\ns_memtime s[62:63]\ns_waitcnt lgkmcnt(0)")
    XL = LUT_LDS - 2*LUT_LO
    def mish_items(P):
        st=P&1; nu=16 if P<4 else 8
        F=[];S=[]
        for p in range(nu):
            r=48+32*st+2*p; b=136+16*st+2*(p&7); t=184+4*(p%2); u=168+2*(p%8)
            f=[('v',x) for x in f"""v_cvt_pk_bf16_f32 v{t}, v{r}, v{r+1}
v_lshlrev_b32 v{r}, 16, v{t}
v_and_b32 v{r+1}, 0xffff0000, v{t}
v_pk_add_f32 v[{r}:{r+1}], v[{r}:{r+1}], v[{b}:{b+1}]
v_cvt_pk_bf16_f32 v{t}, v{r}, v{r+1}
v_lshlrev_b32 v{r}, 16, v{t}
v_and_b32 v{r+1}, 0xffff0000, v{t}
v_pk_lshlrev_b16 v{t+1}, s50, v{t}
v_pk_max_u16 v{t+1}, v{t+1}, s52
v_pk_min_u16 v{t+1}, v{t+1}, s53
v_pk_lshrrev_b16 v{t}, s51, v{t}
v_pk_mad_u16 v{t+1}, v{t}, s54, v{t+1}
v_and_b32 v{t+2}, 0xffff, v{t+1}
v_lshrrev_b32 v{t+3}, 16, v{t+1}""".split("\n")]
            f.append(('ds',f"ds_read_u16_d16_hi v{u}, v{t+2} offset:{XL}",('U',P,p)))
            f.append(('ds',f"ds_read_u16_d16_hi v{u+1}, v{t+3} offset:{XL}",('U',P,p)))
            F.append(f)
            d=48+32*st+8*(p>>2)+(p&3)
            s=[('w',('U',P,p)),('v',f"v_pk_mul_f32 v[{r}:{r+1}], v[{r}:{r+1}], v[{u}:{u+1}]"),('v',f"v_cvt_pk_bf16_f32 v{d}, v{r}, v{r+1}")]
            if p&3==3:
                g=48+32*st+8*(p>>2)
                if P<4: s.append(('ds',f"ds_write_b128 v9, v[{g}:{g+3}] offset:{4096*P+18432*(p>>3)+1024*((p>>2)&1)}",('W',P)))
                else: s.append(('ds',f"ds_write_b128 v14, v[{g}:{g+3}] offset:{1024*((p>>2)&1)}",('W',P)))
            S.append(s)
        out=[('wb',P)]
        LAG=4
        for p in range(nu+LAG):
            if p<nu: out+=F[p]
            if p>=LAG: out+=S[p-LAG]
        return out
    def emit(items, n):
        k=0
        while items and k<n:
            it=items.pop(0)
            if it[0]=='v': a(it[1]); k+=1
            elif it[0]=='ds': a(it[1]); lq.push(it[2]); k+=1
            elif it[0]=='w': lq.wait(it[1])
            elif it[0]=='wb': vq.wait(('B',it[1]))
    side=[]
    def ring(n): return 112+4*(n%6)
    for s in range(8):
        P,kh=s>>1,s&1
        if s>=1: dma(s+1)
        if kh==0: bias(P)
        def fr(n): a(f"ds_read_b128 v[{ring(n)}:{ring(n)+3}], v8 offset:{36864*(s&1)+1024*n}"); lq.push(('F',s,n))
        for n in range(RA): fr(n)
        if kh==0 and P>0:
            side=mish_items(P-1); emit(side, 24)
        for n in range(18):
            if n+RA<18: fr(n+RA)
            ks=18*kh+n
            vq.wait(('X',ks)); lq.wait(('F',s,n))
            for r in range(2):
                d=48+32*(P&1)+16*r
                c="0" if ks==0 else f"v[{d}:{d+15}]"
                a(f"v_mfma_f32_32x32x16_bf16 v[{d}:{d+15}], v[{ring(n)}:{ring(n)+3}], {X(r,ks)}, {c}")
                emit(side, SIDE)
        if kh==1: emit(side, 10000)
        vq.wait(('D',s+1))
        a("s_barrier")
    bias(4)
    a(f"""s_lshl_b32 s57, s24, 11
s_add_u32 s57, s57, s55
s_lshr_b32 s58, s24, 1
s_add_u32 s58, s58, 16
s_lshl_b32 s58, s58, 11
s_add_u32 s58, s58, s55
s_lshl_b32 s44, s20, 10
s_mul_i32 s59, s21, 4718592
s_add_u32 s44, s44, s59
s_lshl_b32 s59, s24, 18
s_add_u32 s59, s59, s44
v_add_u32 v12, s59, v7
s_lshr_b32 s59, s24, 1
s_add_u32 s59, s59, 16
s_lshl_b32 s59, s59, 18
s_and_b32 s66, s24, 1
s_lshl_b32 s66, s66, 17
s_add_u32 s59, s59, s66
s_add_u32 s59, s59, s44
v_add_u32 v13, s59, v7""")
    NR=16
    frs=[(T,ks) for T in range(5) for ks in range(18)]
    def issue_load(n):
        T,ks=frs[n]
        rg=192+4*(n%NR)
        off=(ks>>1)*73728+(ks&1)*1024+(8192*T if T<4 else 0)
        a(f"s_add_u32 s67, s{57 if T<4 else 58}, {off}\nbuffer_load_dwordx4 v[{rg}:{rg+3}], v7, s[8:11], s67 offen")
        vq.push(('L',n))
    for n in range(NR): issue_load(n)
    a("s_cmp_eq_u32 s23, 1\ns_cbranch_scc1 KF_J1")
    sv=(list(vq.q),list(lq.q))
    for j in range(2):
        vq.q[:],lq.q[:]=list(sv[0]),list(sv[1])
        if j: a("KF_J1:")
        def fr(n): a(f"ds_read_b128 v[{ring(n)}:{ring(n)+3}], v7 offset:{1024*n}"); lq.push(('F',8,n))
        for n in range(RA): fr(n)
        side=mish_items(3); emit(side,24)
        for n in range(36):
            if n+RA<36: fr(n+RA)
            lq.wait(('F',8,n))
            c="0" if n==0 else "v[48:63]"
            a(f"v_mfma_f32_32x32x16_bf16 v[48:63], v[{ring(n)}:{ring(n)+3}], {X(j,n)}, {c}")
            emit(side, 2*SIDE)
        emit(side,10000)
        if j==0: a("s_branch KF_J2")
    a("KF_J2:\ns_nop 7\ns_nop 7\ns_nop 7")
    side=mish_items(4); emit(side,10000)
    lq.all()
    a(f"""s_barrier
s_memtime s[64:65]
s_waitcnt lgkmcnt(0)
v_add_u32 v9, {EX}, v7
v_add_u32 v14, 36864, v9""")
    def areg(rt,ks):
        return f"a[{64*rt+4*ks}:{64*rt+4*ks+3}]" if ks<16 else f"v[{160+8*rt+4*(ks-16)}:{163+8*rt+4*(ks-16)}]"
    for rt in range(4):
        for ks in range(18):
            a(f"ds_read_b128 {areg(rt,ks)}, v{9 if rt<2 else 14} offset:{18432*(rt%2)+1024*ks}")
            if (rt*18+ks)%8==7: a("s_waitcnt lgkmcnt(4)")
    a("s_waitcnt lgkmcnt(0)")
    def stores(T):
        o=[]
        for r in range(4 if T<4 else 2):
            for g in range(4):
                rg=16+64*(T%2)+16*r+4*g
                if T<4: o.append(f"s_mov_b32 s70, {1048576*T+65536*r+16384*g}\nbuffer_store_dwordx4 v[{rg}:{rg+3}], v12, s[28:31], s70 offen")
                else: o.append(f"s_mov_b32 s70, {65536*r+16384*g}\nbuffer_store_dwordx4 v[{rg}:{rg+3}], v13, s[28:31], s70 offen")
        return o
    def tile(T, rts, pend):
        for ks in range(18):
            n=T*18+ks
            vq.wait(('L',n))
            rg=192+4*(n%NR)
            for i,rt in enumerate(rts):
                d=16+64*(T%2)+16*i
                c="0" if ks==0 else f"v[{d}:{d+15}]"
                a(f"v_mfma_f32_32x32x16_bf16 v[{d}:{d+15}], v[{rg}:{rg+3}], {areg(rt,ks)}, {c}")
            if n+NR<len(frs): issue_load(n+NR)
            if pend and ks>=1:
                a(pend.pop(0)); vq.push(('S',0))
        while pend: a(pend.pop(0)); vq.push(('S',0))
    pend=[]
    for T in range(4):
        tile(T,[0,1,2,3],pend); pend=stores(T)
    a("s_and_b32 s66, s24, 1\ns_cmp_eq_u32 s66, 1\ns_cbranch_scc1 KF_H1")
    q0=list(vq.q); p0=list(pend)
    tile(4,[0,1],pend); a("s_branch KF_H2\nKF_H1:")
    vq.q[:]=q0
    tile(4,[2,3],p0); a("KF_H2:\ns_nop 7\ns_nop 7\ns_nop 7")
    for s in stores(4): a(s)
    a(f"""s_waitcnt vmcnt(0)
s_memtime s[66:67]
s_waitcnt lgkmcnt(0)
s_cmp_ge_u32 s2, 6
s_cbranch_scc1 KF_END
s_and_b32 s70, s2, 1
s_cmp_lg_u32 s70, 0
s_cbranch_scc1 KF_END
s_lshr_b32 s71, s2, 1
s_sub_u32 s62, s62, s60
s_sub_u32 s64, s64, s60
s_sub_u32 s66, s66, s60
s_lshl_b32 s68, s71, 4
s_add_u32 s68, s68, {ST}
v_mov_b32 v1, s68
v_mov_b32 v2, s62
v_mov_b32 v3, s64
v_mov_b32 v4, s66
s_getreg_b32 s69, hwreg(HW_REG_XCC_ID)
v_mov_b32 v5, s69
global_store_dwordx4 v1, v[2:5], s[4:5]""")
    a("KF_END:\ns_endpgm")
    return a.text()
```

```python
from gen_common import *
import gen_k1d as gen_k1
from gen_conv3 import gen_k3c, gen_k4t
from gen_k2k import gen_k2k as gen_k2g
from gen_v3 import *
k1=gen_k1.gen_k1()
i=k1.index("K1_TR:"); j=k1.index("K1_END:")
a=Asm(); img_role(a)
a("s_branch K1_END"); tab_role(a,3232)
k1=k1[:i]+a.text()+k1[j:]
k1=k1.replace("s_cmp_ge_u32 s2, 1936","s_cmp_ge_u32 s2, 3251\n    s_cbranch_scc1 K1_END\n    s_cmp_ge_u32 s2, 3232\n    s_cbranch_scc1 K1_TAB\n    s_cmp_ge_u32 s2, 3251")
k3=gen_k3c()
ref=open(f"cdna_kernels/{NAME}.s.ref").read().split("\n")
out="\n".join(l for l in ref if l.startswith(";") and "@launch" not in l)+"\n"
out+="; @launch kernel=k1_kernel grid=(3251,1,1) block=(256,1,1) lds=40960\n"
out+="; @launch kernel=k2f_kernel grid=(256,1,1) block=(256,1,1) lds=157184\n"
out+="; @launch kernel=k3c_kernel grid=(1728,1,1) block=(256,1,1) lds=47104\n"
out+="; @launch kernel=k4f_kernel grid=(288,1,1) block=(256,1,1) lds=9216\n"
out+='.amdgcn_target "amdgcn-amd-amdhsa--gfx950"\n.text\n'
def stamp(t, n, idx):
    st=f"""    s_cmp_lg_u32 s2, 0
    s_cbranch_scc1 STK{idx}
    s_load_dwordx2 s[96:97], s[0:1], 120
    s_memrealtime s[98:99]
    s_waitcnt lgkmcnt(0)
    v_mov_b32 v1, {ST+48+4*idx}
    v_mov_b32 v2, s98
    global_store_dword v1, v2, s[96:97]
STK{idx}:
"""
    return t.replace(n+":\n", n+":\n"+st, 1)
for idx,(n,t) in enumerate((("k1_kernel",k1),("k2f_kernel",gen_k2g()),("k3c_kernel",k3),("k4f_kernel",gen_k4t()))):
    t=stamp(t,n,idx)
    out+=f".globl {n}\n.p2align 8\n.type {n},@function\n"+t
out+='.section .rodata,"a"\n'
for n,v,ac in (("k1_kernel",180,180),("k2f_kernel",512,256),("k3c_kernel",96,96),("k4f_kernel",64,64)):
    out+=".p2align 6\n"+kd(n,v,102,ac)
import sys
open(sys.argv[1] if len(sys.argv)>1 else f"cdna_kernels/{NAME}.s","w").write(out)
```

```python
from gen_common import *
from gen_v3 import *
EX = 83456
class Q:
    def __init__(s, a, name, mx): s.a=a; s.q=[]; s.n=name; s.mx=mx
    def push(s, tag): s.q.append(tag)
    def wait(s, tag):
        if tag not in s.q: return
        idx=max(i for i,x in enumerate(s.q) if x==tag)
        allow=min(len(s.q)-1-idx, s.mx)
        s.a(f"s_waitcnt {s.n}({allow})")
        s.q[:]=s.q[len(s.q)-allow:] if allow else []
    def all(s):
        if s.q: s.a(f"s_waitcnt {s.n}(0)"); s.q[:]=[]

def gen_k2k(SIDE=4, RA=5):
    a = Asm()
    a(f"""k2f_kernel:
s_load_dwordx2 s[4:5], s[0:1], 120
s_mov_b32 s90, 0x7fff
s_cmp_ge_u32 s2, 256
s_cbranch_scc1 KF_END
s_waitcnt lgkmcnt(0)
s_memtime s[60:61]
s_waitcnt lgkmcnt(0)
s_and_b32 s20, s2, 7
s_lshl_b32 s20, s20, 1
s_bfe_u32 s22, s2, 0x10003
s_add_u32 s20, s20, s22
s_lshr_b32 s21, s2, 4""")
    srd(a, 8, 4, WI, 144*73728); srd(a, 12, 4, XN, L*D*2); srd(a, 28, 4, PART, 16*L*D*4); srd(a, 32, 4, B1F, F*4); srd(a, 44, 4, TB, 12288)
    a(f"""v_and_b32 v1, 63, v0
v_lshrrev_b32 v2, 6, v0
s_nop 0
v_readfirstlane_b32 s24, v2
v_lshrrev_b32 v4, 5, v1
v_lshlrev_b32 v7, 4, v1
s_lshr_b32 s22, s24, 1
s_and_b32 s23, s24, 1
s_lshl_b32 s25, s21, 2
s_lshl_b32 s26, s22, 1
s_add_u32 s26, s25, s26
s_mul_i32 s26, s26, 36864
v_add_u32 v6, s26, v7
s_mul_i32 s27, s24, 9216
s_mul_i32 s36, s20, 9
s_mul_i32 s37, s36, 73728
s_add_u32 s55, s37, 36864
s_add_u32 s38, s37, s27
s_add_u32 s38, s38, {8*73728}
s_mul_i32 s39, s22, 73728
s_add_u32 s37, s37, s39
s_mul_i32 s39, s23, 9216
s_add_u32 s37, s37, s39
s_mul_i32 s39, s23, 18432
v_add_u32 v8, s39, v7
s_lshl_b32 s42, s36, 7
v_lshlrev_b32 v10, 4, v4
v_add_u32 v10, s42, v10
s_lshl_b32 s39, s23, 7
v_add_u32 v11, s39, v10
v_add_u32 v10, 1024, v10
s_mul_i32 s39, s22, 36864
s_lshl_b32 s40, s23, 11
s_add_u32 s39, s39, s40
s_add_u32 s39, s39, {EX}
v_add_u32 v9, s39, v7
s_mul_i32 s39, s24, 18432
s_add_u32 s39, s39, {EX+16384}
v_add_u32 v14, s39, v7""")
    vq=Q(a,"vmcnt",63); lq=Q(a,"lgkmcnt",15)
    def dma(s):
        sg = 38 if s==8 else 37
        go = 0 if s==8 else (s>>1)*2*73728+(s&1)*18432
        for g in range(3):
            a(f"s_add_u32 s40, s27, {36864*(s&1)+4096*g}\ns_add_u32 s41, s{sg}, {go+4096*g}\ns_mov_b32 m0, s40\ns_nop 0")
            for o in range(4 if g<2 else 1):
                a(f"buffer_load_dwordx4 v7, s[8:11], s41 offen offset:{1024*o} lds"); vq.push(('D',s))
    def bias(P):
        for q in range(4):
            rg=136+16*(P&1)+4*q
            if P<4: a(f"buffer_load_dwordx4 v[{rg}:{rg+3}], v11, s[32:35], 0 offen offset:{256*P+32*q}")
            else: a(f"buffer_load_dwordx4 v[{rg}:{rg+3}], v10, s[32:35], 0 offen offset:{32*q}")
            vq.push(('B',P))
    def X(r,ks):
        m=36*r+ks
        return f"a[{4*m}:{4*m+3}]" if m<64 else f"v[{16+4*(m-64)}:{19+4*(m-64)}]"
    dma(0)
    a("s_lshl_b32 s48, s24, 10")
    for j in range(3):
        a(f"s_add_u32 s49, s48, {4096*j}\ns_add_u32 s40, s49, {LUT_LDS}\ns_mov_b32 m0, s40\ns_nop 0\nbuffer_load_dwordx4 v7, s[44:47], s49 offen lds"); vq.push(('D',0))
    a(f"s_mov_b32 s50, 0x00010001\ns_mov_b32 s51, 0x000f000f\ns_mov_b32 s52, {(2*LUT_LO)*0x10001}\ns_mov_b32 s53, {(2*(LUT_LO+LUT_N-1))*0x10001}\ns_mov_b32 s54, {(2*LUT_N)*0x10001}")
    for ks in range(36):
        if ks==8: dma(1)
        for r in range(2):
            o=36864*r+1024*ks
            a(f"s_mov_b32 s49, {o&~4095}\nbuffer_load_dwordx4 {X(r,ks)}, v6, s[12:15], s49 offen offset:{o&4095}"); vq.push(('X',ks))
    a("s_mul_i32 s56, s36, 73728\ns_lshl_b32 s48, s21, 2\ns_add_u32 s48, s48, s24")
    for k in range(11):
        a(f"s_add_u32 s49, s48, {64*k}\ns_min_u32 s49, s49, 647\ns_lshl_b32 s49, s49, 10\ns_add_u32 s49, s49, s56\nbuffer_load_dwordx4 v[{192+4*(k%4)}:{195+4*(k%4)}], v7, s[8:11], s49 offen"); vq.push(('P',0))
    for r in range(16): a(f"v_mov_b32 v{168+r}, 0")
    vq.wait(('D',0))
    a("s_barrier\ns_memtime s[62:63]\ns_waitcnt lgkmcnt(0)")
    XL = LUT_LDS - 2*LUT_LO
    def mish_items(P):
        st=P&1; nu=16 if P<4 else 8
        F=[];S=[]
        for p in range(nu):
            r=48+32*st+2*p; b=136+16*st+2*(p&7); t=184+4*(p%2); u=168+2*(p%8)
            f=[('v',x) for x in f"""v_cvt_pk_bf16_f32 v{t}, v{r}, v{r+1}
v_lshlrev_b32 v{r}, 16, v{t}
v_and_b32 v{r+1}, 0xffff0000, v{t}
v_pk_add_f32 v[{r}:{r+1}], v[{r}:{r+1}], v[{b}:{b+1}]
v_cvt_pk_bf16_f32 v{t}, v{r}, v{r+1}
v_lshlrev_b32 v{r}, 16, v{t}
v_and_b32 v{r+1}, 0xffff0000, v{t}
v_pk_lshlrev_b16 v{t+1}, s50, v{t}
v_pk_max_u16 v{t+1}, v{t+1}, s52
v_pk_min_u16 v{t+1}, v{t+1}, s53
v_pk_lshrrev_b16 v{t}, s51, v{t}
v_pk_mad_u16 v{t+1}, v{t}, s54, v{t+1}
v_and_b32 v{t+2}, 0xffff, v{t+1}
v_lshrrev_b32 v{t+3}, 16, v{t+1}""".split("\n")]
            f.append(('ds',f"ds_read_u16_d16_hi v{u}, v{t+2} offset:{XL}",('U',P,p)))
            f.append(('ds',f"ds_read_u16_d16_hi v{u+1}, v{t+3} offset:{XL}",('U',P,p)))
            F.append(f)
            d=48+32*st+8*(p>>2)+(p&3)
            s=[('w',('U',P,p)),('v',f"v_pk_mul_f32 v[{r}:{r+1}], v[{r}:{r+1}], v[{u}:{u+1}]"),('v',f"v_cvt_pk_bf16_f32 v{d}, v{r}, v{r+1}")]
            if p&3==3:
                g=48+32*st+8*(p>>2)
                if P<4: s.append(('ds',f"ds_write_b128 v9, v[{g}:{g+3}] offset:{4096*P+18432*(p>>3)+1024*((p>>2)&1)}",('W',P)))
                else: s.append(('ds',f"ds_write_b128 v14, v[{g}:{g+3}] offset:{1024*((p>>2)&1)}",('W',P)))
            S.append(s)
        out=[('wb',P)]
        LAG=4
        for p in range(nu+LAG):
            if p<nu: out+=F[p]
            if p>=LAG: out+=S[p-LAG]
        return out
    def emit(items, n):
        k=0
        while items and k<n:
            it=items.pop(0)
            if it[0]=='v': a(it[1]); k+=1
            elif it[0]=='ds': a(it[1]); lq.push(it[2]); k+=1
            elif it[0]=='w': lq.wait(it[1])
            elif it[0]=='wb': vq.wait(('B',it[1]))
    side=[]
    def ring(n): return 112+4*(n%6)
    for s in range(8):
        P,kh=s>>1,s&1
        if s>=1: dma(s+1)
        if kh==0: bias(P)
        def fr(n): a(f"ds_read_b128 v[{ring(n)}:{ring(n)+3}], v8 offset:{36864*(s&1)+1024*n}"); lq.push(('F',s,n))
        for n in range(RA): fr(n)
        if kh==0 and P>0:
            side=mish_items(P-1); emit(side, 24)
        for n in range(18):
            if n+RA<18: fr(n+RA)
            ks=18*kh+n
            vq.wait(('X',ks)); lq.wait(('F',s,n))
            for r in range(2):
                d=48+32*(P&1)+16*r
                c="0" if ks==0 else f"v[{d}:{d+15}]"
                a(f"v_mfma_f32_32x32x16_bf16 v[{d}:{d+15}], v[{ring(n)}:{ring(n)+3}], {X(r,ks)}, {c}")
                emit(side, SIDE)
        if kh==1: emit(side, 10000)
        if s in (3,4): a(f"s_memtime s[{92+2*(s-3)}:{93+2*(s-3)}]")
        vq.wait(('D',s+1))
        if s==4: a("s_memtime s[96:97]")
        a("s_barrier")
        a(f"s_memtime s[{72+2*s}:{73+2*s}]")
    bias(4)
    a(f"""s_lshl_b32 s57, s24, 11
s_add_u32 s57, s57, s55
s_lshr_b32 s58, s24, 1
s_add_u32 s58, s58, 16
s_lshl_b32 s58, s58, 11
s_add_u32 s58, s58, s55
s_lshl_b32 s44, s20, 10
s_mul_i32 s59, s21, 4718592
s_add_u32 s44, s44, s59
s_lshl_b32 s59, s24, 18
s_add_u32 s59, s59, s44
v_add_u32 v12, s59, v7
s_lshr_b32 s59, s24, 1
s_add_u32 s59, s59, 16
s_lshl_b32 s59, s59, 18
s_and_b32 s66, s24, 1
s_lshl_b32 s66, s66, 17
s_add_u32 s59, s59, s66
s_add_u32 s59, s59, s44
v_add_u32 v13, s59, v7""")
    NR=16
    frs=[(T,ks) for T in range(5) for ks in range(18)]
    def issue_load(n):
        T,ks=frs[n]
        rg=192+4*(n%NR)
        off=(ks>>1)*73728+(ks&1)*1024+(8192*T if T<4 else 0)
        a(f"s_add_u32 s67, s{57 if T<4 else 58}, {off}\nbuffer_load_dwordx4 v[{rg}:{rg+3}], v7, s[8:11], s67 offen")
        vq.push(('L',n))
    for n in range(NR): issue_load(n)
    a("s_cmp_eq_u32 s23, 1\ns_cbranch_scc1 KF_J1")
    sv=(list(vq.q),list(lq.q))
    for j in range(2):
        vq.q[:],lq.q[:]=list(sv[0]),list(sv[1])
        if j: a("KF_J1:")
        def fr(n): a(f"ds_read_b128 v[{ring(n)}:{ring(n)+3}], v7 offset:{1024*n}"); lq.push(('F',8,n))
        for n in range(RA): fr(n)
        side=mish_items(3); emit(side,24)
        for n in range(36):
            if n+RA<36: fr(n+RA)
            lq.wait(('F',8,n))
            c="0" if n==0 else "v[48:63]"
            a(f"v_mfma_f32_32x32x16_bf16 v[48:63], v[{ring(n)}:{ring(n)+3}], {X(j,n)}, {c}")
            emit(side, 2*SIDE)
        emit(side,10000)
        if j==0: a("s_branch KF_J2")
    a("KF_J2:\ns_nop 7\ns_nop 7\ns_nop 7")
    side=mish_items(4); emit(side,10000)
    lq.all()
    a(f"""s_barrier
s_memtime s[64:65]
s_waitcnt lgkmcnt(0)
v_add_u32 v9, {EX}, v7
v_add_u32 v14, 36864, v9""")
    def areg(rt,ks):
        return f"a[{64*rt+4*ks}:{64*rt+4*ks+3}]" if ks<16 else f"v[{160+8*rt+4*(ks-16)}:{163+8*rt+4*(ks-16)}]"
    for rt in range(4):
        for ks in range(18):
            a(f"ds_read_b128 {areg(rt,ks)}, v{9 if rt<2 else 14} offset:{18432*(rt%2)+1024*ks}")
            if (rt*18+ks)%8==7: a("s_waitcnt lgkmcnt(4)")
    a("s_waitcnt lgkmcnt(0)")
    def stores(T):
        o=[]
        for r in range(4 if T<4 else 2):
            for g in range(4):
                rg=16+64*(T%2)+16*r+4*g
                if T<4: o.append(f"s_mov_b32 s70, {1048576*T+65536*r+16384*g}\nbuffer_store_dwordx4 v[{rg}:{rg+3}], v12, s[28:31], s70 offen")
                else: o.append(f"s_mov_b32 s70, {65536*r+16384*g}\nbuffer_store_dwordx4 v[{rg}:{rg+3}], v13, s[28:31], s70 offen")
        return o
    def tile(T, rts, pend):
        for ks in range(18):
            n=T*18+ks
            vq.wait(('L',n))
            rg=192+4*(n%NR)
            for i,rt in enumerate(rts):
                d=16+64*(T%2)+16*i
                c="0" if ks==0 else f"v[{d}:{d+15}]"
                a(f"v_mfma_f32_32x32x16_bf16 v[{d}:{d+15}], v[{rg}:{rg+3}], {areg(rt,ks)}, {c}")
            if n+NR<len(frs): issue_load(n+NR)
            if pend and ks>=1:
                a(pend.pop(0)); vq.push(('S',0))
        while pend: a(pend.pop(0)); vq.push(('S',0))
    pend=[]
    for T in range(4):
        tile(T,[0,1,2,3],pend); pend=stores(T)
    a("s_and_b32 s66, s24, 1\ns_cmp_eq_u32 s66, 1\ns_cbranch_scc1 KF_H1")
    q0=list(vq.q); p0=list(pend)
    tile(4,[0,1],pend); a("s_branch KF_H2\nKF_H1:")
    vq.q[:]=q0
    tile(4,[2,3],p0); a("KF_H2:\ns_nop 7\ns_nop 7\ns_nop 7")
    for s in stores(4): a(s)
    a(f"""s_waitcnt vmcnt(0)
s_memtime s[66:67]
s_waitcnt lgkmcnt(0)
s_cmp_lg_u32 s2, 0
s_cbranch_scc1 KF_END
v_mov_b32 v1, {ST}""")
    for k,r in enumerate([62,72,74,76,92,78,94,96,80,82,86,64]):
        a(f"s_sub_u32 s{r}, s{r}, s60\nv_mov_b32 v2, s{r}\nglobal_store_dword v1, v2, s[4:5] offset:{4*k}")
    a("KF_END:\ns_endpgm")
    return a.text()
```

```python
from gen_common import *
import gen_k1d as gen_k1
from gen_conv3 import gen_k3c, gen_k4t
from gen_k2k_dbg import gen_k2k as gen_k2g
from gen_v3 import *
k1=gen_k1.gen_k1()
i=k1.index("K1_TR:"); j=k1.index("K1_END:")
a=Asm(); img_role(a)
a("s_branch K1_END"); tab_role(a,3232)
k1=k1[:i]+a.text()+k1[j:]
k1=k1.replace("s_cmp_ge_u32 s2, 1936","s_cmp_ge_u32 s2, 3251\n    s_cbranch_scc1 K1_END\n    s_cmp_ge_u32 s2, 3232\n    s_cbranch_scc1 K1_TAB\n    s_cmp_ge_u32 s2, 3251")
k3=gen_k3c()
ref=open(f"cdna_kernels/{NAME}.s.ref").read().split("\n")
out="\n".join(l for l in ref if l.startswith(";") and "@launch" not in l)+"\n"
out+="; @launch kernel=k1_kernel grid=(3251,1,1) block=(256,1,1) lds=40960\n"
out+="; @launch kernel=k2f_kernel grid=(256,1,1) block=(256,1,1) lds=157184\n"
out+="; @launch kernel=k3c_kernel grid=(1728,1,1) block=(256,1,1) lds=47104\n"
out+="; @launch kernel=k4f_kernel grid=(288,1,1) block=(256,1,1) lds=9216\n"
out+='.amdgcn_target "amdgcn-amd-amdhsa--gfx950"\n.text\n'
def stamp(t, n, idx):
    st=f"""    s_cmp_lg_u32 s2, 0
    s_cbranch_scc1 STK{idx}
    s_load_dwordx2 s[96:97], s[0:1], 120
    s_memrealtime s[98:99]
    s_waitcnt lgkmcnt(0)
    v_mov_b32 v1, {ST+48+4*idx}
    v_mov_b32 v2, s98
    global_store_dword v1, v2, s[96:97]
STK{idx}:
"""
    return t.replace(n+":\n", n+":\n"+st, 1)
for idx,(n,t) in enumerate((("k1_kernel",k1),("k2f_kernel",gen_k2g()),("k3c_kernel",k3),("k4f_kernel",gen_k4t()))):
    t=stamp(t,n,idx)
    out+=f".globl {n}\n.p2align 8\n.type {n},@function\n"+t
out+='.section .rodata,"a"\n'
for n,v,ac in (("k1_kernel",180,180),("k2f_kernel",512,256),("k3c_kernel",96,96),("k4f_kernel",64,64)):
    out+=".p2align 6\n"+kd(n,v,102,ac)
import sys
open(sys.argv[1] if len(sys.argv)>1 else f"cdna_kernels/{NAME}.s","w").write(out)
```

```python
from gen_common import *
from gen_v3 import *
EX = 83456
import os
DUM=int(os.environ.get('DUM','0'))
class Q:
    def __init__(s, a, name, mx): s.a=a; s.q=[]; s.n=name; s.mx=mx
    def push(s, tag): s.q.append(tag)
    def wait(s, tag):
        if tag not in s.q: return
        idx=max(i for i,x in enumerate(s.q) if x==tag)
        allow=min(len(s.q)-1-idx, s.mx)
        s.a(f"s_waitcnt {s.n}({allow})")
        s.q[:]=s.q[len(s.q)-allow:] if allow else []
    def all(s):
        if s.q: s.a(f"s_waitcnt {s.n}(0)"); s.q[:]=[]

def gen_k2k(SIDE=4, RA=5):
    a = Asm()
    a(f"""k2f_kernel:
s_load_dwordx2 s[4:5], s[0:1], 120
s_mov_b32 s90, 0x7fff
s_cmp_ge_u32 s2, 256
s_cbranch_scc1 KF_END
s_waitcnt lgkmcnt(0)
s_memtime s[60:61]
s_waitcnt lgkmcnt(0)
s_and_b32 s20, s2, 7
s_lshl_b32 s20, s20, 1
s_bfe_u32 s22, s2, 0x10003
s_add_u32 s20, s20, s22
s_lshr_b32 s21, s2, 4""")
    srd(a, 8, 4, WI, 144*73728); srd(a, 12, 4, XN, L*D*2); srd(a, 28, 4, PART, 16*L*D*4); srd(a, 32, 4, B1F, F*4); srd(a, 44, 4, TB, 12288)
    a(f"""v_and_b32 v1, 63, v0
v_lshrrev_b32 v2, 6, v0
s_nop 0
v_readfirstlane_b32 s24, v2
v_lshrrev_b32 v4, 5, v1
v_lshlrev_b32 v7, 4, v1
s_lshr_b32 s22, s24, 1
s_and_b32 s23, s24, 1
s_lshl_b32 s25, s21, 2
s_lshl_b32 s26, s22, 1
s_add_u32 s26, s25, s26
s_mul_i32 s26, s26, 36864
v_add_u32 v6, s26, v7
s_mul_i32 s27, s24, 9216
s_mul_i32 s36, s20, 9
s_mul_i32 s37, s36, 73728
s_add_u32 s55, s37, 36864
s_add_u32 s38, s37, s27
s_add_u32 s38, s38, {8*73728}
s_mul_i32 s39, s22, 73728
s_add_u32 s37, s37, s39
s_mul_i32 s39, s23, 9216
s_add_u32 s37, s37, s39
s_mul_i32 s39, s23, 18432
v_add_u32 v8, s39, v7
s_lshl_b32 s42, s36, 7
v_lshlrev_b32 v10, 4, v4
v_add_u32 v10, s42, v10
s_lshl_b32 s39, s23, 7
v_add_u32 v11, s39, v10
v_add_u32 v10, 1024, v10
s_mul_i32 s39, s22, 36864
s_lshl_b32 s40, s23, 11
s_add_u32 s39, s39, s40
s_add_u32 s39, s39, {EX}
v_add_u32 v9, s39, v7
s_mul_i32 s39, s24, 18432
s_add_u32 s39, s39, {EX+16384}
v_add_u32 v14, s39, v7""")
    vq=Q(a,"vmcnt",63); lq=Q(a,"lgkmcnt",15)
    def dma(s):
        sg = 38 if s==8 else 37
        go = 0 if s==8 else (s>>1)*2*73728+(s&1)*18432
        for g in range(3):
            a(f"s_add_u32 s40, s27, {36864*(s&1)+4096*g}\ns_add_u32 s41, s{sg}, {go+4096*g}\ns_mov_b32 m0, s40\ns_nop 0")
            for o in range(4 if g<2 else 1):
                a(f"buffer_load_dwordx4 v7, s[8:11], s41 offen offset:{1024*o} lds"); vq.push(('D',s))
    def bias(P):
        for q in range(4):
            rg=136+16*(P&1)+4*q
            if P<4: a(f"buffer_load_dwordx4 v[{rg}:{rg+3}], v11, s[32:35], 0 offen offset:{256*P+32*q}")
            else: a(f"buffer_load_dwordx4 v[{rg}:{rg+3}], v10, s[32:35], 0 offen offset:{32*q}")
            vq.push(('B',P))
    def X(r,ks):
        m=36*r+ks
        return f"a[{4*m}:{4*m+3}]" if m<64 else f"v[{16+4*(m-64)}:{19+4*(m-64)}]"
    dma(0)
    a("s_lshl_b32 s48, s24, 10")
    for j in range(3):
        a(f"s_add_u32 s49, s48, {4096*j}\ns_add_u32 s40, s49, {LUT_LDS}\ns_mov_b32 m0, s40\ns_nop 0\nbuffer_load_dwordx4 v7, s[44:47], s49 offen lds"); vq.push(('D',0))
    a(f"s_mov_b32 s50, 0x00010001\ns_mov_b32 s51, 0x000f000f\ns_mov_b32 s52, {(2*LUT_LO)*0x10001}\ns_mov_b32 s53, {(2*(LUT_LO+LUT_N-1))*0x10001}\ns_mov_b32 s54, {(2*LUT_N)*0x10001}")
    for ks in range(36):
        if ks==8: dma(1)
        for r in range(2):
            o=36864*r+1024*ks
            a(f"s_mov_b32 s49, {o&~4095}\nbuffer_load_dwordx4 {X(r,ks)}, v6, s[12:15], s49 offen offset:{o&4095}"); vq.push(('X',ks))
    a("s_mul_i32 s56, s36, 73728\ns_lshl_b32 s48, s21, 2\ns_add_u32 s48, s48, s24")
    for k in range(11):
        a(f"s_add_u32 s49, s48, {64*k}\ns_min_u32 s49, s49, 647\ns_lshl_b32 s49, s49, 10\ns_add_u32 s49, s49, s56\nbuffer_load_dwordx4 v[{192+4*(k%4)}:{195+4*(k%4)}], v7, s[8:11], s49 offen"); vq.push(('P',0))
    for r in range(16): a(f"v_mov_b32 v{168+r}, 0")
    vq.wait(('D',0))
    a("s_barrier\ns_memtime s[62:63]\ns_waitcnt lgkmcnt(0)")
    XL = LUT_LDS - 2*LUT_LO
    def mish_items(P):
        st=P&1; nu=16 if P<4 else 8
        F=[];S=[]
        for p in range(nu):
            r=48+32*st+2*p; b=136+16*st+2*(p&7); t=184+4*(p%2); u=168+2*(p%8)
            f=[('v',x) for x in f"""v_cvt_pk_bf16_f32 v{t}, v{r}, v{r+1}
v_lshlrev_b32 v{r}, 16, v{t}
v_and_b32 v{r+1}, 0xffff0000, v{t}
v_pk_add_f32 v[{r}:{r+1}], v[{r}:{r+1}], v[{b}:{b+1}]
v_cvt_pk_bf16_f32 v{t}, v{r}, v{r+1}
v_lshlrev_b32 v{r}, 16, v{t}
v_and_b32 v{r+1}, 0xffff0000, v{t}
v_pk_lshlrev_b16 v{t+1}, s50, v{t}
v_pk_max_u16 v{t+1}, v{t+1}, s52
v_pk_min_u16 v{t+1}, v{t+1}, s53
v_pk_lshrrev_b16 v{t}, s51, v{t}
v_pk_mad_u16 v{t+1}, v{t}, s54, v{t+1}
v_and_b32 v{t+2}, 0xffff, v{t+1}
v_lshrrev_b32 v{t+3}, 16, v{t+1}""".split("\n")]
            f.append(('ds',f"ds_read_u16_d16_hi v{u}, v{t+2} offset:{XL}",('U',P,p)))
            f.append(('ds',f"ds_read_u16_d16_hi v{u+1}, v{t+3} offset:{XL}",('U',P,p)))
            F.append(f)
            d=48+32*st+8*(p>>2)+(p&3)
            s=[('w',('U',P,p)),('v',f"v_pk_mul_f32 v[{r}:{r+1}], v[{r}:{r+1}], v[{u}:{u+1}]"),('v',f"v_cvt_pk_bf16_f32 v{d}, v{r}, v{r+1}")]
            if p&3==3:
                g=48+32*st+8*(p>>2)
                if P<4: s.append(('ds',f"ds_write_b128 v9, v[{g}:{g+3}] offset:{4096*P+18432*(p>>3)+1024*((p>>2)&1)}",('W',P)))
                else: s.append(('ds',f"ds_write_b128 v14, v[{g}:{g+3}] offset:{1024*((p>>2)&1)}",('W',P)))
            S.append(s)
        out=[('wb',P)]
        LAG=4
        for p in range(nu+LAG):
            if p<nu: out+=F[p]
            if p>=LAG: out+=S[p-LAG]
        return out
    def emit(items, n):
        k=0
        while items and k<n:
            it=items.pop(0)
            if it[0]=='v': a(it[1]); k+=1
            elif it[0]=='ds': a(it[1]); lq.push(it[2]); k+=1
            elif it[0]=='w': lq.wait(it[1])
            elif it[0]=='wb': vq.wait(('B',it[1]))
    side=[]
    def ring(n): return 112+4*(n%6)
    for s in range(8):
        P,kh=s>>1,s&1
        if s>=1: dma(s+1)
        if kh==0: bias(P)
        def fr(n): a(f"ds_read_b128 v[{ring(n)}:{ring(n)+3}], v8 offset:{36864*(s&1)+1024*n}"); lq.push(('F',s,n))
        for n in range(RA): fr(n)
        if kh==0 and P>0:
            side=mish_items(P-1); emit(side, 24)
        for n in range(18):
            if n+RA<18: fr(n+RA)
            ks=18*kh+n
            vq.wait(('X',ks)); lq.wait(('F',s,n))
            for r in range(2):
                d=48+32*(P&1)+16*r
                c="0" if ks==0 else f"v[{d}:{d+15}]"
                a(f"v_mfma_f32_32x32x16_bf16 v[{d}:{d+15}], v[{ring(n)}:{ring(n)+3}], {X(r,ks)}, {c}")
                emit(side, SIDE)
                if s==1:
                    for z in range(DUM): a(f"v_add_u32 v{240+(z%8)}, 1, v{240+(z%8)}")
        if kh==1: emit(side, 10000)
        if s in (3,4): a(f"s_memtime s[{92+2*(s-3)}:{93+2*(s-3)}]")
        vq.wait(('D',s+1))
        if s==4: a("s_memtime s[96:97]")
        a("s_barrier")
        a(f"s_memtime s[{72+2*s}:{73+2*s}]")
    bias(4)
    a(f"""s_lshl_b32 s57, s24, 11
s_add_u32 s57, s57, s55
s_lshr_b32 s58, s24, 1
s_add_u32 s58, s58, 16
s_lshl_b32 s58, s58, 11
s_add_u32 s58, s58, s55
s_lshl_b32 s44, s20, 10
s_mul_i32 s59, s21, 4718592
s_add_u32 s44, s44, s59
s_lshl_b32 s59, s24, 18
s_add_u32 s59, s59, s44
v_add_u32 v12, s59, v7
s_lshr_b32 s59, s24, 1
s_add_u32 s59, s59, 16
s_lshl_b32 s59, s59, 18
s_and_b32 s66, s24, 1
s_lshl_b32 s66, s66, 17
s_add_u32 s59, s59, s66
s_add_u32 s59, s59, s44
v_add_u32 v13, s59, v7""")
    NR=16
    frs=[(T,ks) for T in range(5) for ks in range(18)]
    def issue_load(n):
        T,ks=frs[n]
        rg=192+4*(n%NR)
        off=(ks>>1)*73728+(ks&1)*1024+(8192*T if T<4 else 0)
        a(f"s_add_u32 s67, s{57 if T<4 else 58}, {off}\nbuffer_load_dwordx4 v[{rg}:{rg+3}], v7, s[8:11], s67 offen")
        vq.push(('L',n))
    for n in range(NR): issue_load(n)
    a("s_cmp_eq_u32 s23, 1\ns_cbranch_scc1 KF_J1")
    sv=(list(vq.q),list(lq.q))
    for j in range(2):
        vq.q[:],lq.q[:]=list(sv[0]),list(sv[1])
        if j: a("KF_J1:")
        def fr(n): a(f"ds_read_b128 v[{ring(n)}:{ring(n)+3}], v7 offset:{1024*n}"); lq.push(('F',8,n))
        for n in range(RA): fr(n)
        side=mish_items(3); emit(side,24)
        for n in range(36):
            if n+RA<36: fr(n+RA)
            lq.wait(('F',8,n))
            c="0" if n==0 else "v[48:63]"
            a(f"v_mfma_f32_32x32x16_bf16 v[48:63], v[{ring(n)}:{ring(n)+3}], {X(j,n)}, {c}")
            emit(side, 2*SIDE)
        emit(side,10000)
        if j==0: a("s_branch KF_J2")
    a("KF_J2:\ns_nop 7\ns_nop 7\ns_nop 7")
    side=mish_items(4); emit(side,10000)
    lq.all()
    a(f"""s_barrier
s_memtime s[64:65]
s_waitcnt lgkmcnt(0)
v_add_u32 v9, {EX}, v7
v_add_u32 v14, 36864, v9""")
    def areg(rt,ks):
        return f"a[{64*rt+4*ks}:{64*rt+4*ks+3}]" if ks<16 else f"v[{160+8*rt+4*(ks-16)}:{163+8*rt+4*(ks-16)}]"
    for rt in range(4):
        for ks in range(18):
            a(f"ds_read_b128 {areg(rt,ks)}, v{9 if rt<2 else 14} offset:{18432*(rt%2)+1024*ks}")
            if (rt*18+ks)%8==7: a("s_waitcnt lgkmcnt(4)")
    a("s_waitcnt lgkmcnt(0)")
    def stores(T):
        o=[]
        for r in range(4 if T<4 else 2):
            for g in range(4):
                rg=16+64*(T%2)+16*r+4*g
                if T<4: o.append(f"s_mov_b32 s70, {1048576*T+65536*r+16384*g}\nbuffer_store_dwordx4 v[{rg}:{rg+3}], v12, s[28:31], s70 offen")
                else: o.append(f"s_mov_b32 s70, {65536*r+16384*g}\nbuffer_store_dwordx4 v[{rg}:{rg+3}], v13, s[28:31], s70 offen")
        return o
    def tile(T, rts, pend):
        for ks in range(18):
            n=T*18+ks
            vq.wait(('L',n))
            rg=192+4*(n%NR)
            for i,rt in enumerate(rts):
                d=16+64*(T%2)+16*i
                c="0" if ks==0 else f"v[{d}:{d+15}]"
                a(f"v_mfma_f32_32x32x16_bf16 v[{d}:{d+15}], v[{rg}:{rg+3}], {areg(rt,ks)}, {c}")
            if n+NR<len(frs): issue_load(n+NR)
            if pend and ks>=1:
                a(pend.pop(0)); vq.push(('S',0))
        while pend: a(pend.pop(0)); vq.push(('S',0))
    pend=[]
    for T in range(4):
        tile(T,[0,1,2,3],pend); pend=stores(T)
    a("s_and_b32 s66, s24, 1\ns_cmp_eq_u32 s66, 1\ns_cbranch_scc1 KF_H1")
    q0=list(vq.q); p0=list(pend)
    tile(4,[0,1],pend); a("s_branch KF_H2\nKF_H1:")
    vq.q[:]=q0
    tile(4,[2,3],p0); a("KF_H2:\ns_nop 7\ns_nop 7\ns_nop 7")
    for s in stores(4): a(s)
    a(f"""s_waitcnt vmcnt(0)
s_memtime s[66:67]
s_waitcnt lgkmcnt(0)
s_cmp_lg_u32 s2, 0
s_cbranch_scc1 KF_END
v_mov_b32 v1, {ST}""")
    for k,r in enumerate([62,72,74,76,92,78,94,96,80,82,86,64]):
        a(f"s_sub_u32 s{r}, s{r}, s60\nv_mov_b32 v2, s{r}\nglobal_store_dword v1, v2, s[4:5] offset:{4*k}")
    a("KF_END:\ns_endpgm")
    return a.text()
```

```python
from gen_common import *
from gen_v3 import *
EX = 83456
import os
DUM=int(os.environ.get('DUM','0'))
MODE=int(os.environ.get('MODE','0'))
DT=[lambda z: f"v_add_u32 v240, 1, v240",
    lambda z: f"v_pk_add_f32 v[{240+2*(z%4)}:{241+2*(z%4)}], v[{240+2*(z%4)}:{241+2*(z%4)}], v[248:249]",
    lambda z: f"v_cvt_pk_bf16_f32 v{240+(z%8)}, v248, v249",
    lambda z: f"v_pk_max_u16 v{240+(z%8)}, v{240+(z%8)}, s52"]
class Q:
    def __init__(s, a, name, mx): s.a=a; s.q=[]; s.n=name; s.mx=mx
    def push(s, tag): s.q.append(tag)
    def wait(s, tag):
        if tag not in s.q: return
        idx=max(i for i,x in enumerate(s.q) if x==tag)
        allow=min(len(s.q)-1-idx, s.mx)
        s.a(f"s_waitcnt {s.n}({allow})")
        s.q[:]=s.q[len(s.q)-allow:] if allow else []
    def all(s):
        if s.q: s.a(f"s_waitcnt {s.n}(0)"); s.q[:]=[]

def gen_k2k(SIDE=4, RA=5):
    a = Asm()
    a(f"""k2f_kernel:
s_load_dwordx2 s[4:5], s[0:1], 120
s_mov_b32 s90, 0x7fff
s_cmp_ge_u32 s2, 256
s_cbranch_scc1 KF_END
s_waitcnt lgkmcnt(0)
s_memtime s[60:61]
s_waitcnt lgkmcnt(0)
s_and_b32 s20, s2, 7
s_lshl_b32 s20, s20, 1
s_bfe_u32 s22, s2, 0x10003
s_add_u32 s20, s20, s22
s_lshr_b32 s21, s2, 4""")
    srd(a, 8, 4, WI, 144*73728); srd(a, 12, 4, XN, L*D*2); srd(a, 28, 4, PART, 16*L*D*4); srd(a, 32, 4, B1F, F*4); srd(a, 44, 4, TB, 12288)
    a(f"""v_and_b32 v1, 63, v0
v_lshrrev_b32 v2, 6, v0
s_nop 0
v_readfirstlane_b32 s24, v2
v_lshrrev_b32 v4, 5, v1
v_lshlrev_b32 v7, 4, v1
s_lshr_b32 s22, s24, 1
s_and_b32 s23, s24, 1
s_lshl_b32 s25, s21, 2
s_lshl_b32 s26, s22, 1
s_add_u32 s26, s25, s26
s_mul_i32 s26, s26, 36864
v_add_u32 v6, s26, v7
s_mul_i32 s27, s24, 9216
s_mul_i32 s36, s20, 9
s_mul_i32 s37, s36, 73728
s_add_u32 s55, s37, 36864
s_add_u32 s38, s37, s27
s_add_u32 s38, s38, {8*73728}
s_mul_i32 s39, s22, 73728
s_add_u32 s37, s37, s39
s_mul_i32 s39, s23, 9216
s_add_u32 s37, s37, s39
s_mul_i32 s39, s23, 18432
v_add_u32 v8, s39, v7
s_lshl_b32 s42, s36, 7
v_lshlrev_b32 v10, 4, v4
v_add_u32 v10, s42, v10
s_lshl_b32 s39, s23, 7
v_add_u32 v11, s39, v10
v_add_u32 v10, 1024, v10
s_mul_i32 s39, s22, 36864
s_lshl_b32 s40, s23, 11
s_add_u32 s39, s39, s40
s_add_u32 s39, s39, {EX}
v_add_u32 v9, s39, v7
s_mul_i32 s39, s24, 18432
s_add_u32 s39, s39, {EX+16384}
v_add_u32 v14, s39, v7""")
    vq=Q(a,"vmcnt",63); lq=Q(a,"lgkmcnt",15)
    def dma(s):
        sg = 38 if s==8 else 37
        go = 0 if s==8 else (s>>1)*2*73728+(s&1)*18432
        for g in range(3):
            a(f"s_add_u32 s40, s27, {36864*(s&1)+4096*g}\ns_add_u32 s41, s{sg}, {go+4096*g}\ns_mov_b32 m0, s40\ns_nop 0")
            for o in range(4 if g<2 else 1):
                a(f"buffer_load_dwordx4 v7, s[8:11], s41 offen offset:{1024*o} lds"); vq.push(('D',s))
    def bias(P):
        for q in range(4):
            rg=136+16*(P&1)+4*q
            if P<4: a(f"buffer_load_dwordx4 v[{rg}:{rg+3}], v11, s[32:35], 0 offen offset:{256*P+32*q}")
            else: a(f"buffer_load_dwordx4 v[{rg}:{rg+3}], v10, s[32:35], 0 offen offset:{32*q}")
            vq.push(('B',P))
    def X(r,ks):
        m=36*r+ks
        return f"a[{4*m}:{4*m+3}]" if m<64 else f"v[{16+4*(m-64)}:{19+4*(m-64)}]"
    dma(0)
    a("s_lshl_b32 s48, s24, 10")
    for j in range(3):
        a(f"s_add_u32 s49, s48, {4096*j}\ns_add_u32 s40, s49, {LUT_LDS}\ns_mov_b32 m0, s40\ns_nop 0\nbuffer_load_dwordx4 v7, s[44:47], s49 offen lds"); vq.push(('D',0))
    a(f"s_mov_b32 s50, 0x00010001\ns_mov_b32 s51, 0x000f000f\ns_mov_b32 s52, {(2*LUT_LO)*0x10001}\ns_mov_b32 s53, {(2*(LUT_LO+LUT_N-1))*0x10001}\ns_mov_b32 s54, {(2*LUT_N)*0x10001}")
    for ks in range(36):
        if ks==8: dma(1)
        for r in range(2):
            o=36864*r+1024*ks
            a(f"s_mov_b32 s49, {o&~4095}\nbuffer_load_dwordx4 {X(r,ks)}, v6, s[12:15], s49 offen offset:{o&4095}"); vq.push(('X',ks))
    a("s_mul_i32 s56, s36, 73728\ns_lshl_b32 s48, s21, 2\ns_add_u32 s48, s48, s24")
    for k in range(11):
        a(f"s_add_u32 s49, s48, {64*k}\ns_min_u32 s49, s49, 647\ns_lshl_b32 s49, s49, 10\ns_add_u32 s49, s49, s56\nbuffer_load_dwordx4 v[{192+4*(k%4)}:{195+4*(k%4)}], v7, s[8:11], s49 offen"); vq.push(('P',0))
    for r in range(16): a(f"v_mov_b32 v{168+r}, 0")
    vq.wait(('D',0))
    a("s_barrier\ns_memtime s[62:63]\ns_waitcnt lgkmcnt(0)")
    XL = LUT_LDS - 2*LUT_LO
    def mish_items(P):
        st=P&1; nu=16 if P<4 else 8
        F=[];S=[]
        for p in range(nu):
            r=48+32*st+2*p; b=136+16*st+2*(p&7); t=184+4*(p%2); u=168+2*(p%8)
            f=[('v',x) for x in f"""v_cvt_pk_bf16_f32 v{t}, v{r}, v{r+1}
v_lshlrev_b32 v{r}, 16, v{t}
v_and_b32 v{r+1}, 0xffff0000, v{t}
v_pk_add_f32 v[{r}:{r+1}], v[{r}:{r+1}], v[{b}:{b+1}]
v_cvt_pk_bf16_f32 v{t}, v{r}, v{r+1}
v_lshlrev_b32 v{r}, 16, v{t}
v_and_b32 v{r+1}, 0xffff0000, v{t}
v_pk_lshlrev_b16 v{t+1}, s50, v{t}
v_pk_max_u16 v{t+1}, v{t+1}, s52
v_pk_min_u16 v{t+1}, v{t+1}, s53
v_pk_lshrrev_b16 v{t}, s51, v{t}
v_pk_mad_u16 v{t+1}, v{t}, s54, v{t+1}
v_and_b32 v{t+2}, 0xffff, v{t+1}
v_lshrrev_b32 v{t+3}, 16, v{t+1}""".split("\n")]
            f.append(('ds',f"ds_read_u16_d16_hi v{u}, v{t+2} offset:{XL}",('U',P,p)))
            f.append(('ds',f"ds_read_u16_d16_hi v{u+1}, v{t+3} offset:{XL}",('U',P,p)))
            F.append(f)
            d=48+32*st+8*(p>>2)+(p&3)
            s=[('w',('U',P,p)),('v',f"v_pk_mul_f32 v[{r}:{r+1}], v[{r}:{r+1}], v[{u}:{u+1}]"),('v',f"v_cvt_pk_bf16_f32 v{d}, v{r}, v{r+1}")]
            if p&3==3:
                g=48+32*st+8*(p>>2)
                if P<4: s.append(('ds',f"ds_write_b128 v9, v[{g}:{g+3}] offset:{4096*P+18432*(p>>3)+1024*((p>>2)&1)}",('W',P)))
                else: s.append(('ds',f"ds_write_b128 v14, v[{g}:{g+3}] offset:{1024*((p>>2)&1)}",('W',P)))
            S.append(s)
        out=[('wb',P)]
        LAG=4
        for p in range(nu+LAG):
            if p<nu: out+=F[p]
            if p>=LAG: out+=S[p-LAG]
        return out
    def emit(items, n):
        k=0
        while items and k<n:
            it=items.pop(0)
            if it[0]=='v': a(it[1]); k+=1
            elif it[0]=='ds': a(it[1]); lq.push(it[2]); k+=1
            elif it[0]=='w': lq.wait(it[1])
            elif it[0]=='wb': vq.wait(('B',it[1]))
    side=[]
    def ring(n): return 112+4*(n%6)
    for s in range(8):
        P,kh=s>>1,s&1
        if s>=1: dma(s+1)
        if kh==0: bias(P)
        def fr(n): a(f"ds_read_b128 v[{ring(n)}:{ring(n)+3}], v8 offset:{36864*(s&1)+1024*n}"); lq.push(('F',s,n))
        for n in range(RA): fr(n)
        if kh==0 and P>0:
            side=mish_items(P-1); emit(side, 24)
        for n in range(18):
            if n+RA<18: fr(n+RA)
            ks=18*kh+n
            vq.wait(('X',ks)); lq.wait(('F',s,n))
            for r in range(2):
                d=48+32*(P&1)+16*r
                c="0" if ks==0 else f"v[{d}:{d+15}]"
                a(f"v_mfma_f32_32x32x16_bf16 v[{d}:{d+15}], v[{ring(n)}:{ring(n)+3}], {X(r,ks)}, {c}")
                emit(side, SIDE)
                if s==1:
                    for z in range(DUM): a(DT[MODE](z))
        if kh==1: emit(side, 10000)
        if s in (3,4): a(f"s_memtime s[{92+2*(s-3)}:{93+2*(s-3)}]")
        vq.wait(('D',s+1))
        if s==4: a("s_memtime s[96:97]")
        a("s_barrier")
        a(f"s_memtime s[{72+2*s}:{73+2*s}]")
    bias(4)
    a(f"""s_lshl_b32 s57, s24, 11
s_add_u32 s57, s57, s55
s_lshr_b32 s58, s24, 1
s_add_u32 s58, s58, 16
s_lshl_b32 s58, s58, 11
s_add_u32 s58, s58, s55
s_lshl_b32 s44, s20, 10
s_mul_i32 s59, s21, 4718592
s_add_u32 s44, s44, s59
s_lshl_b32 s59, s24, 18
s_add_u32 s59, s59, s44
v_add_u32 v12, s59, v7
s_lshr_b32 s59, s24, 1
s_add_u32 s59, s59, 16
s_lshl_b32 s59, s59, 18
s_and_b32 s66, s24, 1
s_lshl_b32 s66, s66, 17
s_add_u32 s59, s59, s66
s_add_u32 s59, s59, s44
v_add_u32 v13, s59, v7""")
    NR=16
    frs=[(T,ks) for T in range(5) for ks in range(18)]
    def issue_load(n):
        T,ks=frs[n]
        rg=192+4*(n%NR)
        off=(ks>>1)*73728+(ks&1)*1024+(8192*T if T<4 else 0)
        a(f"s_add_u32 s67, s{57 if T<4 else 58}, {off}\nbuffer_load_dwordx4 v[{rg}:{rg+3}], v7, s[8:11], s67 offen")
        vq.push(('L',n))
    for n in range(NR): issue_load(n)
    a("s_cmp_eq_u32 s23, 1\ns_cbranch_scc1 KF_J1")
    sv=(list(vq.q),list(lq.q))
    for j in range(2):
        vq.q[:],lq.q[:]=list(sv[0]),list(sv[1])
        if j: a("KF_J1:")
        def fr(n): a(f"ds_read_b128 v[{ring(n)}:{ring(n)+3}], v7 offset:{1024*n}"); lq.push(('F',8,n))
        for n in range(RA): fr(n)
        side=mish_items(3); emit(side,24)
        for n in range(36):
            if n+RA<36: fr(n+RA)
            lq.wait(('F',8,n))
            c="0" if n==0 else "v[48:63]"
            a(f"v_mfma_f32_32x32x16_bf16 v[48:63], v[{ring(n)}:{ring(n)+3}], {X(j,n)}, {c}")
            emit(side, 2*SIDE)
        emit(side,10000)
        if j==0: a("s_branch KF_J2")
    a("KF_J2:\ns_nop 7\ns_nop 7\ns_nop 7")
    side=mish_items(4); emit(side,10000)
    lq.all()
    a(f"""s_barrier
s_memtime s[64:65]
s_waitcnt lgkmcnt(0)
v_add_u32 v9, {EX}, v7
v_add_u32 v14, 36864, v9""")
    def areg(rt,ks):
        return f"a[{64*rt+4*ks}:{64*rt+4*ks+3}]" if ks<16 else f"v[{160+8*rt+4*(ks-16)}:{163+8*rt+4*(ks-16)}]"
    for rt in range(4):
        for ks in range(18):
            a(f"ds_read_b128 {areg(rt,ks)}, v{9 if rt<2 else 14} offset:{18432*(rt%2)+1024*ks}")
            if (rt*18+ks)%8==7: a("s_waitcnt lgkmcnt(4)")
    a("s_waitcnt lgkmcnt(0)")
    def stores(T):
        o=[]
        for r in range(4 if T<4 else 2):
            for g in range(4):
                rg=16+64*(T%2)+16*r+4*g
                if T<4: o.append(f"s_mov_b32 s70, {1048576*T+65536*r+16384*g}\nbuffer_store_dwordx4 v[{rg}:{rg+3}], v12, s[28:31], s70 offen")
                else: o.append(f"s_mov_b32 s70, {65536*r+16384*g}\nbuffer_store_dwordx4 v[{rg}:{rg+3}], v13, s[28:31], s70 offen")
        return o
    def tile(T, rts, pend):
        for ks in range(18):
            n=T*18+ks
            vq.wait(('L',n))
            rg=192+4*(n%NR)
            for i,rt in enumerate(rts):
                d=16+64*(T%2)+16*i
                c="0" if ks==0 else f"v[{d}:{d+15}]"
                a(f"v_mfma_f32_32x32x16_bf16 v[{d}:{d+15}], v[{rg}:{rg+3}], {areg(rt,ks)}, {c}")
            if n+NR<len(frs): issue_load(n+NR)
            if pend and ks>=1:
                a(pend.pop(0)); vq.push(('S',0))
        while pend: a(pend.pop(0)); vq.push(('S',0))
    pend=[]
    for T in range(4):
        tile(T,[0,1,2,3],pend); pend=stores(T)
    a("s_and_b32 s66, s24, 1\ns_cmp_eq_u32 s66, 1\ns_cbranch_scc1 KF_H1")
    q0=list(vq.q); p0=list(pend)
    tile(4,[0,1],pend); a("s_branch KF_H2\nKF_H1:")
    vq.q[:]=q0
    tile(4,[2,3],p0); a("KF_H2:\ns_nop 7\ns_nop 7\ns_nop 7")
    for s in stores(4): a(s)
    a(f"""s_waitcnt vmcnt(0)
s_memtime s[66:67]
s_waitcnt lgkmcnt(0)
s_cmp_lg_u32 s2, 0
s_cbranch_scc1 KF_END
v_mov_b32 v1, {ST}""")
    for k,r in enumerate([62,72,74,76,92,78,94,96,80,82,86,64]):
        a(f"s_sub_u32 s{r}, s{r}, s60\nv_mov_b32 v2, s{r}\nglobal_store_dword v1, v2, s[4:5] offset:{4*k}")
    a("KF_END:\ns_endpgm")
    return a.text()
```

```python
from gen_common import *
from gen_v3 import *
EX = 83456
class Q:
    def __init__(s, a, name, mx): s.a=a; s.q=[]; s.n=name; s.mx=mx
    def push(s, tag): s.q.append(tag)
    def wait(s, tag):
        if tag not in s.q: return
        idx=max(i for i,x in enumerate(s.q) if x==tag)
        allow=min(len(s.q)-1-idx, s.mx)
        s.a(f"s_waitcnt {s.n}({allow})")
        s.q[:]=s.q[len(s.q)-allow:] if allow else []
    def all(s):
        if s.q: s.a(f"s_waitcnt {s.n}(0)"); s.q[:]=[]

def gen_k2k(SIDE=4, RA=5):
    a = Asm()
    a(f"""k2f_kernel:
s_load_dwordx2 s[4:5], s[0:1], 120
s_mov_b32 s90, 0x7fff
s_cmp_ge_u32 s2, 256
s_cbranch_scc1 KF_END
s_waitcnt lgkmcnt(0)
s_memtime s[60:61]
s_waitcnt lgkmcnt(0)
s_and_b32 s20, s2, 7
s_lshl_b32 s20, s20, 1
s_bfe_u32 s22, s2, 0x10003
s_add_u32 s20, s20, s22
s_lshr_b32 s21, s2, 4""")
    srd(a, 8, 4, WI, 144*73728); srd(a, 12, 4, XN, L*D*2); srd(a, 28, 4, PART, 16*L*D*4); srd(a, 32, 4, B1F, F*4); srd(a, 44, 4, TB, 12288)
    a(f"""v_and_b32 v1, 63, v0
v_lshrrev_b32 v2, 6, v0
s_nop 0
v_readfirstlane_b32 s24, v2
v_lshrrev_b32 v4, 5, v1
v_lshlrev_b32 v7, 4, v1
s_lshr_b32 s22, s24, 1
s_and_b32 s23, s24, 1
s_lshl_b32 s25, s21, 2
s_lshl_b32 s26, s22, 1
s_add_u32 s26, s25, s26
s_mul_i32 s26, s26, 36864
v_add_u32 v6, s26, v7
s_mul_i32 s27, s24, 9216
s_mul_i32 s36, s20, 9
s_mul_i32 s37, s36, 73728
s_add_u32 s55, s37, 36864
s_add_u32 s38, s37, s27
s_add_u32 s38, s38, {8*73728}
s_mul_i32 s39, s22, 73728
s_add_u32 s37, s37, s39
s_mul_i32 s39, s23, 9216
s_add_u32 s37, s37, s39
s_mul_i32 s39, s23, 18432
v_add_u32 v8, s39, v7
s_lshl_b32 s42, s36, 7
v_lshlrev_b32 v10, 4, v4
v_add_u32 v10, s42, v10
s_lshl_b32 s39, s23, 7
v_add_u32 v11, s39, v10
v_add_u32 v10, 1024, v10
s_mul_i32 s39, s22, 36864
s_lshl_b32 s40, s23, 11
s_add_u32 s39, s39, s40
s_add_u32 s39, s39, {EX}
v_add_u32 v9, s39, v7
s_mul_i32 s39, s24, 18432
s_add_u32 s39, s39, {EX+16384}
v_add_u32 v14, s39, v7""")
    vq=Q(a,"vmcnt",63); lq=Q(a,"lgkmcnt",15)
    def dma(s):
        sg = 38 if s==8 else 37
        go = 0 if s==8 else (s>>1)*2*73728+(s&1)*18432
        for g in range(3):
            a(f"s_add_u32 s40, s27, {36864*(s&1)+4096*g}\ns_add_u32 s41, s{sg}, {go+4096*g}\ns_mov_b32 m0, s40\ns_nop 0")
            for o in range(4 if g<2 else 1):
                a(f"buffer_load_dwordx4 v7, s[8:11], s41 offen offset:{1024*o} lds"); vq.push(('D',s))
    def bias(P):
        for q in range(4):
            rg=136+16*(P&1)+4*q
            if P<4: a(f"buffer_load_dwordx4 v[{rg}:{rg+3}], v11, s[32:35], 0 offen offset:{256*P+32*q}")
            else: a(f"buffer_load_dwordx4 v[{rg}:{rg+3}], v10, s[32:35], 0 offen offset:{32*q}")
            vq.push(('B',P))
    def X(r,ks):
        m=36*r+ks
        return f"a[{4*m}:{4*m+3}]" if m<64 else f"v[{16+4*(m-64)}:{19+4*(m-64)}]"
    dma(0)
    a("s_lshl_b32 s48, s24, 10")
    for j in range(3):
        a(f"s_add_u32 s49, s48, {4096*j}\ns_add_u32 s40, s49, {LUT_LDS}\ns_mov_b32 m0, s40\ns_nop 0\nbuffer_load_dwordx4 v7, s[44:47], s49 offen lds"); vq.push(('D',0))
    a(f"s_mov_b32 s50, 0x00010001\ns_mov_b32 s51, 0x000f000f\ns_mov_b32 s52, {(2*LUT_LO)*0x10001}\ns_mov_b32 s53, {(2*(LUT_LO+LUT_N-1))*0x10001}\ns_mov_b32 s54, {(2*LUT_N)*0x10001}")
    for ks in range(36):
        if ks==8: dma(1)
        for r in range(2):
            o=36864*r+1024*ks
            a(f"s_mov_b32 s49, {o&~4095}\nbuffer_load_dwordx4 {X(r,ks)}, v6, s[12:15], s49 offen offset:{o&4095}"); vq.push(('X',ks))
    a("s_mul_i32 s56, s36, 73728\ns_lshl_b32 s48, s21, 2\ns_add_u32 s48, s48, s24")
    for k in range(11):
        a(f"s_add_u32 s49, s48, {64*k}\ns_min_u32 s49, s49, 647\ns_lshl_b32 s49, s49, 10\ns_add_u32 s49, s49, s56\nbuffer_load_dwordx4 v[{192+4*(k%4)}:{195+4*(k%4)}], v7, s[8:11], s49 offen"); vq.push(('P',0))
    for r in range(16): a(f"v_mov_b32 v{168+r}, 0")
    vq.wait(('D',0))
    a("s_barrier\ns_memtime s[62:63]\ns_waitcnt lgkmcnt(0)")
    XL = LUT_LDS - 2*LUT_LO
    def mish_items(P):
        st=P&1; nu=16 if P<4 else 8
        F=[];S=[]
        for p in range(nu):
            r=48+32*st+2*p; b=136+16*st+2*(p&7); t=184+4*(p%2); u=168+2*(p%8)
            f=[('v',x) for x in f"""v_cvt_pk_bf16_f32 v{t}, v{r}, v{r+1}
v_lshlrev_b32 v{r}, 16, v{t}
v_and_b32 v{r+1}, 0xffff0000, v{t}
v_add_f32 v{r}, v{r}, v{b}
v_add_f32 v{r+1}, v{r+1}, v{b+1}
v_cvt_pk_bf16_f32 v{t}, v{r}, v{r+1}
v_lshlrev_b32 v{r}, 16, v{t}
v_and_b32 v{r+1}, 0xffff0000, v{t}
v_pk_lshlrev_b16 v{t+1}, s50, v{t}
v_pk_max_u16 v{t+1}, v{t+1}, s52
v_pk_min_u16 v{t+1}, v{t+1}, s53
v_pk_lshrrev_b16 v{t}, s51, v{t}
v_pk_mad_u16 v{t+1}, v{t}, s54, v{t+1}
v_and_b32 v{t+2}, 0xffff, v{t+1}
v_lshrrev_b32 v{t+3}, 16, v{t+1}""".split("\n")]
            f.append(('ds',f"ds_read_u16_d16_hi v{u}, v{t+2} offset:{XL}",('U',P,p)))
            f.append(('ds',f"ds_read_u16_d16_hi v{u+1}, v{t+3} offset:{XL}",('U',P,p)))
            F.append(f)
            d=48+32*st+8*(p>>2)+(p&3)
            s=[('w',('U',P,p)),('v',f"v_mul_f32 v{r}, v{r}, v{u}"),('v',f"v_mul_f32 v{r+1}, v{r+1}, v{u+1}"),('v',f"v_cvt_pk_bf16_f32 v{d}, v{r}, v{r+1}")]
            if p&3==3:
                g=48+32*st+8*(p>>2)
                if P<4: s.append(('ds',f"ds_write_b128 v9, v[{g}:{g+3}] offset:{4096*P+18432*(p>>3)+1024*((p>>2)&1)}",('W',P)))
                else: s.append(('ds',f"ds_write_b128 v14, v[{g}:{g+3}] offset:{1024*((p>>2)&1)}",('W',P)))
            S.append(s)
        out=[('wb',P)]
        LAG=4
        for p in range(nu+LAG):
            if p<nu: out+=F[p]
            if p>=LAG: out+=S[p-LAG]
        return out
    def emit(items, n):
        k=0
        while items and k<n:
            it=items.pop(0)
            if it[0]=='v': a(it[1]); k+=1
            elif it[0]=='ds': a(it[1]); lq.push(it[2]); k+=1
            elif it[0]=='w': lq.wait(it[1])
            elif it[0]=='wb': vq.wait(('B',it[1]))
    side=[]
    def ring(n): return 112+4*(n%6)
    for s in range(8):
        P,kh=s>>1,s&1
        if s>=1: dma(s+1)
        if kh==0: bias(P)
        def fr(n): a(f"ds_read_b128 v[{ring(n)}:{ring(n)+3}], v8 offset:{36864*(s&1)+1024*n}"); lq.push(('F',s,n))
        for n in range(RA): fr(n)
        if kh==0 and P>0:
            side=mish_items(P-1); emit(side, 24)
        for n in range(18):
            if n+RA<18: fr(n+RA)
            ks=18*kh+n
            vq.wait(('X',ks)); lq.wait(('F',s,n))
            for r in range(2):
                d=48+32*(P&1)+16*r
                c="0" if ks==0 else f"v[{d}:{d+15}]"
                a(f"v_mfma_f32_32x32x16_bf16 v[{d}:{d+15}], v[{ring(n)}:{ring(n)+3}], {X(r,ks)}, {c}")
                emit(side, SIDE)
        if kh==1: emit(side, 10000)
        vq.wait(('D',s+1))
        a("s_barrier")
    bias(4)
    a(f"""s_lshl_b32 s57, s24, 11
s_add_u32 s57, s57, s55
s_lshr_b32 s58, s24, 1
s_add_u32 s58, s58, 16
s_lshl_b32 s58, s58, 11
s_add_u32 s58, s58, s55
s_lshl_b32 s44, s20, 10
s_mul_i32 s59, s21, 4718592
s_add_u32 s44, s44, s59
s_lshl_b32 s59, s24, 18
s_add_u32 s59, s59, s44
v_add_u32 v12, s59, v7
s_lshr_b32 s59, s24, 1
s_add_u32 s59, s59, 16
s_lshl_b32 s59, s59, 18
s_and_b32 s66, s24, 1
s_lshl_b32 s66, s66, 17
s_add_u32 s59, s59, s66
s_add_u32 s59, s59, s44
v_add_u32 v13, s59, v7""")
    NR=16
    frs=[(T,ks) for T in range(5) for ks in range(18)]
    def issue_load(n):
        T,ks=frs[n]
        rg=192+4*(n%NR)
        off=(ks>>1)*73728+(ks&1)*1024+(8192*T if T<4 else 0)
        a(f"s_add_u32 s67, s{57 if T<4 else 58}, {off}\nbuffer_load_dwordx4 v[{rg}:{rg+3}], v7, s[8:11], s67 offen")
        vq.push(('L',n))
    for n in range(NR): issue_load(n)
    a("s_cmp_eq_u32 s23, 1\ns_cbranch_scc1 KF_J1")
    sv=(list(vq.q),list(lq.q))
    for j in range(2):
        vq.q[:],lq.q[:]=list(sv[0]),list(sv[1])
        if j: a("KF_J1:")
        def fr(n): a(f"ds_read_b128 v[{ring(n)}:{ring(n)+3}], v7 offset:{1024*n}"); lq.push(('F',8,n))
        for n in range(RA): fr(n)
        side=mish_items(3); emit(side,24)
        for n in range(36):
            if n+RA<36: fr(n+RA)
            lq.wait(('F',8,n))
            c="0" if n==0 else "v[48:63]"
            a(f"v_mfma_f32_32x32x16_bf16 v[48:63], v[{ring(n)}:{ring(n)+3}], {X(j,n)}, {c}")
            emit(side, 2*SIDE)
        emit(side,10000)
        if j==0: a("s_branch KF_J2")
    a("KF_J2:\ns_nop 7\ns_nop 7\ns_nop 7")
    side=mish_items(4); emit(side,10000)
    lq.all()
    a(f"""s_barrier
s_memtime s[64:65]
s_waitcnt lgkmcnt(0)
v_add_u32 v9, {EX}, v7
v_add_u32 v14, 36864, v9""")
    def areg(rt,ks):
        return f"a[{64*rt+4*ks}:{64*rt+4*ks+3}]" if ks<16 else f"v[{160+8*rt+4*(ks-16)}:{163+8*rt+4*(ks-16)}]"
    for rt in range(4):
        for ks in range(18):
            a(f"ds_read_b128 {areg(rt,ks)}, v{9 if rt<2 else 14} offset:{18432*(rt%2)+1024*ks}")
            if (rt*18+ks)%8==7: a("s_waitcnt lgkmcnt(4)")
    a("s_waitcnt lgkmcnt(0)")
    def stores(T):
        o=[]
        for r in range(4 if T<4 else 2):
            for g in range(4):
                rg=16+64*(T%2)+16*r+4*g
                if T<4: o.append(f"s_mov_b32 s70, {1048576*T+65536*r+16384*g}\nbuffer_store_dwordx4 v[{rg}:{rg+3}], v12, s[28:31], s70 offen")
                else: o.append(f"s_mov_b32 s70, {65536*r+16384*g}\nbuffer_store_dwordx4 v[{rg}:{rg+3}], v13, s[28:31], s70 offen")
        return o
    def tile(T, rts, pend):
        for ks in range(18):
            n=T*18+ks
            vq.wait(('L',n))
            rg=192+4*(n%NR)
            for i,rt in enumerate(rts):
                d=16+64*(T%2)+16*i
                c="0" if ks==0 else f"v[{d}:{d+15}]"
                a(f"v_mfma_f32_32x32x16_bf16 v[{d}:{d+15}], v[{rg}:{rg+3}], {areg(rt,ks)}, {c}")
            if n+NR<len(frs): issue_load(n+NR)
            if pend and ks>=1:
                a(pend.pop(0)); vq.push(('S',0))
        while pend: a(pend.pop(0)); vq.push(('S',0))
    pend=[]
    for T in range(4):
        tile(T,[0,1,2,3],pend); pend=stores(T)
    a("s_and_b32 s66, s24, 1\ns_cmp_eq_u32 s66, 1\ns_cbranch_scc1 KF_H1")
    q0=list(vq.q); p0=list(pend)
    tile(4,[0,1],pend); a("s_branch KF_H2\nKF_H1:")
    vq.q[:]=q0
    tile(4,[2,3],p0); a("KF_H2:\ns_nop 7\ns_nop 7\ns_nop 7")
    for s in stores(4): a(s)
    a(f"""s_waitcnt vmcnt(0)
s_memtime s[66:67]
s_waitcnt lgkmcnt(0)
s_cmp_ge_u32 s2, 6
s_cbranch_scc1 KF_END
s_and_b32 s70, s2, 1
s_cmp_lg_u32 s70, 0
s_cbranch_scc1 KF_END
s_lshr_b32 s71, s2, 1
s_sub_u32 s62, s62, s60
s_sub_u32 s64, s64, s60
s_sub_u32 s66, s66, s60
s_lshl_b32 s68, s71, 4
s_add_u32 s68, s68, {ST}
v_mov_b32 v1, s68
v_mov_b32 v2, s62
v_mov_b32 v3, s64
v_mov_b32 v4, s66
s_getreg_b32 s69, hwreg(HW_REG_XCC_ID)
v_mov_b32 v5, s69
global_store_dwordx4 v1, v[2:5], s[4:5]""")
    a("KF_END:\ns_endpgm")
    return a.text()
```

```python
from gen_common import *
from gen_v3 import *
from gen_conv3 import conv_steps, gen_k4t, C, KC
import gen_k1d, re
SB=KC
def kgen_text():
    t=gen_k1d.gen_k1()
    t=t[t.index("K1_KGEN:")+len("K1_KGEN:\n"):t.index("K1_TR:")]
    out=[]; L_=t.split("\n"); i=0
    while i<len(L_):
        l=L_[i].strip(); i+=1
        if not l: continue
        if l=="s_sub_u32 s3, s2, 64": out.append("s_mov_b32 s3, s2"); continue
        if l=="ds_write_b128 v12, v[8:11]": out.append(f"ds_write_b128 v12, v[8:11] offset:{SB}"); continue
        m=re.match(r"(ds_\w+ .*) offset:(\d+)$", l)
        if m:
            o=int(m.group(2))
            o = o-16384 if o>=16384 else o+SB
            out.append(f"{m.group(1)} offset:{o}"); continue
        if l.startswith("s_add_u32 s8, s4,"):
            i+=4; continue
        if l.startswith("s_mul_i32 s22, s3,"): continue
        m=re.match(r"v_add_u32 v2, (\d+), v1$", l)
        if m and L_[i].strip().startswith("buffer_store_dwordx4 v[40:43]"):
            out.append(f"ds_write_b128 v1, v[40:43] offset:{KC+int(m.group(1))}"); i+=2; continue
        l=l.replace("K1_EX","K3_EX").replace("K1_END","K3_KD")
        out.append(l)
    return "\n".join(out)

def gen_k3d():
    a=Asm()
    a("""k3c_kernel:
s_load_dwordx2 s[4:5], s[0:1], 120
s_load_dwordx2 s[6:7], s[0:1], 64
s_mov_b32 s90, 0x7fff
s_cmp_ge_u32 s2, 1728
s_cbranch_scc1 K3_END
s_cmp_ge_u32 s2, 576
s_cbranch_scc1 K3R
s_waitcnt lgkmcnt(0)""")
    srd(a, 36, 4, XP, 576*5120); srd(a, 28, 4, YAT, L*D*2); srd(a, 32, 6, 0, D*2)
    a(f"""v_lshlrev_b32 v104, 4, v0
s_mul_i32 s40, s2, 5120
v_add_u32 v105, 4096, v104
v_min_u32 v105, 5104, v105
buffer_load_dwordx4 v[108:111], v104, s[36:39], s40 offen
buffer_load_dwordx4 v[112:115], v105, s[36:39], s40 offen
s_lshl_b32 s27, s2, 1
v_mov_b32 v106, s27
buffer_load_ushort v106, v106, s[32:35], 0 offen""")
    a(kgen_text())
    a(f"""K3_KD:
s_mov_b64 exec, -1
s_waitcnt vmcnt(0) lgkmcnt(0)
s_barrier
v_lshrrev_b32 v1, 6, v0
s_nop 0
v_readfirstlane_b32 s20, v1
v_and_b32 v2, 63, v0
v_lshlrev_b32 v3, 4, v2
v_mov_b32 v8, 0
v_mov_b32 v9, 0
v_mov_b32 v10, 0
v_mov_b32 v11, 0
ds_write_b128 v104, v[8:11]
ds_write_b128 v104, v[8:11] offset:1024
ds_write_b128 v104, v[108:111] offset:5120
ds_write_b128 v105, v[112:115] offset:5120
v_mov_b32 v5, v106
v_and_b32 v10, 31, v2
v_lshrrev_b32 v11, 5, v2
v_lshlrev_b32 v12, 3, v11
v_sub_u32 v12, v12, v10
v_add_u32 v12, {C}, v12
v_and_b32 v13, 3, v12
v_mul_u32_u24 v13, {KP}, v13
v_and_b32 v12, -4, v12
v_lshl_add_u32 v12, v12, 1, v13
v_add_u32 v12, {KC}, v12
v_mul_u32_u24 v14, 80, v10
v_lshl_add_u32 v14, v11, 4, v14""")
    for r in range(32): a(f"v_mov_b32 v{64+r}, 0")
    from gen_conv3 import gen_k3c
    t=gen_k3c()
    t=t[t.index("    s_waitcnt vmcnt(0) lgkmcnt(0)\n    s_barrier\n    s_cmp_eq_u32 s20, 1"):]
    return a.text()+t
```

```python
from gen_common import *
import gen_k1d as gen_k1
from gen_conv3 import gen_k4t
from gen_k3d import gen_k3d
from gen_k2k import gen_k2k as gen_k2g
from gen_v3 import *
import sys
k1=gen_k1.gen_k1()
i=k1.index("K1_KGEN:"); j=k1.index("K1_END:")
a=Asm(); img_role(a)
a("s_branch K1_END"); tab_role(a,64)
k1=k1[:i]+a.text().replace("s_sub_u32 s3, s2, 640","s_sub_u32 s3, s2, 83")+k1[j:]
k1=k1.replace("s_cmp_ge_u32 s2, 1936","s_cmp_ge_u32 s2, 2675").replace("s_cmp_ge_u32 s2, 640","s_cmp_ge_u32 s2, 83").replace("s_cbranch_scc1 K1_KGEN","s_cbranch_scc1 K1_TAB")
k3=gen_k3d()
ref=open(f"cdna_kernels/{NAME}.s.ref").read().split("\n")
out="\n".join(l for l in ref if l.startswith(";") and "@launch" not in l)+"\n"
out+="; @launch kernel=k1_kernel grid=(2675,1,1) block=(256,1,1) lds=40960\n"
out+="; @launch kernel=k2f_kernel grid=(256,1,1) block=(256,1,1) lds=157184\n"
out+="; @launch kernel=k3c_kernel grid=(1728,1,1) block=(256,1,1) lds=47104\n"
out+="; @launch kernel=k4f_kernel grid=(288,1,1) block=(256,1,1) lds=9216\n"
out+='.amdgcn_target "amdgcn-amd-amdhsa--gfx950"\n.text\n'
def stamp(t, n, idx):
    st=f"""    s_cmp_lg_u32 s2, 0
    s_cbranch_scc1 STK{idx}
    s_load_dwordx2 s[96:97], s[0:1], 120
    s_memrealtime s[98:99]
    s_waitcnt lgkmcnt(0)
    v_mov_b32 v1, {ST+48+4*idx}
    v_mov_b32 v2, s98
    global_store_dword v1, v2, s[96:97]
STK{idx}:
"""
    return t.replace(n+":\n", n+":\n"+st, 1)
for idx,(n,t) in enumerate((("k1_kernel",k1),("k2f_kernel",gen_k2g()),("k3c_kernel",k3),("k4f_kernel",gen_k4t()))):
    t=stamp(t,n,idx)
    out+=f".globl {n}\n.p2align 8\n.type {n},@function\n"+t
out+='.section .rodata,"a"\n'
for n,v,ac in (("k1_kernel",180,180),("k2f_kernel",512,256),("k3c_kernel",116,116),("k4f_kernel",64,64)):
    out+=".p2align 6\n"+kd(n,v,102,ac)
open(sys.argv[1] if len(sys.argv)>1 else f"cdna_kernels/{NAME}.s","w").write(out)
```

```python
from gen_common import *
from gen_v3 import XP, img_role, tab_role
R=2
NLN=L//(4*R)
def gen_k1e():
    a = Asm()
    T0=NLN; I0=NLN+19; TOT=I0+2592
    a(f"""k1_kernel:
s_load_dwordx2 s[4:5], s[0:1], 120
s_mov_b32 s90, 0x7fff
s_cmp_ge_u32 s2, {TOT}
s_cbranch_scc1 K1_END
s_cmp_ge_u32 s2, {I0}
s_cbranch_scc1 K1_TR
s_cmp_ge_u32 s2, {T0}
s_cbranch_scc1 K1_TAB""")
    a("s_load_dwordx2 s[6:7], s[0:1], 0\ns_waitcnt lgkmcnt(0)")
    srd(a, 8, 6, 0, L*D*2)
    srd(a, 12, 4, XN, L*D*2)
    srd(a, 16, 4, XP, 576*5120)
    a(f"""v_lshrrev_b32 v1, 6, v0
v_and_b32 v2, 63, v0
s_mul_i32 s20, s2, {4*R*1152}
v_mul_u32_u24 v4, {R*1152}, v1
v_lshl_add_u32 v4, v2, 2, v4
v_cmp_gt_u32 s[22:23], 32, v2""")
    DA=8; UP=8+5*R; MU=UP+10*R; VA=MU+R; RC=VA+R; TM=RC+R
    for i in range(R):
        for j in range(4): a(f"buffer_load_dword v{DA+5*i+j}, v4, s[8:11], s20 offen offset:{1152*i+256*j}")
        a(f"v_mov_b32 v{DA+5*i+4}, 0")
    a("s_mov_b64 s[24:25], exec\ns_mov_b64 exec, s[22:23]")
    for i in range(R): a(f"buffer_load_dword v{DA+5*i+4}, v4, s[8:11], s20 offen offset:{1152*i+1024}")
    a("s_mov_b64 exec, s[24:25]\ns_waitcnt vmcnt(0)")
    for i in range(R):
        for j in range(5):
            a(f"v_lshlrev_b32 v{UP+10*i+2*j}, 16, v{DA+5*i+j}\nv_and_b32 v{UP+10*i+2*j+1}, 0xffff0000, v{DA+5*i+j}")
    def reduce(base):
        for op in ("row_shr:1 row_mask:0xf","row_shr:2 row_mask:0xf","row_shr:4 row_mask:0xf","row_shr:8 row_mask:0xf","row_bcast:15 row_mask:0xa","row_bcast:31 row_mask:0xc"):
            a("s_nop 1")
            for i in range(R): a(f"v_add_f32_dpp v{base+i}, v{base+i}, v{base+i} {op} bank_mask:0xf bound_ctrl:0")
        a("s_nop 1")
        for i in range(R): a(f"v_readlane_b32 s{40+i}, v{base+i}, 63")
        for i in range(R): a(f"v_mov_b32 v{base+i}, s{40+i}")
    for i in range(R):
        a(f"v_add_f32 v{MU+i}, v{UP+10*i}, v{UP+10*i+1}")
        for j in range(2,10): a(f"v_add_f32 v{MU+i}, v{MU+i}, v{UP+10*i+j}")
    reduce(MU)
    a("s_mov_b32 s26, 0x3ae38e39")
    for i in range(R): a(f"v_mul_f32 v{MU+i}, s26, v{MU+i}")
    for i in range(R):
        a(f"v_mov_b32 v{VA+i}, 0")
        for j in range(10):
            a(f"v_sub_f32 v7, v{UP+10*i+j}, v{MU+i}")
            if j >= 8: a(f"v_cndmask_b32 v7, 0, v7, s[22:23]")
            a(f"v_fmac_f32 v{VA+i}, v7, v7")
    reduce(VA)
    for i in range(R):
        a(f"v_mul_f32 v{VA+i}, s26, v{VA+i}")
        bf16_rne(a, MU+i, MU+i, 7)
        bf16_rne(a, VA+i, VA+i, 7)
        a(f"v_add_f32 v{VA+i}, 0x3727c5ac, v{VA+i}")
        bf16_rne(a, VA+i, VA+i, 7)
        a(f"v_sqrt_f32 v{VA+i}, v{VA+i}\ns_nop 0")
        bf16_rne(a, VA+i, VA+i, 7)
        a(f"v_rcp_f32 v{RC+i}, v{VA+i}\ns_nop 0")
    a(f"v_mul_u32_u24 v5, {1168*R}, v1\nv_lshl_add_u32 v5, v2, 2, v5")
    for i in range(R):
        for j in range(10):
            r = UP+10*i+j
            a(f"v_sub_f32 v{r}, v{r}, v{MU+i}")
            bf16_rne(a, r, r, 7)
            a(f"v_mul_f32 v7, v{r}, v{RC+i}\nv_fma_f32 v{r}, -v7, v{VA+i}, v{r}\nv_fma_f32 v{r}, v{r}, v{RC+i}, v7")
        for j in range(5):
            a(f"v_cvt_pk_bf16_f32 v{DA+5*i+j}, v{UP+10*i+2*j}, v{UP+10*i+2*j+1}")
    for i in range(R):
        for j in range(4): a(f"ds_write_b32 v5, v{DA+5*i+j} offset:{1168*i+256*j}")
    a("s_mov_b64 exec, s[22:23]")
    for i in range(R): a(f"ds_write_b32 v5, v{DA+5*i+4} offset:{1168*i+1024}")
    NR=4*R
    G=32//NR
    a(f"""s_mov_b64 exec, s[24:25]
s_lshr_b32 s27, s2, {G.bit_length()-1}
s_and_b32 s28, s2, {G-1}
s_mul_i32 s29, s27, 36864
s_mul_i32 s30, s28, {NR*16}
s_add_u32 s29, s29, s30
s_mul_i32 s30, s27, 80
s_mul_i32 s31, s28, {NR*2}
s_add_u32 s30, s30, s31
s_waitcnt lgkmcnt(0)
s_barrier""")
    assert NR==8
    for p in range(3):
        b=8+16*p
        a(f"v_add_u32 v{b}, {256*p}, v0")
        if p == 2: a(f"v_cmp_gt_u32 vcc, 576, v{b}\ns_and_saveexec_b64 s[24:25], vcc")
        a(f"""v_lshlrev_b32 v{b+1}, 1, v{b}
v_and_b32 v{b+2}, 7, v{b}
v_lshrrev_b32 v{b+3}, 3, v{b}
v_mul_u32_u24 v4, 1168, v{b+2}
v_lshl_add_u32 v4, v{b+3}, 4, v4
ds_read_b128 v[{b+4}:{b+7}], v4""")
        for r in range(8): a(f"ds_read_u16 v{b+8+r}, v{b+1} offset:{1168*r}")
        a(f"""v_lshlrev_b32 v{b+2}, 4, v{b+2}
v_lshl_add_u32 v{b+2}, v{b+3}, 9, v{b+2}
v_mul_u32_u24 v{b+1}, 5120, v{b}""")
    for p in range(3):
        b=8+16*p
        if p==0: a("s_mov_b64 s[34:35], exec\ns_mov_b64 exec, s[24:25]")
        if p==2: a("s_mov_b64 exec, s[34:35]")
        a(f"s_waitcnt lgkmcnt({min(15,9*(2-p)+8)})\nbuffer_store_dwordx4 v[{b+4}:{b+7}], v{b+2}, s[12:15], s29 offen\ns_waitcnt lgkmcnt({min(15,9*(2-p))})")
        for r in range(4): a(f"v_lshl_or_b32 v{b+8+r}, v{b+8+2*r+1}, 16, v{b+8+2*r}")
        a(f"buffer_store_dwordx4 v[{b+8}:{b+11}], v{b+1}, s[16:19], s30 offen")
    a("s_branch K1_END")
    b=Asm(); img_role(b); b("s_branch K1_END"); tab_role(b,T0)
    return a.text()+b.text().replace("s_sub_u32 s3, s2, 640",f"s_sub_u32 s3, s2, {I0}")+"K1_END:\n    s_endpgm\n", TOT
```

```python
from gen_common import *
import gen_k1d as gen_k1
from gen_conv3 import gen_k4t
from gen_k3d import gen_k3d
from gen_k2k import gen_k2k as gen_k2g
from gen_v3 import *
import sys
from gen_k1e import gen_k1e
k1,TOT=gen_k1e()
k3=gen_k3d()
ref=open(f"cdna_kernels/{NAME}.s.ref").read().split("\n")
out="\n".join(l for l in ref if l.startswith(";") and "@launch" not in l)+"\n"
out+=f"; @launch kernel=k1_kernel grid=({TOT},1,1) block=(256,1,1) lds=10240\n"
out+="; @launch kernel=k2f_kernel grid=(256,1,1) block=(256,1,1) lds=157184\n"
out+="; @launch kernel=k3c_kernel grid=(1728,1,1) block=(256,1,1) lds=47104\n"
out+="; @launch kernel=k4f_kernel grid=(288,1,1) block=(256,1,1) lds=9216\n"
out+='.amdgcn_target "amdgcn-amd-amdhsa--gfx950"\n.text\n'
def stamp(t, n, idx):
    st=f"""    s_cmp_lg_u32 s2, 0
    s_cbranch_scc1 STK{idx}
    s_load_dwordx2 s[96:97], s[0:1], 120
    s_memrealtime s[98:99]
    s_waitcnt lgkmcnt(0)
    v_mov_b32 v1, {ST+48+4*idx}
    v_mov_b32 v2, s98
    global_store_dword v1, v2, s[96:97]
STK{idx}:
"""
    return t.replace(n+":\n", n+":\n"+st, 1)
for idx,(n,t) in enumerate((("k1_kernel",k1),("k2f_kernel",gen_k2g()),("k3c_kernel",k3),("k4f_kernel",gen_k4t()))):
    t=stamp(t,n,idx)
    out+=f".globl {n}\n.p2align 8\n.type {n},@function\n"+t
out+='.section .rodata,"a"\n'
for n,v,ac in (("k1_kernel",64,64),("k2f_kernel",512,256),("k3c_kernel",116,116),("k4f_kernel",64,64)):
    out+=".p2align 6\n"+kd(n,v,102,ac)
open(sys.argv[1] if len(sys.argv)>1 else f"cdna_kernels/{NAME}.s","w").write(out)
```

```python
import sys
from gen_v3 import ST
s=open(sys.argv[1]).read()
old="K1_END:\n    s_endpgm"
ids=[int(x) for x in sys.argv[3].split(",")]
sel="".join(f"    s_cmp_eq_u32 s2, {i}\n    s_cselect_b32 s94, {ST+4*k}, s94\n" for k,i in enumerate(ids))
new=f"""K1_END:
    s_mov_b64 exec, -1
    s_mov_b32 s94, 0
{sel}    s_cmp_eq_u32 s94, 0
    s_cbranch_scc1 K1_END2
    s_waitcnt vmcnt(0) lgkmcnt(0)
    s_load_dwordx2 s[96:97], s[0:1], 120
    s_memrealtime s[98:99]
    s_waitcnt lgkmcnt(0)
    v_cmp_eq_u32 vcc, 0, v0
    s_and_saveexec_b64 s[92:93], vcc
    v_mov_b32 v1, s94
    v_mov_b32 v2, s98
    global_store_dword v1, v2, s[96:97]
K1_END2:
    s_endpgm"""
assert old in s
s=s.replace(old,new)
s=s.replace("    s_cmp_ge_u32 s2, 6\n    s_cbranch_scc1 KF_END\n","    s_branch KF_END\n")
open(sys.argv[2],'w').write(s)
```

```python
import sys
from gen_v3 import ST
s=open(sys.argv[1]).read()
old="K3_END:\n    s_endpgm"
ids=[int(x) for x in sys.argv[3].split(",")]
sel="".join(f"    s_cmp_eq_u32 s2, {i}\n    s_cselect_b32 s94, {ST+4*k}, s94\n" for k,i in enumerate(ids))
new=f"""K3_END:
    s_mov_b64 exec, -1
    s_mov_b32 s94, 0
{sel}    s_cmp_eq_u32 s94, 0
    s_cbranch_scc1 K3_END2
    s_waitcnt vmcnt(0) lgkmcnt(0)
    s_load_dwordx2 s[96:97], s[0:1], 120
    s_memrealtime s[98:99]
    s_waitcnt lgkmcnt(0)
    v_cmp_eq_u32 vcc, 0, v0
    s_and_saveexec_b64 s[92:93], vcc
    v_mov_b32 v1, s94
    v_mov_b32 v2, s98
    global_store_dword v1, v2, s[96:97]
K3_END2:
    s_endpgm"""
assert old in s
s=s.replace(old,new)
s=s.replace("    s_cmp_ge_u32 s2, 6\n    s_cbranch_scc1 KF_END\n","    s_branch KF_END\n")
open(sys.argv[2],'w').write(s)
```

```python
from gen_common import *
from gen_v3 import *
EX = 83456
class Q:
    def __init__(s, a, name, mx): s.a=a; s.q=[]; s.n=name; s.mx=mx
    def push(s, tag): s.q.append(tag)
    def wait(s, tag):
        if tag not in s.q: return
        idx=max(i for i,x in enumerate(s.q) if x==tag)
        allow=min(len(s.q)-1-idx, s.mx)
        s.a(f"s_waitcnt {s.n}({allow})")
        s.q[:]=s.q[len(s.q)-allow:] if allow else []
    def all(s):
        if s.q: s.a(f"s_waitcnt {s.n}(0)"); s.q[:]=[]

def gen_k2k(SIDE=4, RA=5, PRE=6, VMW=2):
    a = Asm()
    a(f"""k2f_kernel:
s_load_dwordx2 s[4:5], s[0:1], 120
s_mov_b32 s90, 0x7fff
s_cmp_ge_u32 s2, 256
s_cbranch_scc1 KF_END
s_waitcnt lgkmcnt(0)
s_memtime s[60:61]
s_waitcnt lgkmcnt(0)
s_and_b32 s20, s2, 7
s_lshl_b32 s20, s20, 1
s_bfe_u32 s22, s2, 0x10003
s_add_u32 s20, s20, s22
s_lshr_b32 s21, s2, 4""")
    srd(a, 8, 4, WI, 144*73728); srd(a, 12, 4, XN, L*D*2); srd(a, 28, 4, PART, 16*L*D*4); srd(a, 32, 4, B1F, F*4); srd(a, 44, 4, TB, 12288)
    a(f"""v_and_b32 v1, 63, v0
v_lshrrev_b32 v2, 6, v0
s_nop 0
v_readfirstlane_b32 s24, v2
v_lshrrev_b32 v4, 5, v1
v_lshlrev_b32 v7, 4, v1
s_lshr_b32 s22, s24, 1
s_and_b32 s23, s24, 1
s_lshl_b32 s25, s21, 2
s_lshl_b32 s26, s22, 1
s_add_u32 s26, s25, s26
s_mul_i32 s26, s26, 36864
v_add_u32 v6, s26, v7
s_mul_i32 s27, s24, 9216
s_mul_i32 s36, s20, 9
s_mul_i32 s37, s36, 73728
s_add_u32 s55, s37, 36864
s_add_u32 s38, s37, s27
s_add_u32 s38, s38, {8*73728}
s_mul_i32 s39, s22, 73728
s_add_u32 s37, s37, s39
s_mul_i32 s39, s23, 9216
s_add_u32 s37, s37, s39
s_mul_i32 s39, s23, 18432
v_add_u32 v8, s39, v7
s_lshl_b32 s42, s36, 7
v_lshlrev_b32 v10, 4, v4
v_add_u32 v10, s42, v10
s_lshl_b32 s39, s23, 7
v_add_u32 v11, s39, v10
v_add_u32 v10, 1024, v10
s_mul_i32 s39, s22, 36864
s_lshl_b32 s40, s23, 11
s_add_u32 s39, s39, s40
s_add_u32 s39, s39, {EX}
v_add_u32 v9, s39, v7
s_mul_i32 s39, s24, 18432
s_add_u32 s39, s39, {EX+16384}
v_add_u32 v14, s39, v7""")
    seen={}
    vq=Q(a,"vmcnt",63); lq=Q(a,"lgkmcnt",15)
    def dma_items(s):
        sg = 38 if s==8 else 37
        go = 0 if s==8 else (s>>1)*2*73728+(s&1)*18432
        o=[]
        for g in range(3):
            for k in range(4 if g<2 else 1):
                pre = f"s_add_u32 s40, s27, {36864*(s&1)+4096*g}\ns_add_u32 s41, s{sg}, {go+4096*g}\ns_mov_b32 m0, s40\ns_nop 0\n" if k==0 else ""
                o.append(('vm',pre+f"buffer_load_dwordx4 v7, s[8:11], s41 offen offset:{1024*k} lds",('D',s)))
        return o
    def bias_items(P):
        o=[]
        for q in range(4):
            rg=136+16*(P&1)+4*q
            if P<4: o.append(('vm',f"buffer_load_dwordx4 v[{rg}:{rg+3}], v11, s[32:35], 0 offen offset:{256*P+32*q}",('B',P)))
            else: o.append(('vm',f"buffer_load_dwordx4 v[{rg}:{rg+3}], v10, s[32:35], 0 offen offset:{32*q}",('B',P)))
        return o
    def xn_items(k0,k1):
        o=[]
        for ks in range(k0,k1):
            for r in range(2):
                of=36864*r+1024*ks
                o.append(('vm',f"s_mov_b32 s49, {of&~4095}\nbuffer_load_dwordx4 {X(r,ks)}, v6, s[12:15], s49 offen offset:{of&4095}",('X',ks)))
        return o
    def emit(items, n):
        k=0
        while items and k<n:
            it=items.pop(0)
            if it[0]=='v': a(it[1]); k+=1
            elif it[0]=='ds': a(it[1]); lq.push(it[2]); k+=1
            elif it[0]=='vm': a(it[1]); vq.push(it[2]); k+=VMW; seen[it[2]]=seen.get(it[2],0)+1
            elif it[0]=='w': lq.wait(it[1])
            elif it[0]=='wb':
                assert seen.get(('B',it[1]))==4
                vq.wait(('B',it[1]))
    def dma(s): emit(dma_items(s),10000)
    def bias(P): emit(bias_items(P),10000)
    def X(r,ks):
        m=36*r+ks
        return f"a[{4*m}:{4*m+3}]" if m<64 else f"v[{16+4*(m-64)}:{19+4*(m-64)}]"
    dma(0)
    a("s_lshl_b32 s48, s24, 10")
    for j in range(3):
        a(f"s_add_u32 s49, s48, {4096*j}\ns_add_u32 s40, s49, {LUT_LDS}\ns_mov_b32 m0, s40\ns_nop 0\nbuffer_load_dwordx4 v7, s[44:47], s49 offen lds"); vq.push(('D',0))
    a(f"s_mov_b32 s50, 0x00010001\ns_mov_b32 s51, 0x000f000f\ns_mov_b32 s52, {(2*LUT_LO)*0x10001}\ns_mov_b32 s53, {(2*(LUT_LO+LUT_N-1))*0x10001}\ns_mov_b32 s54, {(2*LUT_N)*0x10001}")
    emit(xn_items(0,PRE),10000)
    for r in range(16): a(f"v_mov_b32 v{168+r}, 0")
    vq.wait(('D',0))
    a("s_barrier\ns_memtime s[62:63]\ns_waitcnt lgkmcnt(0)")
    XL = LUT_LDS - 2*LUT_LO
    def mish_items(P):
        st=P&1; nu=16 if P<4 else 8
        F=[];S=[]
        for p in range(nu):
            r=48+32*st+2*p; b=136+16*st+2*(p&7); t=184+4*(p%2); u=168+2*(p%8)
            f=[('v',x) for x in f"""v_cvt_pk_bf16_f32 v{t}, v{r}, v{r+1}
v_lshlrev_b32 v{r}, 16, v{t}
v_and_b32 v{r+1}, 0xffff0000, v{t}
v_add_f32 v{r}, v{r}, v{b}
v_add_f32 v{r+1}, v{r+1}, v{b+1}
v_cvt_pk_bf16_f32 v{t}, v{r}, v{r+1}
v_lshlrev_b32 v{r}, 16, v{t}
v_and_b32 v{r+1}, 0xffff0000, v{t}
v_pk_lshlrev_b16 v{t+1}, s50, v{t}
v_pk_max_u16 v{t+1}, v{t+1}, s52
v_pk_min_u16 v{t+1}, v{t+1}, s53
v_pk_lshrrev_b16 v{t}, s51, v{t}
v_pk_mad_u16 v{t+1}, v{t}, s54, v{t+1}
v_and_b32 v{t+2}, 0xffff, v{t+1}
v_lshrrev_b32 v{t+3}, 16, v{t+1}""".split("\n")]
            f.append(('ds',f"ds_read_u16_d16_hi v{u}, v{t+2} offset:{XL}",('U',P,p)))
            f.append(('ds',f"ds_read_u16_d16_hi v{u+1}, v{t+3} offset:{XL}",('U',P,p)))
            F.append(f)
            d=48+32*st+8*(p>>2)+(p&3)
            s=[('w',('U',P,p)),('v',f"v_mul_f32 v{r}, v{r}, v{u}"),('v',f"v_mul_f32 v{r+1}, v{r+1}, v{u+1}"),('v',f"v_cvt_pk_bf16_f32 v{d}, v{r}, v{r+1}")]
            if p&3==3:
                g=48+32*st+8*(p>>2)
                if P<4: s.append(('ds',f"ds_write_b128 v9, v[{g}:{g+3}] offset:{4096*P+18432*(p>>3)+1024*((p>>2)&1)}",('W',P)))
                else: s.append(('ds',f"ds_write_b128 v14, v[{g}:{g+3}] offset:{1024*((p>>2)&1)}",('W',P)))
            S.append(s)
        out=[('wb',P)]
        LAG=4
        for p in range(nu+LAG):
            if p<nu: out+=F[p]
            if p>=LAG: out+=S[p-LAG]
        return out
    side=[]
    def ring(n): return 112+4*(n%6)
    for s in range(8):
        P,kh=s>>1,s&1
        def fr(n): a(f"ds_read_b128 v[{ring(n)}:{ring(n)+3}], v8 offset:{36864*(s&1)+1024*n}"); lq.push(('F',s,n))
        for n in range(RA): fr(n)
        pre=dma_items(s+1)+(bias_items(P) if kh==0 else [])
        if s==0: pre+=xn_items(PRE,36)
        if kh==0 and P>0:
            side=mish_items(P-1); emit(side, 24)
        side=pre+side
        for n in range(18):
            if n+RA<18: fr(n+RA)
            ks=18*kh+n
            assert seen.get(('X',ks))==2
            vq.wait(('X',ks)); lq.wait(('F',s,n))
            for r in range(2):
                d=48+32*(P&1)+16*r
                c="0" if ks==0 else f"v[{d}:{d+15}]"
                a(f"v_mfma_f32_32x32x16_bf16 v[{d}:{d+15}], v[{ring(n)}:{ring(n)+3}], {X(r,ks)}, {c}")
                emit(side, SIDE)
        if kh==1: emit(side, 10000)
        assert seen.get(('D',s+1))==9
        vq.wait(('D',s+1))
        a("s_barrier")
    bias(4)
    a(f"""s_lshl_b32 s57, s24, 11
s_add_u32 s57, s57, s55
s_lshr_b32 s58, s24, 1
s_add_u32 s58, s58, 16
s_lshl_b32 s58, s58, 11
s_add_u32 s58, s58, s55
s_lshl_b32 s44, s20, 10
s_mul_i32 s59, s21, 4718592
s_add_u32 s44, s44, s59
s_lshl_b32 s59, s24, 18
s_add_u32 s59, s59, s44
v_add_u32 v12, s59, v7
s_lshr_b32 s59, s24, 1
s_add_u32 s59, s59, 16
s_lshl_b32 s59, s59, 18
s_and_b32 s66, s24, 1
s_lshl_b32 s66, s66, 17
s_add_u32 s59, s59, s66
s_add_u32 s59, s59, s44
v_add_u32 v13, s59, v7""")
    NR=16
    frs=[(T,ks) for T in range(5) for ks in range(18)]
    def issue_load(n):
        T,ks=frs[n]
        rg=192+4*(n%NR)
        off=(ks>>1)*73728+(ks&1)*1024+(8192*T if T<4 else 0)
        a(f"s_add_u32 s67, s{57 if T<4 else 58}, {off}\nbuffer_load_dwordx4 v[{rg}:{rg+3}], v7, s[8:11], s67 offen")
        vq.push(('L',n))
    for n in range(NR): issue_load(n)
    a("s_cmp_eq_u32 s23, 1\ns_cbranch_scc1 KF_J1")
    sv=(list(vq.q),list(lq.q))
    for j in range(2):
        vq.q[:],lq.q[:]=list(sv[0]),list(sv[1])
        if j: a("KF_J1:")
        def fr(n): a(f"ds_read_b128 v[{ring(n)}:{ring(n)+3}], v7 offset:{1024*n}"); lq.push(('F',8,n))
        for n in range(RA): fr(n)
        side=mish_items(3); emit(side,24)
        for n in range(36):
            if n+RA<36: fr(n+RA)
            lq.wait(('F',8,n))
            c="0" if n==0 else "v[48:63]"
            a(f"v_mfma_f32_32x32x16_bf16 v[48:63], v[{ring(n)}:{ring(n)+3}], {X(j,n)}, {c}")
            emit(side, 2*SIDE)
        emit(side,10000)
        if j==0: a("s_branch KF_J2")
    a("KF_J2:\ns_nop 7\ns_nop 7\ns_nop 7")
    side=mish_items(4); emit(side,10000)
    lq.all()
    a(f"""s_barrier
s_memtime s[64:65]
s_waitcnt lgkmcnt(0)
v_add_u32 v9, {EX}, v7
v_add_u32 v14, 36864, v9""")
    def areg(rt,ks):
        return f"a[{64*rt+4*ks}:{64*rt+4*ks+3}]" if ks<16 else f"v[{160+8*rt+4*(ks-16)}:{163+8*rt+4*(ks-16)}]"
    for rt in range(4):
        for ks in range(18):
            a(f"ds_read_b128 {areg(rt,ks)}, v{9 if rt<2 else 14} offset:{18432*(rt%2)+1024*ks}")
            if (rt*18+ks)%8==7: a("s_waitcnt lgkmcnt(4)")
    a("s_waitcnt lgkmcnt(0)")
    def stores(T):
        o=[]
        for r in range(4 if T<4 else 2):
            for g in range(4):
                rg=16+64*(T%2)+16*r+4*g
                if T<4: o.append(f"s_mov_b32 s70, {1048576*T+65536*r+16384*g}\nbuffer_store_dwordx4 v[{rg}:{rg+3}], v12, s[28:31], s70 offen")
                else: o.append(f"s_mov_b32 s70, {65536*r+16384*g}\nbuffer_store_dwordx4 v[{rg}:{rg+3}], v13, s[28:31], s70 offen")
        return o
    def tile(T, rts, pend):
        for ks in range(18):
            n=T*18+ks
            vq.wait(('L',n))
            rg=192+4*(n%NR)
            for i,rt in enumerate(rts):
                d=16+64*(T%2)+16*i
                c="0" if ks==0 else f"v[{d}:{d+15}]"
                a(f"v_mfma_f32_32x32x16_bf16 v[{d}:{d+15}], v[{rg}:{rg+3}], {areg(rt,ks)}, {c}")
            if n+NR<len(frs): issue_load(n+NR)
            if pend and ks>=1:
                a(pend.pop(0)); vq.push(('S',0))
        while pend: a(pend.pop(0)); vq.push(('S',0))
    pend=[]
    for T in range(4):
        tile(T,[0,1,2,3],pend); pend=stores(T)
    a("s_and_b32 s66, s24, 1\ns_cmp_eq_u32 s66, 1\ns_cbranch_scc1 KF_H1")
    q0=list(vq.q); p0=list(pend)
    tile(4,[0,1],pend); a("s_branch KF_H2\nKF_H1:")
    vq.q[:]=q0
    tile(4,[2,3],p0); a("KF_H2:\ns_nop 7\ns_nop 7\ns_nop 7")
    for s in stores(4): a(s)
    a(f"""s_waitcnt vmcnt(0)
s_memtime s[66:67]
s_waitcnt lgkmcnt(0)
s_cmp_ge_u32 s2, 6
s_cbranch_scc1 KF_END
s_and_b32 s70, s2, 1
s_cmp_lg_u32 s70, 0
s_cbranch_scc1 KF_END
s_lshr_b32 s71, s2, 1
s_sub_u32 s62, s62, s60
s_sub_u32 s64, s64, s60
s_sub_u32 s66, s66, s60
s_lshl_b32 s68, s71, 4
s_add_u32 s68, s68, {ST}
v_mov_b32 v1, s68
v_mov_b32 v2, s62
v_mov_b32 v3, s64
v_mov_b32 v4, s66
s_getreg_b32 s69, hwreg(HW_REG_XCC_ID)
v_mov_b32 v5, s69
global_store_dwordx4 v1, v[2:5], s[4:5]""")
    a("KF_END:\ns_endpgm")
    return a.text()
```

```python
from gen_common import *
import gen_k1d as gen_k1
from gen_conv3 import gen_k4t
from gen_k3d import gen_k3d
from gen_k2m import gen_k2k as gen_k2g
from gen_v3 import *
import sys
from gen_k1e import gen_k1e
k1,TOT=gen_k1e()
k3=gen_k3d()
ref=open(f"cdna_kernels/{NAME}.s.ref").read().split("\n")
out="\n".join(l for l in ref if l.startswith(";") and "@launch" not in l)+"\n"
out+=f"; @launch kernel=k1_kernel grid=({TOT},1,1) block=(256,1,1) lds=10240\n"
out+="; @launch kernel=k2f_kernel grid=(256,1,1) block=(256,1,1) lds=157184\n"
out+="; @launch kernel=k3c_kernel grid=(1728,1,1) block=(256,1,1) lds=47104\n"
out+="; @launch kernel=k4f_kernel grid=(288,1,1) block=(256,1,1) lds=9216\n"
out+='.amdgcn_target "amdgcn-amd-amdhsa--gfx950"\n.text\n'
def stamp(t, n, idx):
    st=f"""    s_cmp_lg_u32 s2, 0
    s_cbranch_scc1 STK{idx}
    s_load_dwordx2 s[96:97], s[0:1], 120
    s_memrealtime s[98:99]
    s_waitcnt lgkmcnt(0)
    v_mov_b32 v1, {ST+48+4*idx}
    v_mov_b32 v2, s98
    global_store_dword v1, v2, s[96:97]
STK{idx}:
"""
    return t.replace(n+":\n", n+":\n"+st, 1)
for idx,(n,t) in enumerate((("k1_kernel",k1),("k2f_kernel",gen_k2g()),("k3c_kernel",k3),("k4f_kernel",gen_k4t()))):
    t=stamp(t,n,idx)
    out+=f".globl {n}\n.p2align 8\n.type {n},@function\n"+t
out+='.section .rodata,"a"\n'
for n,v,ac in (("k1_kernel",64,64),("k2f_kernel",512,256),("k3c_kernel",116,116),("k4f_kernel",64,64)):
    out+=".p2align 6\n"+kd(n,v,102,ac)
open(sys.argv[1] if len(sys.argv)>1 else f"cdna_kernels/{NAME}.s","w").write(out)
```

```python
from gen_common import *
from gen_v3 import XP, KR, img_role, tab_role
import gen_k1e
KD=KR; KDA=4224; KDS=2*KDA
TBL=0; LA=5760; TL=6144; K1LDS=TL+12288
def kgen_role(a):
    a("""K1_KGEN:
s_load_dwordx8 s[8:15], s[0:1], 8
s_load_dwordx4 s[16:19], s[0:1], 40
s_load_dwordx2 s[20:21], s[0:1], 56
s_waitcnt lgkmcnt(0)
s_lshl_b32 s22, s2, 8
v_lshlrev_b32 v1, 1, v0
v_add_u32 v1, s22, v1
v_cmp_gt_u32 vcc, 128, v0
s_and_saveexec_b64 s[24:25], vcc
global_load_ushort v2, v1, s[8:9]
global_load_ushort v3, v1, s[10:11]
global_load_ushort v4, v1, s[12:13]
global_load_ushort v5, v1, s[14:15]
global_load_ushort v6, v1, s[16:17]
global_load_ushort v7, v1, s[18:19]
s_lshl_b32 s23, s2, 1
v_mov_b32 v8, s23
global_load_ushort v8, v8, s[20:21]
s_mov_b64 exec, s[24:25]
v_and_b32 v12, 63, v0
v_lshrrev_b32 v13, 6, v0
v_and_b32 v14, 15, v12
v_lshrrev_b32 v15, 4, v12
v_lshl_add_u32 v16, v13, 5, v15
v_lshlrev_b32 v16, 4, v16
v_and_b32 v17, 7, v14
v_lshrrev_b32 v18, 3, v14
v_lshl_add_u32 v20, v18, 7, v17
v_and_b32 v17, 3, v14
v_lshlrev_b32 v17, 1, v17
v_bfe_u32 v18, v14, 2, 1
v_lshl_add_u32 v17, v18, 7, v17
v_add_u32 v17, 256, v17
v_and_b32 v18, 1, v14
v_lshlrev_b32 v18, 2, v18
v_bfe_u32 v19, v14, 1, 2
v_lshl_add_u32 v18, v19, 7, v18
v_add_u32 v18, 512, v18
v_cmp_gt_u32 vcc, 8, v14
v_cndmask_b32 v21, v18, v17, vcc
v_lshlrev_b32 v17, 7, v14
v_add_u32 v17, 1024, v17
v_mov_b32 v18, 2056
v_cmp_gt_u32 vcc, 9, v14
v_cndmask_b32 v22, v18, v17, vcc
v_lshlrev_b32 v23, 3, v14
v_cmp_gt_u32 vcc, 16, v0
s_and_saveexec_b64 s[24:25], vcc
v_lshlrev_b32 v17, 2, v14""")
    a(f"""ds_write_b32 v17, v20 offset:{LA}
ds_write_b32 v17, v21 offset:{LA+64}
ds_write_b32 v17, v22 offset:{LA+128}
s_mov_b64 exec, s[24:25]
v_cvt_f32_u32 v20, v20
v_cvt_f32_u32 v21, v21
v_cvt_f32_u32 v22, v22
v_cvt_f32_u32 v23, v23
v_cmp_gt_u32 vcc, 128, v0
s_and_saveexec_b64 s[24:25], vcc
s_waitcnt vmcnt(0)
v_lshlrev_b32 v2, 16, v2
v_lshlrev_b32 v3, 16, v3
v_lshlrev_b32 v4, 16, v4
v_lshlrev_b32 v5, 16, v5
v_lshlrev_b32 v6, 16, v6
v_lshlrev_b32 v7, 16, v7
v_lshlrev_b32 v8, 16, v8
v_mul_f32 v8, 0x3fb8aa3b, v8
v_exp_f32 v8, v8
s_nop 0""")
    bf16_rne(a, 8, 8, 9)
    a("""v_mul_f32 v2, v8, v2
v_mul_f32 v3, v8, v3
v_mul_f32 v4, v8, v4
v_mul_f32 v5, v8, v5
v_mul_f32 v10, v6, v4
v_fma_f32 v10, -v7, v5, v10
v_mul_f32 v11, v6, v5
v_fma_f32 v11, v7, v4, v11
v_mov_b32 v8, v2
v_mul_f32 v9, 0x3e22f983, v3
v_lshlrev_b32 v1, 4, v0
ds_write_b128 v1, v[8:11]
s_mov_b64 exec, s[24:25]
s_waitcnt lgkmcnt(0)
s_barrier""")
    for t in range(4): a(f"ds_read_b128 v[{36+4*t}:{39+4*t}], v16 offset:{64*t}")
    for t in range(8):
        pb=36+4*(t%4)
        ar,ai,wr,wi = pb,pb+1,pb+2,pb+3
        T=lambda e,k: 52+3*e+k
        a(f"s_waitcnt lgkmcnt({3 if t<5 else 7-t})")
        for e in range(4): a(f"v_mul_f32 v{T(e,0)}, v{ar}, v{20+e}\nv_mul_f32 v{T(e,1)}, v{ai}, v{20+e}")
        for e in range(4): a(f"v_mul_f32 v{T(e,0)}, 0x3fb8aa3b, v{T(e,0)}\nv_fract_f32 v{T(e,1)}, v{T(e,1)}")
        for e in range(4): a(f"v_exp_f32 v{T(e,0)}, v{T(e,0)}\nv_sin_f32 v{T(e,2)}, v{T(e,1)}\nv_cos_f32 v{T(e,1)}, v{T(e,1)}")
        for e in range(4): a(f"v_mul_f32 v{T(e,1)}, v{T(e,0)}, v{T(e,1)}\nv_mul_f32 v{T(e,2)}, v{T(e,0)}, v{T(e,2)}")
        for e in range(3): a(f"v_mul_f32 v{T(e,0)}, v{wi}, v{T(e,2)}")
        for e in range(3): a(f"v_fma_f32 v{T(e,0)}, v{wr}, v{T(e,1)}, -v{T(e,0)}")
        for e in range(3): a(f"v_mul_f32 v{T(e,1)}, v{wi}, v{T(e,1)}")
        for e in range(3): a(f"v_fma_f32 v{T(e,1)}, -v{wr}, v{T(e,2)}, -v{T(e,1)}")
        if t<4: a(f"ds_read_b128 v[{pb}:{pb+3}], v16 offset:{64*(t+4)}")
        a("s_nop 1")
        for e in range(3):
            c = "0" if t==0 else f"v[{24+4*e}:{27+4*e}]"
            a(f"v_mfma_f32_16x16x4_f32 v[{24+4*e}:{27+4*e}], v{T(e,0)}, v{T(3,1)}, {c}")
        for e in range(3):
            a(f"v_mfma_f32_16x16x4_f32 v[{24+4*e}:{27+4*e}], v{T(e,1)}, v{T(3,2)}, v[{24+4*e}:{27+4*e}]")
        a("s_nop 1")
    a(f"""s_nop 7
s_nop 7
v_mul_u32_u24 v17, 3072, v13
v_lshl_add_u32 v17, v12, 4, v17
ds_write_b128 v17, v[24:27] offset:{TL}
ds_write_b128 v17, v[28:31] offset:{TL+1024}
ds_write_b128 v17, v[32:35] offset:{TL+2048}
s_mov_b32 s26, {(-0x3f7f*4)&0xffffffff}
s_mov_b32 s27, 0x3f7f3f7f
s_mov_b32 s28, 0x00020002
s_waitcnt lgkmcnt(0)
s_barrier
v_cmp_gt_u32 vcc, 192, v0
s_and_saveexec_b64 s[24:25], vcc
v_lshlrev_b32 v17, 10, v13
v_lshl_add_u32 v17, v12, 4, v17
ds_read_b128 v[24:27], v17 offset:{TL}
ds_read_b128 v[28:31], v17 offset:{TL+3072}
ds_read_b128 v[32:35], v17 offset:{TL+6144}
ds_read_b128 v[36:39], v17 offset:{TL+9216}
v_lshlrev_b32 v18, 6, v13
v_lshl_add_u32 v18, v15, 4, v18
ds_read_b128 v[40:43], v18 offset:{LA}
v_lshlrev_b32 v19, 3, v14
v_mov_b32 v18, 0x4501
s_waitcnt lgkmcnt(0)""")
    for r in range(4):
        a(f"""v_add_f32 v{24+r}, v{24+r}, v{28+r}
v_add_f32 v{32+r}, v{32+r}, v{36+r}
v_add_f32 v{24+r}, v{24+r}, v{32+r}
v_add_u32 v{40+r}, v{40+r}, v19
v_cvt_f32_u32 v44, v{40+r}
v_lshrrev_b32 v44, 16, v44
v_max_u32 v44, 0x3f7f, v44
v_cmp_lt_u32 vcc, 2048, v{40+r}
v_cndmask_b32 v44, v44, v18, vcc
v_lshl_add_u32 v{40+r}, v44, 2, s26
ds_write_b32 v{40+r}, v{24+r} offset:{TBL}""")
    a("""s_mov_b64 exec, s[24:25]
v_lshlrev_b32 v1, 3, v0
v_sub_u32 v1, 2047, v1
v_cvt_f32_u32 v2, v1""")
    srd(a, 8, 4, KD, 576*KDS)
    a(f"s_mul_i32 s22, s2, {KDS}")
    fl={1:"1.0",2:"2.0",3:"0x40400000",4:"4.0",5:"0x40a00000",6:"0x40c00000",7:"0x40e00000"}
    for m in range(4):
        x0 = "v2" if m==0 else "v3"
        if m: a(f"v_subrev_f32 v3, {fl[2*m]}, v2")
        a(f"""v_subrev_f32 v4, {fl[2*m+1]}, v2
v_cvt_pk_bf16_f32 v5, {x0}, v4
v_pk_sub_u16 v5, v5, s27 clamp
v_pk_lshlrev_b16 v5, s28, v5
v_and_b32 v{44+2*m}, 0xffff, v5
v_lshrrev_b32 v{45+2*m}, 16, v5""")
    a("s_waitcnt lgkmcnt(0)\ns_barrier")
    for u in range(8): a(f"ds_read_b32 v{24+u}, v{44+u} offset:{TBL}")
    a(f"""v_lshlrev_b32 v1, 4, v0
v_add_u32 v1, 32, v1
v_cmp_gt_u32 vcc, 16, v0
s_and_saveexec_b64 s[24:25], vcc
s_cbranch_execz K1_KZ
v_and_b32 v2, 7, v0
v_lshlrev_b32 v3, 4, v2
v_add_u32 v4, 4096, v3
v_cmp_gt_u32 vcc, 2, v2
v_cndmask_b32 v3, v4, v3, vcc
v_lshrrev_b32 v2, 3, v0
v_mul_u32_u24 v2, {KDA}, v2
v_add_u32 v3, v3, v2
v_mov_b32 v4, 0
v_mov_b32 v5, 0
v_mov_b32 v6, 0
v_mov_b32 v7, 0
buffer_store_dwordx4 v[4:7], v3, s[8:11], s22 offen
K1_KZ:
s_mov_b64 exec, s[24:25]""")
    for m in range(4):
        a(f"""s_waitcnt lgkmcnt({6-2*m})
v_cvt_pk_bf16_f32 v{32+m}, v{24+2*m}, v{25+2*m}
v_lshlrev_b32 v40, 16, v{32+m}
v_and_b32 v41, 0xffff0000, v{32+m}
v_sub_f32 v40, v{24+2*m}, v40
v_sub_f32 v41, v{25+2*m}, v41
v_cvt_pk_bf16_f32 v{36+m}, v40, v41""")
    a(f"""buffer_store_dwordx4 v[32:35], v1, s[8:11], s22 offen
v_add_u32 v1, {KDA}, v1
buffer_store_dwordx4 v[36:39], v1, s[8:11], s22 offen
s_branch K1_END""")

def gen_k1f():
    t,TOT=gen_k1e.gen_k1e()
    head="k1_kernel:\n    s_load_dwordx2 s[4:5], s[0:1], 120\n    s_mov_b32 s90, 0x7fff\n"
    assert t.startswith(head)
    t=head+"    s_cmp_lt_u32 s2, 576\n    s_cbranch_scc1 K1_KGEN\n    s_sub_u32 s2, s2, 576\n"+t[len(head):]
    b=Asm(); kgen_role(b)
    tail="K1_END:\n    s_endpgm\n"
    assert t.endswith(tail)
    return t[:-len(tail)]+b.text()+tail, TOT+576
```

```python
from gen_common import *
from gen_v3 import *
import gen_conv3
from gen_conv3 import conv_steps, KC
from gen_k1f import KD, KDA, KDS
C=2063
def gen_k3f(MIX=True):
    a=Asm()
    a("""k3c_kernel:
s_load_dwordx2 s[4:5], s[0:1], 120
s_load_dwordx2 s[6:7], s[0:1], 64
s_mov_b32 s90, 0x7fff
s_cmp_ge_u32 s2, 1728
s_cbranch_scc1 K3_END""")
    if MIX:
        a("""s_mul_hi_u32 s3, s2, 0x55555556
s_mul_i32 s20, s3, 3
s_cmp_eq_u32 s20, s2
s_cbranch_scc1 K3C
s_sub_u32 s2, s2, s3
s_add_u32 s2, s2, 575
s_branch K3R
K3C:
s_mov_b32 s2, s3""")
    else:
        a("s_cmp_ge_u32 s2, 576\ns_cbranch_scc1 K3R")
    a("s_waitcnt lgkmcnt(0)")
    srd(a, 36, 4, XP, 576*5120); srd(a, 28, 4, YAT, L*D*2); srd(a, 32, 6, 0, D*2); srd(a, 8, 4, KD, 576*KDS)
    a(f"""v_lshlrev_b32 v4, 4, v0
s_mul_i32 s41, s2, {KDS}
s_add_u32 s42, s41, {KDA}
v_lshrrev_b32 v1, 6, v0
s_nop 0
v_readfirstlane_b32 s20, v1
buffer_load_dwordx4 v[16:19], v4, s[8:11], s41 offen offset:32
buffer_load_dwordx4 v[20:23], v4, s[8:11], s41 offen offset:36
buffer_load_dwordx4 v[24:27], v4, s[8:11], s41 offen offset:40
buffer_load_dwordx4 v[28:31], v4, s[8:11], s42 offen offset:32
buffer_load_dwordx4 v[32:35], v4, s[8:11], s42 offen offset:36
buffer_load_dwordx4 v[36:39], v4, s[8:11], s42 offen offset:40
s_mul_i32 s40, s2, 5120
v_add_u32 v6, 4096, v4
v_min_u32 v6, 5104, v6
buffer_load_dwordx4 v[40:43], v4, s[36:39], s40 offen
buffer_load_dwordx4 v[44:47], v6, s[36:39], s40 offen
s_lshl_b32 s27, s2, 1
v_mov_b32 v5, s27
buffer_load_ushort v5, v5, s[32:35], 0 offen
v_and_b32 v2, 63, v0
v_lshlrev_b32 v3, 4, v2
s_cmp_lg_u32 s20, 3
s_cbranch_scc1 K3_P1
v_cmp_gt_u32 vcc, 6, v2
s_and_saveexec_b64 s[24:25], vcc
v_add_u32 v7, 4096, v3
v_cmp_gt_u32 vcc, 2, v2
v_cndmask_b32 v7, v7, v3, vcc
buffer_load_dwordx4 v[64:67], v7, s[8:11], s41 offen
buffer_load_dwordx4 v[68:71], v7, s[8:11], s41 offen offset:4
buffer_load_dwordx4 v[72:75], v7, s[8:11], s41 offen offset:8
buffer_load_dwordx4 v[76:79], v7, s[8:11], s42 offen
buffer_load_dwordx4 v[80:83], v7, s[8:11], s42 offen offset:4
buffer_load_dwordx4 v[84:87], v7, s[8:11], s42 offen offset:8
s_mov_b64 exec, s[24:25]
K3_P1:
v_mov_b32 v8, 0
v_mov_b32 v9, 0
v_mov_b32 v10, 0
v_mov_b32 v11, 0
ds_write_b128 v4, v[8:11]
ds_write_b128 v4, v[8:11] offset:1024
v_and_b32 v10, 31, v2
v_lshrrev_b32 v11, 5, v2
v_lshlrev_b32 v12, 3, v11
v_sub_u32 v12, v12, v10
v_add_u32 v12, {C}, v12
v_and_b32 v13, 3, v12
v_mul_u32_u24 v13, {KP}, v13
v_and_b32 v12, -4, v12
v_lshl_add_u32 v12, v12, 1, v13
v_add_u32 v12, {KC}, v12
v_mul_u32_u24 v14, 80, v10
v_lshl_add_u32 v14, v11, 4, v14""")
    def build(b, va, off):
        for h in range(2):
            A,B,Cc=b+12*h,b+12*h+4,b+12*h+8
            a(f"ds_write_b128 v{va}, v[{A}:{A+3}] offset:{off+(4*h+0)*KP}\nds_write_b128 v{va}, v[{B}:{B+3}] offset:{off+(4*h+2)*KP}")
            for k in range(4): a(f"v_alignbit_b32 v{48+k}, v{B+k}, v{A+k}, 16")
            for k in range(4): a(f"v_alignbit_b32 v{52+k}, v{Cc+k}, v{B+k}, 16")
            a(f"ds_write_b128 v{va}, v[48:51] offset:{off+(4*h+1)*KP}\nds_write_b128 v{va}, v[52:55] offset:{off+(4*h+3)*KP}")
            if h==0: a("s_nop 1")
    a("""s_cmp_lg_u32 s20, 3
s_cbranch_scc1 K3_P2
v_cmp_gt_u32 vcc, 6, v2
s_and_saveexec_b64 s[24:25], vcc
s_waitcnt vmcnt(0)""")
    build(64, 7, KC)
    a("s_mov_b64 exec, s[24:25]\nK3_P2:\ns_waitcnt vmcnt(3)")
    build(16, 4, KC+32)
    a("""s_waitcnt vmcnt(1)
ds_write_b128 v4, v[40:43] offset:5120
ds_write_b128 v6, v[44:47] offset:5120""")
    for r in range(32): a(f"v_mov_b32 v{64+r}, 0")
    t=gen_conv3.gen_k3c()
    t=t[t.index("    s_waitcnt vmcnt(0) lgkmcnt(0)\n    s_barrier\n    s_cmp_eq_u32 s20, 1"):]
    return a.text()+t
```

```python
from gen_common import *
import gen_k1d as gen_k1
from gen_conv3 import gen_k4t
from gen_k3f import gen_k3f as gen_k3d
from gen_k2m import gen_k2k as gen_k2g
from gen_v3 import *
import sys
from gen_k1f import gen_k1f as gen_k1e, K1LDS
k1,TOT=gen_k1e()
k3=gen_k3d()
ref=open(f"cdna_kernels/{NAME}.s.ref").read().split("\n")
out="\n".join(l for l in ref if l.startswith(";") and "@launch" not in l)+"\n"
out+=f"; @launch kernel=k1_kernel grid=({TOT},1,1) block=(256,1,1) lds={K1LDS}\n"
out+="; @launch kernel=k2f_kernel grid=(256,1,1) block=(256,1,1) lds=157184\n"
out+="; @launch kernel=k3c_kernel grid=(1728,1,1) block=(256,1,1) lds=47104\n"
out+="; @launch kernel=k4f_kernel grid=(288,1,1) block=(256,1,1) lds=9216\n"
out+='.amdgcn_target "amdgcn-amd-amdhsa--gfx950"\n.text\n'
def stamp(t, n, idx):
    st=f"""    s_cmp_lg_u32 s2, 0
    s_cbranch_scc1 STK{idx}
    s_load_dwordx2 s[96:97], s[0:1], 120
    s_memrealtime s[98:99]
    s_waitcnt lgkmcnt(0)
    v_mov_b32 v1, {ST+48+4*idx}
    v_mov_b32 v2, s98
    global_store_dword v1, v2, s[96:97]
STK{idx}:
"""
    return t.replace(n+":\n", n+":\n"+st, 1)
for idx,(n,t) in enumerate((("k1_kernel",k1),("k2f_kernel",gen_k2g()),("k3c_kernel",k3),("k4f_kernel",gen_k4t()))):
    t=stamp(t,n,idx)
    out+=f".globl {n}\n.p2align 8\n.type {n},@function\n"+t
out+='.section .rodata,"a"\n'
for n,v,ac in (("k1_kernel",64,64),("k2f_kernel",512,256),("k3c_kernel",96,96),("k4f_kernel",64,64)):
    out+=".p2align 6\n"+kd(n,v,102,ac)
open(sys.argv[1] if len(sys.argv)>1 else f"cdna_kernels/{NAME}.s","w").write(out)
```

```python
import sys
from gen_v3 import ST
s=open(sys.argv[1]).read()
ids=[int(x) for x in sys.argv[3].split(",")]
k3=s.index("k3c_kernel:\n")
pre,t=s[:k3],s[k3:]
t=t.replace("k3c_kernel:\n","k3c_kernel:\n    s_memrealtime s[80:81]\n",1)
old="    s_waitcnt vmcnt(0) lgkmcnt(0)\n    s_barrier\n    s_cmp_eq_u32 s20, 1"
assert t.count(old)==1
t=t.replace(old,"    s_waitcnt vmcnt(0) lgkmcnt(0)\n    s_barrier\n    s_memrealtime s[82:83]\n    s_waitcnt lgkmcnt(0)\n    s_cmp_eq_u32 s20, 1")
old="K3_F:\n"
t=t.replace(old,old+"    s_memrealtime s[84:85]\n    s_waitcnt lgkmcnt(0)\n",1)
old="    s_branch K3_END\nK3R:"
assert t.count(old)==1
sel="".join(f"    s_cmp_eq_u32 s2, {i}\n    s_cselect_b32 s94, {ST+16*k}, s94\n" for k,i in enumerate(ids))
new=f"""    s_mov_b32 s94, 0
{sel}    s_cmp_eq_u32 s94, 0
    s_cbranch_scc1 K3_END
    s_cmp_lg_u32 s20, {sys.argv[4] if len(sys.argv)>4 else 0}
    s_cbranch_scc1 K3_END
    s_waitcnt vmcnt(0) lgkmcnt(0)
    s_memrealtime s[86:87]
    s_waitcnt lgkmcnt(0)
    v_mov_b32 v1, s94
    v_mov_b32 v2, s80
    v_mov_b32 v3, s82
    v_mov_b32 v4, s84
    v_mov_b32 v5, s86
    global_store_dwordx4 v1, v[2:5], s[4:5]
    s_branch K3_END
K3R:"""
t=t.replace(old,new)
s=pre+t
s=s.replace("    s_cmp_ge_u32 s2, 6\n    s_cbranch_scc1 KF_END\n","    s_branch KF_END\n")
open(sys.argv[2],'w').write(s)
```

```python
from gen_common import *
from gen_v3 import XP, KR, img_role, tab_role
import gen_k1e
KD=KR; KDA=4224; KDS=2*KDA
TBL=0; LA=5760; TL=6144; K1LDS=TL+12288
def kgen_role(a):
    a("""K1_KGEN:
s_load_dwordx8 s[8:15], s[0:1], 8
s_load_dwordx4 s[16:19], s[0:1], 40
s_load_dwordx2 s[20:21], s[0:1], 56
s_waitcnt lgkmcnt(0)
s_lshl_b32 s22, s2, 8
v_lshlrev_b32 v1, 1, v0
v_add_u32 v1, s22, v1
v_cmp_gt_u32 vcc, 128, v0
s_and_saveexec_b64 s[24:25], vcc
global_load_ushort v2, v1, s[8:9]
global_load_ushort v3, v1, s[10:11]
global_load_ushort v4, v1, s[12:13]
global_load_ushort v5, v1, s[14:15]
global_load_ushort v6, v1, s[16:17]
global_load_ushort v7, v1, s[18:19]
s_lshl_b32 s23, s2, 1
v_mov_b32 v8, s23
global_load_ushort v8, v8, s[20:21]
s_mov_b64 exec, s[24:25]
v_and_b32 v12, 63, v0
v_lshrrev_b32 v13, 6, v0
v_and_b32 v14, 15, v12
v_lshrrev_b32 v15, 4, v12
v_lshl_add_u32 v16, v13, 5, v15
v_lshlrev_b32 v16, 4, v16
v_and_b32 v17, 7, v14
v_lshrrev_b32 v18, 3, v14
v_lshl_add_u32 v20, v18, 7, v17
v_and_b32 v17, 3, v14
v_lshlrev_b32 v17, 1, v17
v_bfe_u32 v18, v14, 2, 1
v_lshl_add_u32 v17, v18, 7, v17
v_add_u32 v17, 256, v17
v_and_b32 v18, 1, v14
v_lshlrev_b32 v18, 2, v18
v_bfe_u32 v19, v14, 1, 2
v_lshl_add_u32 v18, v19, 7, v18
v_add_u32 v18, 512, v18
v_cmp_gt_u32 vcc, 8, v14
v_cndmask_b32 v21, v18, v17, vcc
v_lshlrev_b32 v17, 7, v14
v_add_u32 v17, 1024, v17
v_mov_b32 v18, 2056
v_cmp_gt_u32 vcc, 9, v14
v_cndmask_b32 v22, v18, v17, vcc
v_lshlrev_b32 v23, 3, v14
v_cmp_gt_u32 vcc, 16, v0
s_and_saveexec_b64 s[24:25], vcc
v_lshlrev_b32 v17, 2, v14""")
    a(f"""ds_write_b32 v17, v20 offset:{LA}
ds_write_b32 v17, v21 offset:{LA+64}
ds_write_b32 v17, v22 offset:{LA+128}
s_mov_b64 exec, s[24:25]
v_cvt_f32_u32 v20, v20
v_cvt_f32_u32 v21, v21
v_cvt_f32_u32 v22, v22
v_cvt_f32_u32 v23, v23
v_cmp_gt_u32 vcc, 128, v0
s_and_saveexec_b64 s[24:25], vcc
s_waitcnt vmcnt(0)
v_lshlrev_b32 v2, 16, v2
v_lshlrev_b32 v3, 16, v3
v_lshlrev_b32 v4, 16, v4
v_lshlrev_b32 v5, 16, v5
v_lshlrev_b32 v6, 16, v6
v_lshlrev_b32 v7, 16, v7
v_lshlrev_b32 v8, 16, v8
v_mul_f32 v8, 0x3fb8aa3b, v8
v_exp_f32 v8, v8
s_nop 0""")
    bf16_rne(a, 8, 8, 9)
    a("""v_mul_f32 v2, v8, v2
v_mul_f32 v3, v8, v3
v_mul_f32 v4, v8, v4
v_mul_f32 v5, v8, v5
v_mul_f32 v10, v6, v4
v_fma_f32 v10, -v7, v5, v10
v_mul_f32 v11, v6, v5
v_fma_f32 v11, v7, v4, v11
v_mov_b32 v8, v2
v_mul_f32 v9, 0x3e22f983, v3
v_lshlrev_b32 v1, 4, v0
ds_write_b128 v1, v[8:11]
s_mov_b64 exec, s[24:25]
s_waitcnt lgkmcnt(0)
s_barrier""")
    for t in range(4): a(f"ds_read_b128 v[{36+4*t}:{39+4*t}], v16 offset:{64*t}")
    for t in range(8):
        pb=36+4*(t%4)
        ar,ai,wr,wi = pb,pb+1,pb+2,pb+3
        T=lambda e,k: 52+3*e+k
        a(f"s_waitcnt lgkmcnt({3 if t<5 else 7-t})")
        for e in range(4): a(f"v_mul_f32 v{T(e,0)}, v{ar}, v{20+e}\nv_mul_f32 v{T(e,1)}, v{ai}, v{20+e}")
        for e in range(4): a(f"v_mul_f32 v{T(e,0)}, 0x3fb8aa3b, v{T(e,0)}\nv_fract_f32 v{T(e,1)}, v{T(e,1)}")
        for e in range(4): a(f"v_exp_f32 v{T(e,0)}, v{T(e,0)}\nv_sin_f32 v{T(e,2)}, v{T(e,1)}\nv_cos_f32 v{T(e,1)}, v{T(e,1)}")
        for e in range(4): a(f"v_mul_f32 v{T(e,1)}, v{T(e,0)}, v{T(e,1)}\nv_mul_f32 v{T(e,2)}, v{T(e,0)}, v{T(e,2)}")
        for e in range(3): a(f"v_mul_f32 v{T(e,0)}, v{wi}, v{T(e,2)}")
        for e in range(3): a(f"v_fma_f32 v{T(e,0)}, v{wr}, v{T(e,1)}, -v{T(e,0)}")
        for e in range(3): a(f"v_mul_f32 v{T(e,1)}, v{wi}, v{T(e,1)}")
        for e in range(3): a(f"v_fma_f32 v{T(e,1)}, -v{wr}, v{T(e,2)}, -v{T(e,1)}")
        if t<4: a(f"ds_read_b128 v[{pb}:{pb+3}], v16 offset:{64*(t+4)}")
        a("s_nop 1")
        for e in range(3):
            c = "0" if t==0 else f"v[{24+4*e}:{27+4*e}]"
            a(f"v_mfma_f32_16x16x4_f32 v[{24+4*e}:{27+4*e}], v{T(e,0)}, v{T(3,1)}, {c}")
        for e in range(3):
            a(f"v_mfma_f32_16x16x4_f32 v[{24+4*e}:{27+4*e}], v{T(e,1)}, v{T(3,2)}, v[{24+4*e}:{27+4*e}]")
        a("s_nop 1")
    a(f"""s_nop 7
s_nop 7
v_mul_u32_u24 v17, 3072, v13
v_lshl_add_u32 v17, v12, 4, v17
ds_write_b128 v17, v[24:27] offset:{TL}
ds_write_b128 v17, v[28:31] offset:{TL+1024}
ds_write_b128 v17, v[32:35] offset:{TL+2048}
s_mov_b32 s26, {(-0x3f7f*4)&0xffffffff}
s_mov_b32 s27, 0x3f7f3f7f
s_mov_b32 s28, 0x00020002
s_waitcnt lgkmcnt(0)
s_barrier
v_cmp_gt_u32 vcc, 192, v0
s_and_saveexec_b64 s[24:25], vcc
v_lshlrev_b32 v17, 10, v13
v_lshl_add_u32 v17, v12, 4, v17
ds_read_b128 v[24:27], v17 offset:{TL}
ds_read_b128 v[28:31], v17 offset:{TL+3072}
ds_read_b128 v[32:35], v17 offset:{TL+6144}
ds_read_b128 v[36:39], v17 offset:{TL+9216}
v_lshlrev_b32 v18, 6, v13
v_lshl_add_u32 v18, v15, 4, v18
ds_read_b128 v[40:43], v18 offset:{LA}
v_lshlrev_b32 v19, 3, v14
v_mov_b32 v18, 0x4501
s_waitcnt lgkmcnt(0)""")
    for r in range(4):
        a(f"""v_add_f32 v{24+r}, v{24+r}, v{28+r}
v_add_f32 v{32+r}, v{32+r}, v{36+r}
v_add_f32 v{24+r}, v{24+r}, v{32+r}
v_add_u32 v{40+r}, v{40+r}, v19
v_cvt_f32_u32 v44, v{40+r}
v_lshrrev_b32 v44, 16, v44
v_max_u32 v44, 0x3f7f, v44
v_cmp_lt_u32 vcc, 2048, v{40+r}
v_cndmask_b32 v44, v44, v18, vcc
v_lshl_add_u32 v{40+r}, v44, 2, s26
ds_write_b32 v{40+r}, v{24+r} offset:{TBL}""")
    a("""s_mov_b64 exec, s[24:25]
v_lshlrev_b32 v1, 3, v0
v_sub_u32 v1, 2047, v1
v_cvt_f32_u32 v2, v1""")
    srd(a, 8, 4, KD, 576*KDS)
    a(f"s_mul_i32 s22, s2, {KDS}")
    fl={1:"1.0",2:"2.0",3:"0x40400000",4:"4.0",5:"0x40a00000",6:"0x40c00000",7:"0x40e00000"}
    for m in range(4):
        x0 = "v2" if m==0 else "v3"
        if m: a(f"v_subrev_f32 v3, {fl[2*m]}, v2")
        a(f"""v_subrev_f32 v4, {fl[2*m+1]}, v2
v_cvt_pk_bf16_f32 v5, {x0}, v4
v_pk_sub_u16 v5, v5, s27 clamp
v_pk_lshlrev_b16 v5, s28, v5
v_and_b32 v{44+2*m}, 0xffff, v5
v_lshrrev_b32 v{45+2*m}, 16, v5""")
    a("s_waitcnt lgkmcnt(0)\ns_barrier")
    for u in range(8): a(f"ds_read_b32 v{24+u}, v{44+u} offset:{TBL}")
    a(f"""v_lshlrev_b32 v1, 4, v0
v_cmp_gt_u32 vcc, 16, v0
s_and_saveexec_b64 s[24:25], vcc
s_cbranch_execz K1_KZ
v_and_b32 v2, 7, v0
v_lshlrev_b32 v3, 4, v2
v_add_u32 v3, 4096, v3
v_lshrrev_b32 v2, 3, v0
v_mul_u32_u24 v2, {KDA}, v2
v_add_u32 v3, v3, v2
v_mov_b32 v4, 0
v_mov_b32 v5, 0
v_mov_b32 v6, 0
v_mov_b32 v7, 0
buffer_store_dwordx4 v[4:7], v3, s[8:11], s22 offen
K1_KZ:
s_mov_b64 exec, s[24:25]""")
    for m in range(4):
        a(f"""s_waitcnt lgkmcnt({6-2*m})
v_cvt_pk_bf16_f32 v{32+m}, v{24+2*m}, v{25+2*m}
v_lshlrev_b32 v40, 16, v{32+m}
v_and_b32 v41, 0xffff0000, v{32+m}
v_sub_f32 v40, v{24+2*m}, v40
v_sub_f32 v41, v{25+2*m}, v41
v_cvt_pk_bf16_f32 v{36+m}, v40, v41""")
    a(f"""buffer_store_dwordx4 v[32:35], v1, s[8:11], s22 offen
v_add_u32 v1, {KDA}, v1
buffer_store_dwordx4 v[36:39], v1, s[8:11], s22 offen
s_branch K1_END""")

def gen_k1f():
    t,TOT=gen_k1e.gen_k1e()
    head="k1_kernel:\n    s_load_dwordx2 s[4:5], s[0:1], 120\n    s_mov_b32 s90, 0x7fff\n"
    assert t.startswith(head)
    t=head+"    s_cmp_lt_u32 s2, 576\n    s_cbranch_scc1 K1_KGEN\n    s_sub_u32 s2, s2, 576\n"+t[len(head):]
    b=Asm(); kgen_role(b)
    tail="K1_END:\n    s_endpgm\n"
    assert t.endswith(tail)
    return t[:-len(tail)]+b.text()+tail, TOT+576
```

```python
from gen_common import *
from gen_v3 import XP, YAT, PART, YB
from gen_k1g import KD, KDA, KDS
C=2047; KP=4160; XB=2480; KC=XB+5120; K3LDS=40960
def conv_steps(a, qs):
    qmax=qs[-1]
    steps=[]; i=0
    dlof=lambda q:(q+1)//2 if q%2 else q//2
    while i<len(qs):
        if dlof(qs[i])>31 and i+1<len(qs): steps.append(qs[i:i+2]); i+=2
        else: steps.append(qs[i:i+1]); i+=1
    def reads(n):
        o=16+24*(n%2); ops=[]; cnt=0
        for q in steps[n]:
            dl=dlof(q); ks=q%2
            k8=4*(qmax-q)
            a(f"ds_read2_b64 v[{o}:{o+3}], v12 offset0:{k8} offset1:{k8+1}\nds_read2_b64 v[{o+4}:{o+7}], v13 offset0:{k8} offset1:{k8+1}")
            kb=o; o+=8; cnt+=2
            for j in ([0,1] if dl<=31 else [1]):
                off=XB+80*(32*j-dl)+32*ks
                assert off>=0
                a(f"ds_read_b128 v[{o}:{o+3}], v14 offset:{off}")
                ops.append((j,kb,o)); o+=4; cnt+=1
        return ops,cnt
    ops,_=reads(0)
    for n in range(len(steps)):
        if n+1<len(steps):
            on,c=reads(n+1); a(f"s_waitcnt lgkmcnt({c})")
        else: a("s_waitcnt lgkmcnt(0)")
        for h in range(2):
            for (j,kb,xo) in ops:
                a(f"v_mfma_f32_32x32x16_bf16 v[{64+16*j}:{79+16*j}], v[{kb+4*h}:{kb+4*h+3}], v[{xo}:{xo+3}], v[{64+16*j}:{79+16*j}]")
        if n+1<len(steps): ops=on

def gen_k3g(MIX=0, rng=((-1,25),(25,51),(51,85),(85,127))):
    a=Asm()
    a("""k3c_kernel:
s_load_dwordx2 s[4:5], s[0:1], 120
s_load_dwordx2 s[6:7], s[0:1], 64
s_mov_b32 s90, 0x7fff
s_cmp_ge_u32 s2, 1728
s_cbranch_scc1 K3_END""")
    if MIX==1:
        a("""s_cmp_ge_u32 s2, 864
s_cbranch_scc1 K3R
s_mul_hi_u32 s3, s2, 0x55555556
s_mul_i32 s20, s3, 3
s_add_u32 s20, s20, 2
s_cmp_lg_u32 s20, s2
s_cbranch_scc1 K3C
s_add_u32 s2, s3, 576
s_branch K3R
K3C:
s_sub_u32 s2, s2, s3""")
    else:
        a("s_cmp_ge_u32 s2, 576\ns_cbranch_scc1 K3R")
    a("s_waitcnt lgkmcnt(0)")
    srd(a, 36, 4, XP, 576*5120); srd(a, 28, 4, YAT, L*D*2); srd(a, 32, 6, 0, D*2); srd(a, 8, 4, KD, 576*KDS)
    a(f"""v_lshlrev_b32 v4, 4, v0
s_mul_i32 s41, s2, {KDS}
s_add_u32 s42, s41, {KDA}
v_lshrrev_b32 v1, 6, v0
s_nop 0
v_readfirstlane_b32 s20, v1
buffer_load_dwordx4 v[16:19], v4, s[8:11], s41 offen
buffer_load_dwordx4 v[20:23], v4, s[8:11], s41 offen offset:4
buffer_load_dwordx4 v[24:27], v4, s[8:11], s41 offen offset:8
buffer_load_dwordx4 v[28:31], v4, s[8:11], s42 offen
buffer_load_dwordx4 v[32:35], v4, s[8:11], s42 offen offset:4
buffer_load_dwordx4 v[36:39], v4, s[8:11], s42 offen offset:8
s_mul_i32 s40, s2, 5120
v_add_u32 v6, 4096, v4
v_min_u32 v6, 5104, v6
buffer_load_dwordx4 v[40:43], v4, s[36:39], s40 offen
buffer_load_dwordx4 v[44:47], v6, s[36:39], s40 offen
s_lshl_b32 s27, s2, 1
v_mov_b32 v5, s27
buffer_load_ushort v5, v5, s[32:35], 0 offen
v_and_b32 v2, 63, v0
v_lshlrev_b32 v3, 4, v2
v_min_u32 v7, {XB-16}, v4
v_bfe_u32 v8, v0, 2, 3
v_mul_u32_u24 v8, {KP}, v8
v_and_b32 v9, 3, v0
v_lshl_add_u32 v8, v9, 4, v8
v_add_u32 v8, {KC+4096}, v8
v_cmp_gt_u32 vcc, 160, v0
v_cndmask_b32 v7, v8, v7, vcc
v_mov_b32 v8, 0
v_mov_b32 v9, 0
v_mov_b32 v10, 0
v_mov_b32 v11, 0
ds_write_b128 v7, v[8:11]
s_nop 0
v_and_b32 v10, 31, v2
v_lshrrev_b32 v11, 5, v2
v_lshlrev_b32 v12, 3, v11
v_sub_u32 v12, v12, v10
v_add_u32 v12, {C}, v12
v_and_b32 v13, 3, v12
v_mul_u32_u24 v13, {KP}, v13
v_and_b32 v12, -4, v12
v_lshl_add_u32 v12, v12, 1, v13
v_add_u32 v12, {KC}, v12
v_mul_u32_u24 v14, 80, v10
v_lshl_add_u32 v14, v11, 4, v14""")
    for r in range(32): a(f"v_mov_b32 v{64+r}, 0")
    for h in range(2):
        A,B,Cc=16+12*h,16+12*h+4,16+12*h+8
        T=48+8*h
        a(f"s_waitcnt vmcnt({6-3*h})")
        a(f"ds_write_b128 v4, v[{A}:{A+3}] offset:{KC+(4*h+0)*KP}\nds_write_b128 v4, v[{B}:{B+3}] offset:{KC+(4*h+2)*KP}")
        for k in range(4): a(f"v_alignbit_b32 v{T+k}, v{B+k}, v{A+k}, 16")
        for k in range(4): a(f"v_alignbit_b32 v{T+4+k}, v{Cc+k}, v{B+k}, 16")
        a(f"ds_write_b128 v4, v[{T}:{T+3}] offset:{KC+(4*h+1)*KP}\nds_write_b128 v4, v[{T+4}:{T+7}] offset:{KC+(4*h+3)*KP}")
    a(f"""s_waitcnt vmcnt(1)
ds_write_b128 v4, v[40:43] offset:{XB}
ds_write_b128 v6, v[44:47] offset:{XB}
s_waitcnt vmcnt(0) lgkmcnt(0)
s_barrier
s_cmp_eq_u32 s20, 1
s_cbranch_scc1 K3_W1
s_cmp_eq_u32 s20, 2
s_cbranch_scc1 K3_W2
s_cmp_eq_u32 s20, 3
s_cbranch_scc1 K3_W3""")
    for w,(qa,qb) in enumerate(rng):
        if w: a(f"K3_W{w}:")
        qs=list(range(qa,qb))
        a(f"v_subrev_u32 v12, {32*qs[-1]}, v12\nv_add_u32 v13, {4*KP}, v12")
        conv_steps(a, qs)
        a("s_branch K3_F")
    a(f"""K3_F:
s_nop 7
s_nop 7
s_barrier
s_lshl_b32 s21, s20, 13
v_add_u32 v4, s21, v3""")
    for g in range(8): a(f"ds_write_b128 v4, v[{64+4*g}:{67+4*g}] offset:{KC+1024*g}")
    a(f"""s_waitcnt lgkmcnt(0)
s_barrier
s_lshl_b32 s21, s20, 11
v_add_u32 v4, s21, v3""")
    for e in range(2):
        for ww in range(4): a(f"ds_read_b128 v[{16+16*e+4*ww}:{19+16*e+4*ww}], v4 offset:{KC+8192*ww+1024*e}")
    a(f"""s_lshr_b32 s21, s20, 1
s_lshl_b32 s21, s21, 10
s_and_b32 s22, s20, 1
s_lshl_b32 s22, s22, 4
s_add_u32 s21, s21, s22
v_lshlrev_b32 v6, 5, v10
v_lshl_add_u32 v6, v11, 2, v6
v_add_u32 v6, s21, v6
v_lshrrev_b32 v7, 5, v6
v_and_b32 v9, 31, v6
v_mul_u32_u24 v7, 80, v7
v_lshl_add_u32 v7, v9, 1, v7
v_lshlrev_b32 v6, 1, v6
ds_read_b64 v[48:49], v7 offset:{XB}
ds_read_b64 v[50:51], v7 offset:{XB+16}
s_lshl_b32 s23, s2, 12
s_waitcnt vmcnt(0) lgkmcnt(0)
v_lshlrev_b32 v5, 16, v5""")
    for e in range(2):
        for r in range(4):
            b=16+16*e+r
            a(f"v_add_f32 v{b}, v{b}, v{b+4}\nv_add_f32 v{b+8}, v{b+8}, v{b+12}\nv_add_f32 v{b}, v{b}, v{b+8}")
            bf16_rne(a, b, b, 7)
            src=48+2*e+r//2
            a(f"v_lshlrev_b32 v8, 16, v{src}" if r%2==0 else f"v_and_b32 v8, 0xffff0000, v{src}")
            a("v_mul_f32 v8, v8, v5")
            bf16_rne(a, 8, 8, 7)
            a(f"v_add_f32 v{b}, v{b}, v8")
        b=16+16*e
        a(f"v_cvt_pk_bf16_f32 v52, v{b}, v{b+1}\nv_cvt_pk_bf16_f32 v53, v{b+2}, v{b+3}\nbuffer_store_dwordx2 v[52:53], v6, s[28:31], s23 offen offset:{16*e}\ns_nop 1")
    a("s_branch K3_END")
    import gen_conv3
    t=gen_conv3.gen_k3c()
    t=t[t.index("K3R:\n"):]
    return a.text()+t
```

```python
from gen_common import *
import gen_k1d as gen_k1
from gen_conv3 import gen_k4t
from gen_k3g import gen_k3g as gen_k3d, K3LDS
from gen_k2m import gen_k2k as gen_k2g
from gen_v3 import *
import sys
from gen_k1g import gen_k1f as gen_k1e, K1LDS
k1,TOT=gen_k1e()
k3=gen_k3d(int(sys.argv[2]) if len(sys.argv)>2 else 0)
ref=open(f"cdna_kernels/{NAME}.s.ref").read().split("\n")
out="\n".join(l for l in ref if l.startswith(";") and "@launch" not in l)+"\n"
out+=f"; @launch kernel=k1_kernel grid=({TOT},1,1) block=(256,1,1) lds={K1LDS}\n"
out+="; @launch kernel=k2f_kernel grid=(256,1,1) block=(256,1,1) lds=157184\n"
out+=f"; @launch kernel=k3c_kernel grid=(1728,1,1) block=(256,1,1) lds={K3LDS}\n"
out+="; @launch kernel=k4f_kernel grid=(288,1,1) block=(256,1,1) lds=9216\n"
out+='.amdgcn_target "amdgcn-amd-amdhsa--gfx950"\n.text\n'
def stamp(t, n, idx):
    st=f"""    s_cmp_lg_u32 s2, 0
    s_cbranch_scc1 STK{idx}
    s_load_dwordx2 s[96:97], s[0:1], 120
    s_memrealtime s[98:99]
    s_waitcnt lgkmcnt(0)
    v_mov_b32 v1, {ST+48+4*idx}
    v_mov_b32 v2, s98
    global_store_dword v1, v2, s[96:97]
STK{idx}:
"""
    return t.replace(n+":\n", n+":\n"+st, 1)
for idx,(n,t) in enumerate((("k1_kernel",k1),("k2f_kernel",gen_k2g()),("k3c_kernel",k3),("k4f_kernel",gen_k4t()))):
    t=stamp(t,n,idx)
    out+=f".globl {n}\n.p2align 8\n.type {n},@function\n"+t
out+='.section .rodata,"a"\n'
for n,v,ac in (("k1_kernel",64,64),("k2f_kernel",512,256),("k3c_kernel",96,96),("k4f_kernel",64,64)):
    out+=".p2align 6\n"+kd(n,v,102,ac)
open(sys.argv[1] if len(sys.argv)>1 else f"cdna_kernels/{NAME}.s","w").write(out)
```

```python
import sys
from gen_v3 import ST
s=open(sys.argv[1]).read()
old="K3_END:\n    s_endpgm"
new=f"""K3_END:
    s_mov_b64 exec, -1
    s_waitcnt vmcnt(0) lgkmcnt(0)
    s_load_dwordx2 s[96:97], s[0:1], 120
    s_memrealtime s[98:99]
    s_waitcnt lgkmcnt(0)
    s_and_b32 s98, s98, 0x1fffff
    s_lshl_b32 s98, s98, 11
    s_or_b32 s98, s98, s2
    s_and_b32 s92, s92, 0x1fffff
    s_lshl_b32 s92, s92, 11
    s_or_b32 s92, s92, s2
    s_cmp_ge_u32 s2, 576
    s_cselect_b32 s94, 4, 0
    s_add_u32 s94, s94, {ST}
    v_cmp_eq_u32 vcc, 0, v0
    s_and_saveexec_b64 s[90:91], vcc
    v_mov_b32 v1, s94
    v_mov_b32 v2, s98
    v_mov_b32 v3, s92
    global_atomic_umax v1, v2, s[96:97]
    global_atomic_umax v1, v3, s[96:97] offset:8
    s_endpgm"""
assert old in s
s=s.replace(old,new)
s=s.replace("k3c_kernel:\n","k3c_kernel:\n    s_memrealtime s[92:93]\n",1)
old="    s_cmp_ge_u32 s2, 6\n    s_cbranch_scc1 KF_END\n"
assert old in s
s=s.replace(old,f"""    s_cmp_ge_u32 s2, 1
    s_cbranch_scc1 KF_END
    v_mov_b32 v1, {ST}
    v_mov_b32 v2, 0
    v_mov_b32 v3, 0
    v_mov_b32 v4, 0
    v_mov_b32 v5, 0
    global_store_dwordx4 v1, v[2:5], s[4:5]
    s_branch KF_END
""")
open(sys.argv[2],'w').write(s)
```

```python
import sys
from gen_v3 import ST, KR
from gen_common import ACT
SA=ACT
s=open(sys.argv[1]).read()
old="K3_END:\n    s_endpgm"
new=f"""K3_END:
    s_mov_b64 exec, -1
    s_waitcnt vmcnt(0) lgkmcnt(0)
    s_load_dwordx2 s[96:97], s[0:1], 120
    s_memrealtime s[98:99]
    s_waitcnt lgkmcnt(0)
    s_and_b32 s98, s98, 0x1fffff
    s_lshl_b32 s98, s98, 11
    s_or_b32 s98, s98, s2
    s_and_b32 s92, s92, 0x1fffff
    s_lshl_b32 s92, s92, 11
    s_or_b32 s92, s92, s2
    s_lshl_b32 s94, s2, 3
    s_add_u32 s94, s94, {SA}
    v_cmp_eq_u32 vcc, 0, v0
    s_and_saveexec_b64 s[90:91], vcc
    v_mov_b32 v1, s94
    v_mov_b32 v2, s98
    v_mov_b32 v3, s92
    global_store_dwordx2 v1, v[2:3], s[96:97]
    s_endpgm"""
assert old in s
s=s.replace(old,new)
s=s.replace("k3c_kernel:\n","k3c_kernel:\n    s_memrealtime s[92:93]\n",1)
old="    s_cmp_ge_u32 s2, 6\n    s_cbranch_scc1 KF_END\n"
assert old in s
s=s.replace(old,"    s_branch KF_END\n")
old="    s_cmp_lg_u32 s2, 0\n    s_cbranch_scc1 K4_END\n    s_load_dwordx2 s[40:41], s[0:1], 112\n"
assert old in s
t="    s_cmp_lg_u32 s2, 0\n    s_cbranch_scc1 K4_END\n    v_and_b32 v1, 63, v0\n    v_lshlrev_b32 v1, 3, v1\n"+f"    v_add_u32 v1, {SA}, v1\n    s_waitcnt vmcnt(0)\n"
for i in range(27):
    t+=f"    global_load_dwordx2 v[{4+2*i}:{5+2*i}], v1, s[4:5]\n    v_add_u32 v1, 512, v1\n"
t+="    s_waitcnt vmcnt(0)\n"
for i in range(1,9): t+=f"    v_max_u32 v4, v4, v{4+2*i}\n    v_max_u32 v5, v5, v{5+2*i}\n"
for i in range(10,27): t+=f"    v_max_u32 v22, v22, v{4+2*i}\n    v_max_u32 v23, v23, v{5+2*i}\n"
t+="    v_mov_b32 v6, v5\n    v_mov_b32 v5, v22\n    v_mov_b32 v7, v23\n"
for op in ("row_shr:1 row_mask:0xf","row_shr:2 row_mask:0xf","row_shr:4 row_mask:0xf","row_shr:8 row_mask:0xf","row_bcast:15 row_mask:0xa","row_bcast:31 row_mask:0xc"):
    t+="    s_nop 1\n"
    for i in range(4): t+=f"    v_max_u32_dpp v{4+i}, v{4+i}, v{4+i} {op} bank_mask:0xf bound_ctrl:0\n"
t+="    s_nop 1\n"
for i in range(4): t+=f"    v_readlane_b32 s{50+i}, v{4+i}, 63\n"
t+="    s_nop 3\n"
for i in range(4): t+=f"    v_mov_b32 v{4+i}, s{50+i}\n"
t+=f"    v_mov_b32 v1, {ST}\n    global_store_dwordx4 v1, v[4:7], s[4:5]\n    s_waitcnt vmcnt(0)\n    s_barrier\n    s_load_dwordx2 s[40:41], s[0:1], 112\n"
s=s.replace(old,t)
open(sys.argv[2],'w').write(s)
```

```python
from gen_common import *
from gen_v3 import *
EX = 83456
class Q:
    def __init__(s, a, name, mx): s.a=a; s.q=[]; s.n=name; s.mx=mx
    def push(s, tag): s.q.append(tag)
    def wait(s, tag):
        if tag not in s.q: return
        idx=max(i for i,x in enumerate(s.q) if x==tag)
        allow=min(len(s.q)-1-idx, s.mx)
        s.a(f"s_waitcnt {s.n}({allow})")
        s.q[:]=s.q[len(s.q)-allow:] if allow else []
    def all(s):
        if s.q: s.a(f"s_waitcnt {s.n}(0)"); s.q[:]=[]

def gen_k2k(SIDE=4, RA=5, PRE=6, VMW=2):
    a = Asm()
    a(f"""k2f_kernel:
s_load_dwordx2 s[4:5], s[0:1], 120
s_mov_b32 s90, 0x7fff
s_cmp_ge_u32 s2, 256
s_cbranch_scc1 KF_END
s_waitcnt lgkmcnt(0)
s_memtime s[60:61]
s_waitcnt lgkmcnt(0)
s_and_b32 s20, s2, 7
s_lshl_b32 s20, s20, 1
s_bfe_u32 s22, s2, 0x10003
s_add_u32 s20, s20, s22
s_lshr_b32 s21, s2, 4""")
    srd(a, 8, 4, WI, 144*73728); srd(a, 12, 4, XN, L*D*2); srd(a, 28, 4, PART, 16*L*D*4); srd(a, 32, 4, B1F, F*4); srd(a, 44, 4, TB, 12288)
    a(f"""v_and_b32 v1, 63, v0
v_lshrrev_b32 v2, 6, v0
s_nop 0
v_readfirstlane_b32 s24, v2
v_lshrrev_b32 v4, 5, v1
v_lshlrev_b32 v7, 4, v1
s_lshr_b32 s22, s24, 1
s_and_b32 s23, s24, 1
s_lshl_b32 s25, s21, 2
s_lshl_b32 s26, s22, 1
s_add_u32 s26, s25, s26
s_mul_i32 s26, s26, 36864
v_add_u32 v6, s26, v7
s_mul_i32 s27, s24, 9216
s_mul_i32 s36, s20, 9
s_mul_i32 s37, s36, 73728
s_add_u32 s55, s37, 36864
s_add_u32 s38, s37, s27
s_add_u32 s38, s38, {8*73728}
s_mul_i32 s39, s22, 73728
s_add_u32 s37, s37, s39
s_mul_i32 s39, s23, 9216
s_add_u32 s37, s37, s39
s_mul_i32 s39, s23, 18432
v_add_u32 v8, s39, v7
s_lshl_b32 s42, s36, 7
v_lshlrev_b32 v10, 4, v4
v_add_u32 v10, s42, v10
s_lshl_b32 s39, s23, 7
v_add_u32 v11, s39, v10
v_add_u32 v10, 1024, v10
s_mul_i32 s39, s22, 36864
s_lshl_b32 s40, s23, 11
s_add_u32 s39, s39, s40
s_add_u32 s39, s39, {EX}
v_add_u32 v9, s39, v7
s_mul_i32 s39, s24, 18432
s_add_u32 s39, s39, {EX+16384}
v_add_u32 v14, s39, v7""")
    seen={}
    vq=Q(a,"vmcnt",63); lq=Q(a,"lgkmcnt",15)
    def dma_items(s):
        sg = 38 if s==8 else 37
        go = 0 if s==8 else (s>>1)*2*73728+(s&1)*18432
        o=[]
        for g in range(3):
            for k in range(4 if g<2 else 1):
                pre = f"s_add_u32 s40, s27, {36864*(s&1)+4096*g}\ns_add_u32 s41, s{sg}, {go+4096*g}\ns_mov_b32 m0, s40\ns_nop 0\n" if k==0 else ""
                o.append(('vm',pre+f"buffer_load_dwordx4 v7, s[8:11], s41 offen offset:{1024*k} lds",('D',s)))
        return o
    def bias_items(P):
        o=[]
        for q in range(4):
            rg=136+16*(P&1)+4*q
            if P<4: o.append(('vm',f"buffer_load_dwordx4 v[{rg}:{rg+3}], v11, s[32:35], 0 offen offset:{256*P+32*q}",('B',P)))
            else: o.append(('vm',f"buffer_load_dwordx4 v[{rg}:{rg+3}], v10, s[32:35], 0 offen offset:{32*q}",('B',P)))
        return o
    def xn_items(k0,k1):
        o=[]
        for ks in range(k0,k1):
            for r in range(2):
                of=36864*r+1024*ks
                o.append(('vm',f"s_mov_b32 s49, {of&~4095}\nbuffer_load_dwordx4 {X(r,ks)}, v6, s[12:15], s49 offen offset:{of&4095}",('X',ks)))
        return o
    def emit(items, n):
        k=0
        while items and k<n:
            it=items.pop(0)
            if it[0]=='v': a(it[1]); k+=1
            elif it[0]=='ds': a(it[1]); lq.push(it[2]); k+=1
            elif it[0]=='vm': a(it[1]); vq.push(it[2]); k+=VMW; seen[it[2]]=seen.get(it[2],0)+1
            elif it[0]=='w': lq.wait(it[1])
            elif it[0]=='wb':
                assert seen.get(('B',it[1]))==4
                vq.wait(('B',it[1]))
    def dma(s): emit(dma_items(s),10000)
    def bias(P): emit(bias_items(P),10000)
    def X(r,ks):
        m=36*r+ks
        return f"a[{4*m}:{4*m+3}]" if m<64 else f"v[{16+4*(m-64)}:{19+4*(m-64)}]"
    dma(0)
    a("s_lshl_b32 s48, s24, 10")
    for j in range(3):
        a(f"s_add_u32 s49, s48, {4096*j}\ns_add_u32 s40, s49, {LUT_LDS}\ns_mov_b32 m0, s40\ns_nop 0\nbuffer_load_dwordx4 v7, s[44:47], s49 offen lds"); vq.push(('D',0))
    a(f"s_mov_b32 s50, 0x00010001\ns_mov_b32 s51, 0x000f000f\ns_mov_b32 s52, {(2*LUT_LO)*0x10001}\ns_mov_b32 s53, {(2*(LUT_LO+LUT_N-1))*0x10001}\ns_mov_b32 s54, {(2*LUT_N)*0x10001}")
    emit(xn_items(0,PRE),10000)
    for r in range(16): a(f"v_mov_b32 v{168+r}, 0")
    vq.wait(('D',0))
    a("s_barrier\ns_memtime s[62:63]\ns_waitcnt lgkmcnt(0)")
    XL = LUT_LDS - 2*LUT_LO
    def mish_items(P):
        st=P&1; nu=16 if P<4 else 8
        F=[];S=[]
        for p in range(nu):
            r=48+32*st+2*p; b=136+16*st+2*(p&7); t=184+4*(p%2); u=168+2*(p%8)
            f=[('v',x) for x in f"""v_cvt_pk_bf16_f32 v{t}, v{r}, v{r+1}
v_lshlrev_b32 v{r}, 16, v{t}
v_and_b32 v{r+1}, 0xffff0000, v{t}
v_add_f32 v{r}, v{r}, v{b}
v_add_f32 v{r+1}, v{r+1}, v{b+1}
v_cvt_pk_bf16_f32 v{t}, v{r}, v{r+1}
v_lshlrev_b32 v{r}, 16, v{t}
v_and_b32 v{r+1}, 0xffff0000, v{t}
v_pk_lshlrev_b16 v{t+1}, s50, v{t}
v_pk_max_u16 v{t+1}, v{t+1}, s52
v_pk_min_u16 v{t+1}, v{t+1}, s53
v_pk_lshrrev_b16 v{t}, s51, v{t}
v_pk_mad_u16 v{t+1}, v{t}, s54, v{t+1}
v_and_b32 v{t+2}, 0xffff, v{t+1}
v_lshrrev_b32 v{t+3}, 16, v{t+1}""".split("\n")]
            f.append(('ds',f"ds_read_u16_d16_hi v{u}, v{t+2} offset:{XL}",('U',P,p)))
            f.append(('ds',f"ds_read_u16_d16_hi v{u+1}, v{t+3} offset:{XL}",('U',P,p)))
            F.append(f)
            d=48+32*st+8*(p>>2)+(p&3)
            s=[('w',('U',P,p)),('v',f"v_mul_f32 v{r}, v{r}, v{u}"),('v',f"v_mul_f32 v{r+1}, v{r+1}, v{u+1}"),('v',f"v_cvt_pk_bf16_f32 v{d}, v{r}, v{r+1}")]
            if p&3==3:
                g=48+32*st+8*(p>>2)
                if P<4: s.append(('ds',f"ds_write_b128 v9, v[{g}:{g+3}] offset:{4096*P+18432*(p>>3)+1024*((p>>2)&1)}",('W',P)))
                else: s.append(('ds',f"ds_write_b128 v14, v[{g}:{g+3}] offset:{1024*((p>>2)&1)}",('W',P)))
            S.append(s)
        out=[('wb',P)]
        LAG=4
        for p in range(nu+LAG):
            if p<nu: out+=F[p]
            if p>=LAG: out+=S[p-LAG]
        return out
    side=[]
    def ring(n): return 112+4*(n%6)
    for s in range(8):
        P,kh=s>>1,s&1
        def fr(n): a(f"ds_read_b128 v[{ring(n)}:{ring(n)+3}], v8 offset:{36864*(s&1)+1024*n}"); lq.push(('F',s,n))
        for n in range(RA): fr(n)
        pre=dma_items(s+1)+(bias_items(P) if kh==0 else [])
        if s==0: pre+=xn_items(PRE,36)
        if kh==0 and P>0:
            side=mish_items(P-1); emit(side, 24)
        side=pre+side
        for n in range(18):
            if n+RA<18: fr(n+RA)
            ks=18*kh+n
            assert seen.get(('X',ks))==2
            vq.wait(('X',ks)); lq.wait(('F',s,n))
            for r in range(2):
                d=48+32*(P&1)+16*r
                c="0" if ks==0 else f"v[{d}:{d+15}]"
                a(f"v_mfma_f32_32x32x16_bf16 v[{d}:{d+15}], v[{ring(n)}:{ring(n)+3}], {X(r,ks)}, {c}")
                emit(side, SIDE)
        if kh==1: emit(side, 10000)
        assert seen.get(('D',s+1))==9
        vq.wait(('D',s+1))
        a("s_barrier")
    bias(4)
    a(f"""s_lshl_b32 s57, s24, 11
s_add_u32 s57, s57, s55
s_lshr_b32 s58, s24, 1
s_add_u32 s58, s58, 16
s_lshl_b32 s58, s58, 11
s_add_u32 s58, s58, s55
s_lshl_b32 s44, s20, 10
s_mul_i32 s59, s21, 2359296
s_add_u32 s44, s44, s59
s_lshl_b32 s59, s24, 17
s_add_u32 s59, s59, s44
v_add_u32 v12, s59, v7
s_lshr_b32 s59, s24, 1
s_add_u32 s59, s59, 16
s_lshl_b32 s59, s59, 17
s_and_b32 s66, s24, 1
s_lshl_b32 s66, s66, 16
s_add_u32 s59, s59, s66
s_add_u32 s59, s59, s44
v_add_u32 v13, s59, v7""")
    NR=16
    frs=[(T,ks) for T in range(5) for ks in range(18)]
    def issue_load(n):
        T,ks=frs[n]
        rg=192+4*(n%NR)
        off=(ks>>1)*73728+(ks&1)*1024+(8192*T if T<4 else 0)
        a(f"s_add_u32 s67, s{57 if T<4 else 58}, {off}\nbuffer_load_dwordx4 v[{rg}:{rg+3}], v7, s[8:11], s67 offen")
        vq.push(('L',n))
    for n in range(NR): issue_load(n)
    a("s_cmp_eq_u32 s23, 1\ns_cbranch_scc1 KF_J1")
    sv=(list(vq.q),list(lq.q))
    for j in range(2):
        vq.q[:],lq.q[:]=list(sv[0]),list(sv[1])
        if j: a("KF_J1:")
        def fr(n): a(f"ds_read_b128 v[{ring(n)}:{ring(n)+3}], v7 offset:{1024*n}"); lq.push(('F',8,n))
        for n in range(RA): fr(n)
        side=mish_items(3); emit(side,24)
        for n in range(36):
            if n+RA<36: fr(n+RA)
            lq.wait(('F',8,n))
            c="0" if n==0 else "v[48:63]"
            a(f"v_mfma_f32_32x32x16_bf16 v[48:63], v[{ring(n)}:{ring(n)+3}], {X(j,n)}, {c}")
            emit(side, 2*SIDE)
        emit(side,10000)
        if j==0: a("s_branch KF_J2")
    a("KF_J2:\ns_nop 7\ns_nop 7\ns_nop 7")
    side=mish_items(4); emit(side,10000)
    lq.all()
    a(f"""s_barrier
s_memtime s[64:65]
s_waitcnt lgkmcnt(0)
v_add_u32 v9, {EX}, v7
v_add_u32 v14, 36864, v9""")
    def areg(rt,ks):
        return f"a[{64*rt+4*ks}:{64*rt+4*ks+3}]" if ks<16 else f"v[{160+8*rt+4*(ks-16)}:{163+8*rt+4*(ks-16)}]"
    for rt in range(4):
        for ks in range(18):
            a(f"ds_read_b128 {areg(rt,ks)}, v{9 if rt<2 else 14} offset:{18432*(rt%2)+1024*ks}")
            if (rt*18+ks)%8==7: a("s_waitcnt lgkmcnt(4)")
    a("s_waitcnt lgkmcnt(0)")
    def stores(T):
        o=[]
        for r in range(4 if T<4 else 2):
            for g in range(2):
                d=16+64*(T%2)+16*r
                cv="".join(f"v_cvt_pk_f16_f32 v{d+4*g+i}, v{d+8*g+2*i}, v{d+8*g+2*i+1}\n" for i in range(4))
                rg=d+4*g
                if T<4: o.append(cv+f"s_mov_b32 s70, {524288*T+32768*r+16384*g}\nbuffer_store_dwordx4 v[{rg}:{rg+3}], v12, s[28:31], s70 offen")
                else: o.append(cv+f"s_mov_b32 s70, {32768*r+16384*g}\nbuffer_store_dwordx4 v[{rg}:{rg+3}], v13, s[28:31], s70 offen")
        return o
    def tile(T, rts, pend):
        for ks in range(18):
            n=T*18+ks
            vq.wait(('L',n))
            rg=192+4*(n%NR)
            for i,rt in enumerate(rts):
                d=16+64*(T%2)+16*i
                c="0" if ks==0 else f"v[{d}:{d+15}]"
                a(f"v_mfma_f32_32x32x16_bf16 v[{d}:{d+15}], v[{rg}:{rg+3}], {areg(rt,ks)}, {c}")
            if n+NR<len(frs): issue_load(n+NR)
            if pend and ks>=1 and ks%2==1:
                a(pend.pop(0)); vq.push(('S',0))
        while pend: a(pend.pop(0)); vq.push(('S',0))
    pend=[]
    for T in range(4):
        tile(T,[0,1,2,3],pend); pend=stores(T)
    a("s_and_b32 s66, s24, 1\ns_cmp_eq_u32 s66, 1\ns_cbranch_scc1 KF_H1")
    q0=list(vq.q); p0=list(pend)
    tile(4,[0,1],pend); a("s_branch KF_H2\nKF_H1:")
    vq.q[:]=q0
    tile(4,[2,3],p0); a("KF_H2:\ns_nop 7\ns_nop 7\ns_nop 7")
    for s in stores(4): a(s)
    a(f"""s_waitcnt vmcnt(0)
s_memtime s[66:67]
s_waitcnt lgkmcnt(0)
s_cmp_ge_u32 s2, 6
s_cbranch_scc1 KF_END
s_and_b32 s70, s2, 1
s_cmp_lg_u32 s70, 0
s_cbranch_scc1 KF_END
s_lshr_b32 s71, s2, 1
s_sub_u32 s62, s62, s60
s_sub_u32 s64, s64, s60
s_sub_u32 s66, s66, s60
s_lshl_b32 s68, s71, 4
s_add_u32 s68, s68, {ST}
v_mov_b32 v1, s68
v_mov_b32 v2, s62
v_mov_b32 v3, s64
v_mov_b32 v4, s66
s_getreg_b32 s69, hwreg(HW_REG_XCC_ID)
v_mov_b32 v5, s69
global_store_dwordx4 v1, v[2:5], s[4:5]""")
    a("KF_END:\ns_endpgm")
    return a.text()
```

```python
from gen_common import *
from gen_v3 import XP, YAT, PART, YB
from gen_k1g import KD, KDA, KDS
C=2047; KP=4160; XB=2480; KC=XB+5120; K3LDS=40960
def conv_steps(a, qs):
    qmax=qs[-1]
    steps=[]; i=0
    dlof=lambda q:(q+1)//2 if q%2 else q//2
    while i<len(qs):
        if dlof(qs[i])>31 and i+1<len(qs): steps.append(qs[i:i+2]); i+=2
        else: steps.append(qs[i:i+1]); i+=1
    def reads(n):
        o=16+24*(n%2); ops=[]; cnt=0
        for q in steps[n]:
            dl=dlof(q); ks=q%2
            k8=4*(qmax-q)
            a(f"ds_read2_b64 v[{o}:{o+3}], v12 offset0:{k8} offset1:{k8+1}\nds_read2_b64 v[{o+4}:{o+7}], v13 offset0:{k8} offset1:{k8+1}")
            kb=o; o+=8; cnt+=2
            for j in ([0,1] if dl<=31 else [1]):
                off=XB+80*(32*j-dl)+32*ks
                assert off>=0
                a(f"ds_read_b128 v[{o}:{o+3}], v14 offset:{off}")
                ops.append((j,kb,o)); o+=4; cnt+=1
        return ops,cnt
    ops,_=reads(0)
    for n in range(len(steps)):
        if n+1<len(steps):
            on,c=reads(n+1); a(f"s_waitcnt lgkmcnt({c})")
        else: a("s_waitcnt lgkmcnt(0)")
        for h in range(2):
            for (j,kb,xo) in ops:
                a(f"v_mfma_f32_32x32x16_bf16 v[{64+16*j}:{79+16*j}], v[{kb+4*h}:{kb+4*h+3}], v[{xo}:{xo+3}], v[{64+16*j}:{79+16*j}]")
        if n+1<len(steps): ops=on

def gen_k3g(MIX=0, rng=((-1,25),(25,51),(51,85),(85,127))):
    a=Asm()
    a("""k3c_kernel:
s_load_dwordx2 s[4:5], s[0:1], 120
s_load_dwordx2 s[6:7], s[0:1], 64
s_mov_b32 s90, 0x7fff
s_cmp_ge_u32 s2, 1152
s_cbranch_scc1 K3_END""")
    if MIX==1:
        a("""s_cmp_ge_u32 s2, 864
s_cbranch_scc1 K3R
s_mul_hi_u32 s3, s2, 0x55555556
s_mul_i32 s20, s3, 3
s_add_u32 s20, s20, 2
s_cmp_lg_u32 s20, s2
s_cbranch_scc1 K3C
s_add_u32 s2, s3, 576
s_branch K3R
K3C:
s_sub_u32 s2, s2, s3""")
    else:
        a("s_cmp_ge_u32 s2, 576\ns_cbranch_scc1 K3R")
    a("s_waitcnt lgkmcnt(0)")
    srd(a, 36, 4, XP, 576*5120); srd(a, 28, 4, YAT, L*D*2); srd(a, 32, 6, 0, D*2); srd(a, 8, 4, KD, 576*KDS)
    a(f"""v_lshlrev_b32 v4, 4, v0
s_mul_i32 s41, s2, {KDS}
s_add_u32 s42, s41, {KDA}
v_lshrrev_b32 v1, 6, v0
s_nop 0
v_readfirstlane_b32 s20, v1
buffer_load_dwordx4 v[16:19], v4, s[8:11], s41 offen
buffer_load_dwordx4 v[20:23], v4, s[8:11], s41 offen offset:4
buffer_load_dwordx4 v[24:27], v4, s[8:11], s41 offen offset:8
buffer_load_dwordx4 v[28:31], v4, s[8:11], s42 offen
buffer_load_dwordx4 v[32:35], v4, s[8:11], s42 offen offset:4
buffer_load_dwordx4 v[36:39], v4, s[8:11], s42 offen offset:8
s_mul_i32 s40, s2, 5120
v_add_u32 v6, 4096, v4
v_min_u32 v6, 5104, v6
buffer_load_dwordx4 v[40:43], v4, s[36:39], s40 offen
buffer_load_dwordx4 v[44:47], v6, s[36:39], s40 offen
s_lshl_b32 s27, s2, 1
v_mov_b32 v5, s27
buffer_load_ushort v5, v5, s[32:35], 0 offen
v_and_b32 v2, 63, v0
v_lshlrev_b32 v3, 4, v2
v_min_u32 v7, {XB-16}, v4
v_bfe_u32 v8, v0, 2, 3
v_mul_u32_u24 v8, {KP}, v8
v_and_b32 v9, 3, v0
v_lshl_add_u32 v8, v9, 4, v8
v_add_u32 v8, {KC+4096}, v8
v_cmp_gt_u32 vcc, 160, v0
v_cndmask_b32 v7, v8, v7, vcc
v_mov_b32 v8, 0
v_mov_b32 v9, 0
v_mov_b32 v10, 0
v_mov_b32 v11, 0
ds_write_b128 v7, v[8:11]
s_nop 0
v_and_b32 v10, 31, v2
v_lshrrev_b32 v11, 5, v2
v_lshlrev_b32 v12, 3, v11
v_sub_u32 v12, v12, v10
v_add_u32 v12, {C}, v12
v_and_b32 v13, 3, v12
v_mul_u32_u24 v13, {KP}, v13
v_and_b32 v12, -4, v12
v_lshl_add_u32 v12, v12, 1, v13
v_add_u32 v12, {KC}, v12
v_mul_u32_u24 v14, 80, v10
v_lshl_add_u32 v14, v11, 4, v14""")
    for r in range(32): a(f"v_mov_b32 v{64+r}, 0")
    for h in range(2):
        A,B,Cc=16+12*h,16+12*h+4,16+12*h+8
        T=48+8*h
        a(f"s_waitcnt vmcnt({6-3*h})")
        a(f"ds_write_b128 v4, v[{A}:{A+3}] offset:{KC+(4*h+0)*KP}\nds_write_b128 v4, v[{B}:{B+3}] offset:{KC+(4*h+2)*KP}")
        for k in range(4): a(f"v_alignbit_b32 v{T+k}, v{B+k}, v{A+k}, 16")
        for k in range(4): a(f"v_alignbit_b32 v{T+4+k}, v{Cc+k}, v{B+k}, 16")
        a(f"ds_write_b128 v4, v[{T}:{T+3}] offset:{KC+(4*h+1)*KP}\nds_write_b128 v4, v[{T+4}:{T+7}] offset:{KC+(4*h+3)*KP}")
    a(f"""s_waitcnt vmcnt(1)
ds_write_b128 v4, v[40:43] offset:{XB}
ds_write_b128 v6, v[44:47] offset:{XB}
s_waitcnt vmcnt(0) lgkmcnt(0)
s_barrier
s_cmp_eq_u32 s20, 1
s_cbranch_scc1 K3_W1
s_cmp_eq_u32 s20, 2
s_cbranch_scc1 K3_W2
s_cmp_eq_u32 s20, 3
s_cbranch_scc1 K3_W3""")
    for w,(qa,qb) in enumerate(rng):
        if w: a(f"K3_W{w}:")
        qs=list(range(qa,qb))
        a(f"v_subrev_u32 v12, {32*qs[-1]}, v12\nv_add_u32 v13, {4*KP}, v12")
        conv_steps(a, qs)
        a("s_branch K3_F")
    a(f"""K3_F:
s_nop 7
s_nop 7
s_barrier
s_lshl_b32 s21, s20, 13
v_add_u32 v4, s21, v3""")
    for g in range(8): a(f"ds_write_b128 v4, v[{64+4*g}:{67+4*g}] offset:{KC+1024*g}")
    a(f"""s_waitcnt lgkmcnt(0)
s_barrier
s_lshl_b32 s21, s20, 11
v_add_u32 v4, s21, v3""")
    for e in range(2):
        for ww in range(4): a(f"ds_read_b128 v[{16+16*e+4*ww}:{19+16*e+4*ww}], v4 offset:{KC+8192*ww+1024*e}")
    a(f"""s_lshr_b32 s21, s20, 1
s_lshl_b32 s21, s21, 10
s_and_b32 s22, s20, 1
s_lshl_b32 s22, s22, 4
s_add_u32 s21, s21, s22
v_lshlrev_b32 v6, 5, v10
v_lshl_add_u32 v6, v11, 2, v6
v_add_u32 v6, s21, v6
v_lshrrev_b32 v7, 5, v6
v_and_b32 v9, 31, v6
v_mul_u32_u24 v7, 80, v7
v_lshl_add_u32 v7, v9, 1, v7
v_lshlrev_b32 v6, 1, v6
ds_read_b64 v[48:49], v7 offset:{XB}
ds_read_b64 v[50:51], v7 offset:{XB+16}
s_lshl_b32 s23, s2, 12
s_waitcnt vmcnt(0) lgkmcnt(0)
v_lshlrev_b32 v5, 16, v5""")
    for e in range(2):
        for r in range(4):
            b=16+16*e+r
            a(f"v_add_f32 v{b}, v{b}, v{b+4}\nv_add_f32 v{b+8}, v{b+8}, v{b+12}\nv_add_f32 v{b}, v{b}, v{b+8}")
            bf16_rne(a, b, b, 7)
            src=48+2*e+r//2
            a(f"v_lshlrev_b32 v8, 16, v{src}" if r%2==0 else f"v_and_b32 v8, 0xffff0000, v{src}")
            a("v_mul_f32 v8, v8, v5")
            bf16_rne(a, 8, 8, 7)
            a(f"v_add_f32 v{b}, v{b}, v8")
        b=16+16*e
        a(f"v_cvt_pk_bf16_f32 v52, v{b}, v{b+1}\nv_cvt_pk_bf16_f32 v53, v{b+2}, v{b+3}\nbuffer_store_dwordx2 v[52:53], v6, s[28:31], s23 offen offset:{16*e}\ns_nop 1")
    a("s_branch K3_END")
    a("""K3R:
s_waitcnt lgkmcnt(0)
s_sub_u32 s3, s2, 576""")
    srd(a, 8, 4, PART, 16*L*D*2); srd(a, 12, 4, YB, L*D*2)
    a("""v_lshrrev_b32 v1, 6, v0
v_lshlrev_b32 v2, 14, v1
v_and_b32 v3, 63, v0
v_lshl_add_u32 v2, v3, 4, v2
s_lshl_b32 s21, s3, 16""")
    for s_ in range(16):
        a(f"s_add_u32 s20, s21, {4096*(s_//4)}\nbuffer_load_dwordx4 v[{8+4*s_}:{11+4*s_}], v2, s[8:11], s20 offen offset:{1024*(s_%4)}")
    a("""s_mul_hi_u32 s22, s3, 0x71c71c8
s_mul_i32 s23, s22, 36
s_sub_u32 s23, s3, s23
s_and_b32 s24, s23, 1
s_lshr_b32 s25, s23, 1
s_lshl_b32 s22, s22, 7
s_lshl_b32 s24, s24, 6
s_add_u32 s22, s22, s24
s_mul_i32 s22, s22, 1152
s_lshl_b32 s25, s25, 6
s_add_u32 s22, s22, s25
v_lshrrev_b32 v4, 1, v1
v_lshlrev_b32 v4, 5, v4
v_and_b32 v5, 31, v0
v_add_u32 v4, v4, v5
v_mul_u32_u24 v4, 1152, v4
v_and_b32 v5, 1, v1
v_lshl_add_u32 v4, v5, 5, v4
v_bfe_u32 v5, v0, 5, 1
v_lshl_add_u32 v4, v5, 3, v4
v_add_u32 v4, s22, v4""")
    def sel(h,two=False):
        if two: return f"op_sel:[{h},0,{h}] op_sel_hi:[1,0,1]"
        return f"op_sel:[{h},0,0] op_sel_hi:[1,0,0]"
    for p in range(8):
        a(f"s_waitcnt vmcnt({14-2*p})")
        c=72+8*(p&1)
        for e in range(8):
            r0=8+8*p+e//2; r1=r0+4
            if p<2: a(f"v_fma_mix_f32 v{c+e}, v{r0}, 1.0, v{r1} {sel(e%2,True)}")
            else:
                a(f"v_fma_mix_f32 v{c+e}, v{r0}, 1.0, v{c+e} {sel(e%2)}")
        if p>=2:
            for e in range(8):
                r1=8+8*p+e//2+4
                a(f"v_fma_mix_f32 v{c+e}, v{r1}, 1.0, v{c+e} {sel(e%2)}")
    for e in range(8): a(f"v_add_f32 v{72+e}, v{72+e}, v{80+e}")
    for e in range(4): a(f"v_cvt_pk_bf16_f32 v{8+e}, v{72+2*e}, v{73+2*e}")
    a("buffer_store_dwordx2 v[8:9], v4, s[12:15], 0 offen\nbuffer_store_dwordx2 v[10:11], v4, s[12:15], 0 offen offset:16")
    a("K3_END:\ns_endpgm")
    return a.text()
```

```python
from gen_common import *
import gen_k1d as gen_k1
from gen_conv3 import gen_k4t
from gen_k3h import gen_k3g as gen_k3d, K3LDS
from gen_k2n import gen_k2k as gen_k2g
from gen_v3 import *
import sys
from gen_k1g import gen_k1f as gen_k1e, K1LDS
k1,TOT=gen_k1e()
k3=gen_k3d(int(sys.argv[2]) if len(sys.argv)>2 else 0)
ref=open(f"cdna_kernels/{NAME}.s.ref").read().split("\n")
out="\n".join(l for l in ref if l.startswith(";") and "@launch" not in l)+"\n"
out+=f"; @launch kernel=k1_kernel grid=({TOT},1,1) block=(256,1,1) lds={K1LDS}\n"
out+="; @launch kernel=k2f_kernel grid=(256,1,1) block=(256,1,1) lds=157184\n"
out+=f"; @launch kernel=k3c_kernel grid=(1152,1,1) block=(256,1,1) lds={K3LDS}\n"
out+="; @launch kernel=k4f_kernel grid=(288,1,1) block=(256,1,1) lds=9216\n"
out+='.amdgcn_target "amdgcn-amd-amdhsa--gfx950"\n.text\n'
def stamp(t, n, idx):
    st=f"""    s_cmp_lg_u32 s2, 0
    s_cbranch_scc1 STK{idx}
    s_load_dwordx2 s[96:97], s[0:1], 120
    s_memrealtime s[98:99]
    s_waitcnt lgkmcnt(0)
    v_mov_b32 v1, {ST+48+4*idx}
    v_mov_b32 v2, s98
    global_store_dword v1, v2, s[96:97]
STK{idx}:
"""
    return t.replace(n+":\n", n+":\n"+st, 1)
for idx,(n,t) in enumerate((("k1_kernel",k1),("k2f_kernel",gen_k2g()),("k3c_kernel",k3),("k4f_kernel",gen_k4t()))):
    t=stamp(t,n,idx)
    out+=f".globl {n}\n.p2align 8\n.type {n},@function\n"+t
out+='.section .rodata,"a"\n'
for n,v,ac in (("k1_kernel",64,64),("k2f_kernel",512,256),("k3c_kernel",96,96),("k4f_kernel",64,64)):
    out+=".p2align 6\n"+kd(n,v,102,ac)
open(sys.argv[1] if len(sys.argv)>1 else f"cdna_kernels/{NAME}.s","w").write(out)
```

```python
from gen_common import *
from gen_v3 import XP, KR, img_role, tab_role
import gen_k1j as gen_k1e
KD=KR; KDA=4224; KDS=KDA
TBL=0; LA=5760; SC=5952; TL=6144; K1LDS=TL+12288
def kgen_role(a):
    a("""K1_KGEN:
s_load_dwordx8 s[8:15], s[0:1], 8
s_load_dwordx4 s[16:19], s[0:1], 40
s_load_dwordx2 s[20:21], s[0:1], 56
s_waitcnt lgkmcnt(0)
s_lshl_b32 s22, s2, 8
v_lshlrev_b32 v1, 1, v0
v_add_u32 v1, s22, v1
v_cmp_gt_u32 vcc, 128, v0
s_and_saveexec_b64 s[24:25], vcc
global_load_ushort v2, v1, s[8:9]
global_load_ushort v3, v1, s[10:11]
global_load_ushort v4, v1, s[12:13]
global_load_ushort v5, v1, s[14:15]
global_load_ushort v6, v1, s[16:17]
global_load_ushort v7, v1, s[18:19]
s_lshl_b32 s23, s2, 1
v_mov_b32 v8, s23
global_load_ushort v8, v8, s[20:21]
s_mov_b64 exec, s[24:25]
v_and_b32 v12, 63, v0
v_lshrrev_b32 v13, 6, v0
v_and_b32 v14, 15, v12
v_lshrrev_b32 v15, 4, v12
v_lshl_add_u32 v16, v13, 5, v15
v_lshlrev_b32 v16, 4, v16
v_and_b32 v17, 7, v14
v_lshrrev_b32 v18, 3, v14
v_lshl_add_u32 v20, v18, 7, v17
v_and_b32 v17, 3, v14
v_lshlrev_b32 v17, 1, v17
v_bfe_u32 v18, v14, 2, 1
v_lshl_add_u32 v17, v18, 7, v17
v_add_u32 v17, 256, v17
v_and_b32 v18, 1, v14
v_lshlrev_b32 v18, 2, v18
v_bfe_u32 v19, v14, 1, 2
v_lshl_add_u32 v18, v19, 7, v18
v_add_u32 v18, 512, v18
v_cmp_gt_u32 vcc, 8, v14
v_cndmask_b32 v21, v18, v17, vcc
v_lshlrev_b32 v17, 7, v14
v_add_u32 v17, 1024, v17
v_mov_b32 v18, 2056
v_cmp_gt_u32 vcc, 9, v14
v_cndmask_b32 v22, v18, v17, vcc
v_lshlrev_b32 v23, 3, v14
v_cmp_gt_u32 vcc, 16, v0
s_and_saveexec_b64 s[24:25], vcc
v_lshlrev_b32 v17, 2, v14""")
    a(f"""ds_write_b32 v17, v20 offset:{LA}
ds_write_b32 v17, v21 offset:{LA+64}
ds_write_b32 v17, v22 offset:{LA+128}
s_mov_b64 exec, s[24:25]
v_cvt_f32_u32 v20, v20
v_cvt_f32_u32 v21, v21
v_cvt_f32_u32 v22, v22
v_cvt_f32_u32 v23, v23
v_cmp_gt_u32 vcc, 128, v0
s_and_saveexec_b64 s[24:25], vcc
s_waitcnt vmcnt(0)
v_lshlrev_b32 v2, 16, v2
v_lshlrev_b32 v3, 16, v3
v_lshlrev_b32 v4, 16, v4
v_lshlrev_b32 v5, 16, v5
v_lshlrev_b32 v6, 16, v6
v_lshlrev_b32 v7, 16, v7
v_lshlrev_b32 v8, 16, v8
v_mul_f32 v8, 0x3fb8aa3b, v8
v_exp_f32 v8, v8
s_nop 0""")
    bf16_rne(a, 8, 8, 9)
    a("""v_mul_f32 v2, v8, v2
v_mul_f32 v3, v8, v3
v_mul_f32 v4, v8, v4
v_mul_f32 v5, v8, v5
v_mul_f32 v10, v6, v4
v_fma_f32 v10, -v7, v5, v10
v_mul_f32 v11, v6, v5
v_fma_f32 v11, v7, v4, v11
v_mov_b32 v8, v2
v_mul_f32 v9, 0x3e22f983, v3
v_lshlrev_b32 v1, 4, v0
ds_write_b128 v1, v[8:11]
v_add_f32_e64 v17, |v10|, |v11|
v_lshlrev_b32 v18, 2, v13""")
    for op in ("row_shr:1 row_mask:0xf","row_shr:2 row_mask:0xf","row_shr:4 row_mask:0xf","row_shr:8 row_mask:0xf","row_bcast:15 row_mask:0xa","row_bcast:31 row_mask:0xc"):
        a(f"s_nop 1\nv_add_f32_dpp v17, v17, v17 {op} bank_mask:0xf bound_ctrl:0")
    a(f"""s_nop 1
v_readlane_b32 s30, v17, 63
s_nop 3
v_mov_b32 v17, s30
ds_write_b32 v18, v17 offset:{SC}
s_mov_b64 exec, s[24:25]
s_waitcnt lgkmcnt(0)
s_barrier""")
    for t in range(4): a(f"ds_read_b128 v[{36+4*t}:{39+4*t}], v16 offset:{64*t}")
    for t in range(8):
        pb=36+4*(t%4)
        ar,ai,wr,wi = pb,pb+1,pb+2,pb+3
        T=lambda e,k: 52+3*e+k
        a(f"s_waitcnt lgkmcnt({3 if t<5 else 7-t})")
        for e in range(4): a(f"v_mul_f32 v{T(e,0)}, v{ar}, v{20+e}\nv_mul_f32 v{T(e,1)}, v{ai}, v{20+e}")
        for e in range(4): a(f"v_mul_f32 v{T(e,0)}, 0x3fb8aa3b, v{T(e,0)}\nv_fract_f32 v{T(e,1)}, v{T(e,1)}")
        for e in range(4): a(f"v_exp_f32 v{T(e,0)}, v{T(e,0)}\nv_sin_f32 v{T(e,2)}, v{T(e,1)}\nv_cos_f32 v{T(e,1)}, v{T(e,1)}")
        for e in range(4): a(f"v_mul_f32 v{T(e,1)}, v{T(e,0)}, v{T(e,1)}\nv_mul_f32 v{T(e,2)}, v{T(e,0)}, v{T(e,2)}")
        for e in range(3): a(f"v_mul_f32 v{T(e,0)}, v{wi}, v{T(e,2)}")
        for e in range(3): a(f"v_fma_f32 v{T(e,0)}, v{wr}, v{T(e,1)}, -v{T(e,0)}")
        for e in range(3): a(f"v_mul_f32 v{T(e,1)}, v{wi}, v{T(e,1)}")
        for e in range(3): a(f"v_fma_f32 v{T(e,1)}, -v{wr}, v{T(e,2)}, -v{T(e,1)}")
        if t<4: a(f"ds_read_b128 v[{pb}:{pb+3}], v16 offset:{64*(t+4)}")
        a("s_nop 1")
        for e in range(3):
            c = "0" if t==0 else f"v[{24+4*e}:{27+4*e}]"
            a(f"v_mfma_f32_16x16x4_f32 v[{24+4*e}:{27+4*e}], v{T(e,0)}, v{T(3,1)}, {c}")
        for e in range(3):
            a(f"v_mfma_f32_16x16x4_f32 v[{24+4*e}:{27+4*e}], v{T(e,1)}, v{T(3,2)}, v[{24+4*e}:{27+4*e}]")
        a("s_nop 1")
    a(f"""s_nop 7
s_nop 7
v_mul_u32_u24 v17, 3072, v13
v_lshl_add_u32 v17, v12, 4, v17
ds_write_b128 v17, v[24:27] offset:{TL}
ds_write_b128 v17, v[28:31] offset:{TL+1024}
ds_write_b128 v17, v[32:35] offset:{TL+2048}
s_mov_b32 s26, {(-0x3f7f*4)&0xffffffff}
s_mov_b32 s27, 0x3f7f3f7f
s_mov_b32 s28, 0x00020002
s_waitcnt lgkmcnt(0)
s_barrier
v_cmp_gt_u32 vcc, 192, v0
s_and_saveexec_b64 s[24:25], vcc
v_lshlrev_b32 v17, 10, v13
v_lshl_add_u32 v17, v12, 4, v17
ds_read_b128 v[24:27], v17 offset:{TL}
ds_read_b128 v[28:31], v17 offset:{TL+3072}
ds_read_b128 v[32:35], v17 offset:{TL+6144}
ds_read_b128 v[36:39], v17 offset:{TL+9216}
v_lshlrev_b32 v18, 6, v13
v_lshl_add_u32 v18, v15, 4, v18
ds_read_b128 v[40:43], v18 offset:{LA}
v_lshlrev_b32 v19, 3, v14
v_mov_b32 v18, 0x4501
s_waitcnt lgkmcnt(0)""")
    for r in range(4):
        a(f"""v_add_f32 v{24+r}, v{24+r}, v{28+r}
v_add_f32 v{32+r}, v{32+r}, v{36+r}
v_add_f32 v{24+r}, v{24+r}, v{32+r}
v_add_u32 v{40+r}, v{40+r}, v19
v_cvt_f32_u32 v44, v{40+r}
v_lshrrev_b32 v44, 16, v44
v_max_u32 v44, 0x3f7f, v44
v_cmp_lt_u32 vcc, 2048, v{40+r}
v_cndmask_b32 v44, v44, v18, vcc
v_lshl_add_u32 v{40+r}, v44, 2, s26
ds_write_b32 v{40+r}, v{24+r} offset:{TBL}""")
    a("""s_mov_b64 exec, s[24:25]
v_lshlrev_b32 v1, 3, v0
v_sub_u32 v1, 2047, v1
v_cvt_f32_u32 v2, v1""")
    srd(a, 8, 4, KD, 576*KDS)
    a(f"s_mul_i32 s22, s2, {KDS}")
    fl={1:"1.0",2:"2.0",3:"0x40400000",4:"4.0",5:"0x40a00000",6:"0x40c00000",7:"0x40e00000"}
    for m in range(4):
        x0 = "v2" if m==0 else "v3"
        if m: a(f"v_subrev_f32 v3, {fl[2*m]}, v2")
        a(f"""v_subrev_f32 v4, {fl[2*m+1]}, v2
v_cvt_pk_bf16_f32 v5, {x0}, v4
v_pk_sub_u16 v5, v5, s27 clamp
v_pk_lshlrev_b16 v5, s28, v5
v_and_b32 v{44+2*m}, 0xffff, v5
v_lshrrev_b32 v{45+2*m}, 16, v5""")
    a(f"""v_mov_b32 v2, 0
ds_read_b64 v[32:33], v2 offset:{SC}
s_waitcnt lgkmcnt(0)
s_barrier""")
    for u in range(8): a(f"ds_read_b32 v{24+u}, v{44+u} offset:{TBL}")
    a(f"""v_add_f32 v32, v32, v33
v_lshrrev_b32 v32, 23, v32
v_max_u32 v32, 32, v32
v_sub_u32 v33, 268, v32
v_lshlrev_b32 v33, 23, v33
v_subrev_u32 v32, 24, v32
v_lshlrev_b32 v32, 23, v32
v_lshlrev_b32 v1, 4, v0
v_cmp_gt_u32 vcc, 8, v0
s_and_saveexec_b64 s[24:25], vcc
s_cbranch_execz K1_KZ
v_add_u32 v3, 4096, v1
v_cmp_eq_u32 vcc, 4, v0
v_cndmask_b32 v4, 0, v32, vcc
v_mov_b32 v5, 0
v_mov_b32 v6, 0
v_mov_b32 v7, 0
buffer_store_dwordx4 v[4:7], v3, s[8:11], s22 offen
K1_KZ:
s_mov_b64 exec, s[24:25]""")
    for m in range(4):
        a(f"""s_waitcnt lgkmcnt({6-2*m})
v_mul_f32 v{24+2*m}, v{24+2*m}, v33
v_mul_f32 v{25+2*m}, v{25+2*m}, v33
v_cvt_pk_f16_f32 v{36+m}, v{24+2*m}, v{25+2*m}""")
    a(f"""buffer_store_dwordx4 v[36:39], v1, s[8:11], s22 offen
s_branch K1_END""")

def gen_k1f():
    t,TOT=gen_k1e.gen_k1e()
    head="k1_kernel:\n    s_load_dwordx2 s[4:5], s[0:1], 120\n    s_mov_b32 s90, 0x7fff\n"
    assert t.startswith(head)
    t=head+"    s_cmp_lt_u32 s2, 576\n    s_cbranch_scc1 K1_KGEN\n    s_sub_u32 s2, s2, 576\n"+t[len(head):]
    b=Asm(); kgen_role(b)
    tail="K1_END:\n    s_endpgm\n"
    assert t.endswith(tail)
    return t[:-len(tail)]+b.text()+tail, TOT+576
```

```python
from gen_common import *
from gen_v3 import XP, img_role, tab_role
R=2
NLN=L//(4*R)
def gen_k1e():
    a = Asm()
    T0=NLN; I0=NLN+19; TOT=I0+2592
    a(f"""k1_kernel:
s_load_dwordx2 s[4:5], s[0:1], 120
s_mov_b32 s90, 0x7fff
s_cmp_ge_u32 s2, {TOT}
s_cbranch_scc1 K1_END
s_cmp_ge_u32 s2, {I0}
s_cbranch_scc1 K1_TR
s_cmp_ge_u32 s2, {T0}
s_cbranch_scc1 K1_TAB""")
    a("s_load_dwordx2 s[6:7], s[0:1], 0\ns_waitcnt lgkmcnt(0)")
    srd(a, 8, 6, 0, L*D*2)
    srd(a, 12, 4, XN, L*D*2)
    srd(a, 16, 4, XP, 576*5120)
    a(f"""v_lshrrev_b32 v1, 6, v0
v_and_b32 v2, 63, v0
s_mul_i32 s20, s2, {4*R*1152}
v_mul_u32_u24 v4, {R*1152}, v1
v_lshl_add_u32 v4, v2, 2, v4
v_cmp_gt_u32 s[22:23], 32, v2""")
    DA=8; UP=8+5*R; MU=UP+10*R; VA=MU+R; RC=VA+R; TM=RC+R
    for i in range(R):
        for j in range(4): a(f"buffer_load_dword v{DA+5*i+j}, v4, s[8:11], s20 offen offset:{1152*i+256*j}")
        a(f"v_mov_b32 v{DA+5*i+4}, 0")
    a("s_mov_b64 s[24:25], exec\ns_mov_b64 exec, s[22:23]")
    for i in range(R): a(f"buffer_load_dword v{DA+5*i+4}, v4, s[8:11], s20 offen offset:{1152*i+1024}")
    a("s_mov_b64 exec, s[24:25]\ns_waitcnt vmcnt(0)")
    for i in range(R):
        for j in range(5):
            a(f"v_lshlrev_b32 v{UP+10*i+2*j}, 16, v{DA+5*i+j}\nv_and_b32 v{UP+10*i+2*j+1}, 0xffff0000, v{DA+5*i+j}")
    def reduce(base):
        for op in ("row_shr:1 row_mask:0xf","row_shr:2 row_mask:0xf","row_shr:4 row_mask:0xf","row_shr:8 row_mask:0xf","row_bcast:15 row_mask:0xa","row_bcast:31 row_mask:0xc"):
            a("s_nop 1")
            for i in range(R): a(f"v_add_f32_dpp v{base+i}, v{base+i}, v{base+i} {op} bank_mask:0xf bound_ctrl:0")
        a("s_nop 1")
        for i in range(R): a(f"v_readlane_b32 s{40+i}, v{base+i}, 63")
        for i in range(R): a(f"v_mov_b32 v{base+i}, s{40+i}")
    for i in range(R):
        a(f"v_add_f32 v{MU+i}, v{UP+10*i}, v{UP+10*i+1}")
        for j in range(2,10): a(f"v_add_f32 v{MU+i}, v{MU+i}, v{UP+10*i+j}")
    reduce(MU)
    a("s_mov_b32 s26, 0x3ae38e39")
    for i in range(R): a(f"v_mul_f32 v{MU+i}, s26, v{MU+i}")
    for i in range(R):
        a(f"v_mov_b32 v{VA+i}, 0")
        for j in range(10):
            a(f"v_sub_f32 v7, v{UP+10*i+j}, v{MU+i}")
            if j >= 8: a(f"v_cndmask_b32 v7, 0, v7, s[22:23]")
            a(f"v_fmac_f32 v{VA+i}, v7, v7")
    reduce(VA)
    for i in range(R):
        a(f"v_mul_f32 v{VA+i}, s26, v{VA+i}")
        bf16_rne(a, MU+i, MU+i, 7)
        bf16_rne(a, VA+i, VA+i, 7)
        a(f"v_add_f32 v{VA+i}, 0x3727c5ac, v{VA+i}")
        bf16_rne(a, VA+i, VA+i, 7)
        a(f"v_sqrt_f32 v{VA+i}, v{VA+i}\ns_nop 0")
        bf16_rne(a, VA+i, VA+i, 7)
        a(f"v_rcp_f32 v{RC+i}, v{VA+i}\ns_nop 0")
    a(f"v_mul_u32_u24 v5, {1168*R}, v1\nv_lshl_add_u32 v5, v2, 2, v5")
    for i in range(R):
        for j in range(10):
            r = UP+10*i+j
            a(f"v_sub_f32 v{r}, v{r}, v{MU+i}")
            bf16_rne(a, r, r, 7)
            a(f"v_mul_f32 v7, v{r}, v{RC+i}\nv_fma_f32 v{r}, -v7, v{VA+i}, v{r}\nv_fma_f32 v{r}, v{r}, v{RC+i}, v7")
        for j in range(5):
            a(f"v_cvt_pk_bf16_f32 v{DA+5*i+j}, v{UP+10*i+2*j}, v{UP+10*i+2*j+1}")
    for i in range(R):
        for j in range(4): a(f"ds_write_b32 v5, v{DA+5*i+j} offset:{1168*i+256*j}")
    a("s_mov_b64 exec, s[22:23]")
    for i in range(R): a(f"ds_write_b32 v5, v{DA+5*i+4} offset:{1168*i+1024}")
    NR=4*R
    G=32//NR
    a(f"""s_mov_b64 exec, s[24:25]
s_lshr_b32 s27, s2, {G.bit_length()-1}
s_and_b32 s28, s2, {G-1}
s_mul_i32 s29, s27, 36864
s_mul_i32 s30, s28, {NR*16}
s_add_u32 s29, s29, s30
s_mul_i32 s30, s27, 80
s_mul_i32 s31, s28, {NR*2}
s_add_u32 s30, s30, s31
s_mov_b32 s36, {10<<23}
s_waitcnt lgkmcnt(0)
s_barrier""")
    assert NR==8
    for p in range(3):
        b=8+16*p
        a(f"v_add_u32 v{b}, {256*p}, v0")
        if p == 2: a(f"v_cmp_gt_u32 vcc, 576, v{b}\ns_and_saveexec_b64 s[24:25], vcc")
        a(f"""v_lshlrev_b32 v{b+1}, 1, v{b}
v_and_b32 v{b+2}, 7, v{b}
v_lshrrev_b32 v{b+3}, 3, v{b}
v_mul_u32_u24 v4, 1168, v{b+2}
v_lshl_add_u32 v4, v{b+3}, 4, v4
ds_read_b128 v[{b+4}:{b+7}], v4""")
        for r in range(8): a(f"ds_read_u16 v{b+8+r}, v{b+1} offset:{1168*r}")
        a(f"""v_lshlrev_b32 v{b+2}, 4, v{b+2}
v_lshl_add_u32 v{b+2}, v{b+3}, 9, v{b+2}
v_mul_u32_u24 v{b+1}, 5120, v{b}""")
    for p in range(3):
        b=8+16*p
        if p==0: a("s_mov_b64 s[34:35], exec\ns_mov_b64 exec, s[24:25]")
        if p==2: a("s_mov_b64 exec, s[34:35]")
        a(f"s_waitcnt lgkmcnt({min(15,9*(2-p)+8)})\nbuffer_store_dwordx4 v[{b+4}:{b+7}], v{b+2}, s[12:15], s29 offen\ns_waitcnt lgkmcnt({min(15,9*(2-p))})")
        for r in range(4): a(f"v_lshl_add_u32 v{b+8+2*r}, v{b+8+2*r}, 16, s36\nv_lshl_add_u32 v{b+8+2*r+1}, v{b+8+2*r+1}, 16, s36\nv_cvt_pk_f16_f32 v{b+8+r}, v{b+8+2*r}, v{b+8+2*r+1}")
        a(f"buffer_store_dwordx4 v[{b+8}:{b+11}], v{b+1}, s[16:19], s30 offen")
    a("s_branch K1_END")
    b=Asm(); img_role(b); b("s_branch K1_END"); tab_role(b,T0)
    return a.text()+b.text().replace("s_sub_u32 s3, s2, 640",f"s_sub_u32 s3, s2, {I0}")+"K1_END:\n    s_endpgm\n", TOT
```

```python
from gen_common import *
from gen_v3 import XP, YAT, PART, YB
from gen_k1i import KD, KDA, KDS
C=2047; XB=2480; KC=XB+5120; K3LDS=40960
KP=4144; EX=0
def koff(c): return KC+c*KP+(c>>2)*EX
def conv_steps(a, qs):
    qmax=qs[-1]
    steps=[]; cur=[]; regs=0
    dlof=lambda q:(q+1)//2 if q%2 else q//2
    for q in qs:
        r=12 if dlof(q)<=31 else 8
        if regs+r>24: steps.append(cur); cur=[]; regs=0
        cur.append(q); regs+=r
    steps.append(cur)
    def reads(n):
        o=16+24*(n%2); ops=[]; cnt=0
        for q in steps[n]:
            dl=dlof(q); ks=q%2
            a(f"ds_read_b128 v[{o}:{o+3}], v12 offset:{32*(qmax-q)}")
            kb=o; o+=4; cnt+=1
            for j in ([0,1] if dl<=31 else [1]):
                off=XB+80*(32*j-dl)+32*ks
                assert off>=0
                a(f"ds_read_b128 v[{o}:{o+3}], v14 offset:{off}")
                ops.append((j,kb,o,cnt+1)); o+=4; cnt+=1
        return ops,cnt
    ops,cp=reads(0)
    for n in range(len(steps)):
        c=0
        if n+1<len(steps): on,c=reads(n+1)
        last=None
        for (j,kb,xo,need) in ops:
            w=c+cp-need
            if FINE:
                if w!=last: a(f"s_waitcnt lgkmcnt({w})")
                last=w
            elif last is None:
                a(f"s_waitcnt lgkmcnt({c})"); last=c
            a(f"v_mfma_f32_32x32x16_f16 v[{64+16*j}:{79+16*j}], v[{kb}:{kb+3}], v[{xo}:{xo+3}], v[{64+16*j}:{79+16*j}]")
        if n+1<len(steps): ops=on; cp=c
FINE=1
def gen_k3g(MIX=0, rng=((-1,26),(26,53),(53,88),(88,127))):
    a=Asm()
    a("""k3c_kernel:
s_load_dwordx2 s[4:5], s[0:1], 120
s_load_dwordx2 s[6:7], s[0:1], 64
s_mov_b32 s90, 0x7fff
s_cmp_ge_u32 s2, 1152
s_cbranch_scc1 K3_END""")
    if MIX==1:
        a("""s_cmp_ge_u32 s2, 864
s_cbranch_scc1 K3R
s_mul_hi_u32 s3, s2, 0x55555556
s_mul_i32 s20, s3, 3
s_add_u32 s20, s20, 2
s_cmp_lg_u32 s20, s2
s_cbranch_scc1 K3C
s_add_u32 s2, s3, 576
s_branch K3R
K3C:
s_sub_u32 s2, s2, s3""")
    else:
        a("s_cmp_ge_u32 s2, 576\ns_cbranch_scc1 K3R")
    a("s_waitcnt lgkmcnt(0)")
    srd(a, 36, 4, XP, 576*5120); srd(a, 28, 4, YAT, L*D*2); srd(a, 32, 6, 0, D*2); srd(a, 8, 4, KD, 576*KDS)
    a(f"""v_lshlrev_b32 v4, 4, v0
s_mul_i32 s41, s2, {KDS}
v_lshrrev_b32 v1, 6, v0
s_nop 0
v_readfirstlane_b32 s20, v1
buffer_load_dwordx4 v[16:19], v4, s[8:11], s41 offen
buffer_load_dwordx4 v[20:23], v4, s[8:11], s41 offen offset:16
buffer_load_dwordx4 v[24:27], v4, s[8:11], s41 offen offset:4
buffer_load_dwordx4 v[28:31], v4, s[8:11], s41 offen offset:20
s_mul_i32 s40, s2, 5120
v_add_u32 v6, 4096, v4
v_min_u32 v6, 5104, v6
buffer_load_dwordx4 v[48:51], v4, s[36:39], s40 offen
buffer_load_dwordx4 v[52:55], v6, s[36:39], s40 offen
s_lshl_b32 s27, s2, 1
v_mov_b32 v5, s27
buffer_load_ushort v5, v5, s[32:35], 0 offen
v_mov_b32 v15, 4160
buffer_load_dword v15, v15, s[8:11], s41 offen
v_and_b32 v2, 63, v0
v_lshlrev_b32 v3, 4, v2
v_min_u32 v7, {XB-16}, v4
v_bfe_u32 v8, v0, 2, 3
v_bfe_u32 v9, v0, 4, 1
v_mul_u32_u24 v8, {KP}, v8
v_mul_u32_u24 v9, {EX}, v9
v_add_u32 v8, v8, v9
v_and_b32 v9, 3, v0
v_min_u32 v9, 2, v9
v_lshl_add_u32 v8, v9, 4, v8
v_add_u32 v8, {KC+4096}, v8
v_cmp_gt_u32 vcc, 160, v0
v_cndmask_b32 v7, v8, v7, vcc
v_mov_b32 v8, 0
v_mov_b32 v9, 0
v_mov_b32 v10, 0
v_mov_b32 v11, 0
ds_write_b128 v7, v[8:11]
s_nop 0
v_and_b32 v10, 31, v2
v_lshrrev_b32 v11, 5, v2
v_lshlrev_b32 v12, 3, v11
v_sub_u32 v12, v12, v10
v_add_u32 v12, {C}, v12
v_and_b32 v13, 7, v12
v_bfe_u32 v9, v12, 2, 1
v_mul_u32_u24 v13, {KP}, v13
v_mul_u32_u24 v9, {EX}, v9
v_add_u32 v13, v13, v9
v_and_b32 v12, -8, v12
v_lshl_add_u32 v12, v12, 1, v13
v_add_u32 v12, {KC}, v12
v_mul_u32_u24 v14, 80, v10
v_lshl_add_u32 v14, v11, 4, v14""")
    for r in range(32): a(f"v_mov_b32 v{64+r}, 0")
    a(f"""s_waitcnt vmcnt(6)
ds_write_b128 v4, v[16:19] offset:{koff(0)}
ds_write_b128 v4, v[18:21] offset:{koff(4)}""")
    for k in range(6): a(f"v_alignbit_b32 v{32+k}, v{17+k}, v{16+k}, 16")
    for k in range(6): a(f"v_alignbit_b32 v{40+k}, v{18+k}, v{17+k}, 16")
    a(f"""ds_write_b128 v4, v[32:35] offset:{koff(1)}
ds_write_b128 v4, v[34:37] offset:{koff(5)}
ds_write_b128 v4, v[40:43] offset:{koff(3)}
ds_write_b128 v4, v[42:45] offset:{koff(7)}
s_waitcnt vmcnt(4)
ds_write_b128 v4, v[24:27] offset:{koff(2)}
ds_write_b128 v4, v[26:29] offset:{koff(6)}""")
    a(f"""s_waitcnt vmcnt(2)
ds_write_b128 v4, v[48:51] offset:{XB}
ds_write_b128 v6, v[52:55] offset:{XB}
s_waitcnt vmcnt(0) lgkmcnt(0)
s_barrier
s_cmp_eq_u32 s20, 1
s_cbranch_scc1 K3_W1
s_cmp_eq_u32 s20, 2
s_cbranch_scc1 K3_W2
s_cmp_eq_u32 s20, 3
s_cbranch_scc1 K3_W3""")
    for w,(qa,qb) in enumerate(rng):
        if w: a(f"K3_W{w}:")
        qs=list(range(qa,qb))
        a(f"v_subrev_u32 v12, {32*qs[-1]}, v12")
        conv_steps(a, qs)
        a("s_branch K3_F")
    a(f"""K3_F:
s_nop 7
s_nop 7
s_barrier
s_lshl_b32 s21, s20, 13
v_add_u32 v4, s21, v3""")
    for g in range(8): a(f"ds_write_b128 v4, v[{64+4*g}:{67+4*g}] offset:{KC+1024*g}")
    a(f"""s_waitcnt lgkmcnt(0)
s_barrier
s_lshl_b32 s21, s20, 11
v_add_u32 v4, s21, v3""")
    for e in range(2):
        for ww in range(4): a(f"ds_read_b128 v[{16+16*e+4*ww}:{19+16*e+4*ww}], v4 offset:{KC+8192*ww+1024*e}")
    a(f"""s_lshr_b32 s21, s20, 1
s_lshl_b32 s21, s21, 10
s_and_b32 s22, s20, 1
s_lshl_b32 s22, s22, 4
s_add_u32 s21, s21, s22
v_lshlrev_b32 v6, 5, v10
v_lshl_add_u32 v6, v11, 2, v6
v_add_u32 v6, s21, v6
v_lshrrev_b32 v7, 5, v6
v_and_b32 v9, 31, v6
v_mul_u32_u24 v7, 80, v7
v_lshl_add_u32 v7, v9, 1, v7
v_lshlrev_b32 v6, 1, v6
ds_read_b64 v[48:49], v7 offset:{XB}
ds_read_b64 v[50:51], v7 offset:{XB+16}
s_lshl_b32 s23, s2, 12
s_waitcnt vmcnt(0) lgkmcnt(0)
v_lshlrev_b32 v5, 16, v5
v_mul_f32 v5, 0x3a800000, v5""")
    for e in range(2):
        for r in range(4):
            b=16+16*e+r
            a(f"v_add_f32 v{b}, v{b}, v{b+4}\nv_add_f32 v{b+8}, v{b+8}, v{b+12}\nv_add_f32 v{b}, v{b}, v{b+8}\nv_mul_f32 v{b}, v{b}, v15")
            bf16_rne(a, b, b, 7)
            src=48+2*e+r//2
            a(f"v_fma_mix_f32 v8, v{src}, v5, 0 op_sel:[{r%2},0,0] op_sel_hi:[1,0,0]")
            bf16_rne(a, 8, 8, 7)
            a(f"v_add_f32 v{b}, v{b}, v8")
        b=16+16*e
        a(f"v_cvt_pk_bf16_f32 v52, v{b}, v{b+1}\nv_cvt_pk_bf16_f32 v53, v{b+2}, v{b+3}\nbuffer_store_dwordx2 v[52:53], v6, s[28:31], s23 offen offset:{16*e}\ns_nop 1")
    a("s_branch K3_END")
    a("""K3R:
s_waitcnt lgkmcnt(0)
s_sub_u32 s3, s2, 576""")
    srd(a, 8, 4, PART, 16*L*D*2); srd(a, 12, 4, YB, L*D*2)
    a("""v_lshrrev_b32 v1, 6, v0
v_lshlrev_b32 v2, 14, v1
v_and_b32 v3, 63, v0
v_lshl_add_u32 v2, v3, 4, v2
s_lshl_b32 s21, s3, 16""")
    for s_ in range(16):
        a(f"s_add_u32 s20, s21, {4096*(s_//4)}\nbuffer_load_dwordx4 v[{8+4*s_}:{11+4*s_}], v2, s[8:11], s20 offen offset:{1024*(s_%4)}")
    a("""s_mul_hi_u32 s22, s3, 0x71c71c8
s_mul_i32 s23, s22, 36
s_sub_u32 s23, s3, s23
s_and_b32 s24, s23, 1
s_lshr_b32 s25, s23, 1
s_lshl_b32 s22, s22, 7
s_lshl_b32 s24, s24, 6
s_add_u32 s22, s22, s24
s_mul_i32 s22, s22, 1152
s_lshl_b32 s25, s25, 6
s_add_u32 s22, s22, s25
v_lshrrev_b32 v4, 1, v1
v_lshlrev_b32 v4, 5, v4
v_and_b32 v5, 31, v0
v_add_u32 v4, v4, v5
v_mul_u32_u24 v4, 1152, v4
v_and_b32 v5, 1, v1
v_lshl_add_u32 v4, v5, 5, v4
v_bfe_u32 v5, v0, 5, 1
v_lshl_add_u32 v4, v5, 3, v4
v_add_u32 v4, s22, v4""")
    def sel(h,two=False):
        if two: return f"op_sel:[{h},0,{h}] op_sel_hi:[1,0,1]"
        return f"op_sel:[{h},0,0] op_sel_hi:[1,0,0]"
    for p in range(8):
        a(f"s_waitcnt vmcnt({14-2*p})")
        c=72+8*(p&1)
        for e in range(8):
            r0=8+8*p+e//2; r1=r0+4
            if p<2: a(f"v_fma_mix_f32 v{c+e}, v{r0}, 1.0, v{r1} {sel(e%2,True)}")
            else:
                a(f"v_fma_mix_f32 v{c+e}, v{r0}, 1.0, v{c+e} {sel(e%2)}")
        if p>=2:
            for e in range(8):
                r1=8+8*p+e//2+4
                a(f"v_fma_mix_f32 v{c+e}, v{r1}, 1.0, v{c+e} {sel(e%2)}")
    for e in range(8): a(f"v_add_f32 v{72+e}, v{72+e}, v{80+e}")
    for e in range(4): a(f"v_cvt_pk_bf16_f32 v{8+e}, v{72+2*e}, v{73+2*e}")
    a("buffer_store_dwordx2 v[8:9], v4, s[12:15], 0 offen\nbuffer_store_dwordx2 v[10:11], v4, s[12:15], 0 offen offset:16")
    a("K3_END:\ns_endpgm")
    return a.text()
```

```python
from gen_common import *
import gen_k1d as gen_k1
from gen_conv3 import gen_k4t
import gen_k3i
from gen_k3i import gen_k3g as gen_k3d, K3LDS
from gen_k2n import gen_k2k as gen_k2g
from gen_v3 import *
import sys
from gen_k1i import gen_k1f as gen_k1e, K1LDS
import os
if os.environ.get('KPV'): gen_k3i.KP,gen_k3i.EX=[int(x) for x in os.environ['KPV'].split(',')]
if os.environ.get('FINE'): gen_k3i.FINE=int(os.environ['FINE'])
k1,TOT=gen_k1e()
k3=gen_k3d(int(sys.argv[2]) if len(sys.argv)>2 else 0)
ref=open(f"cdna_kernels/{NAME}.s.ref").read().split("\n")
out="\n".join(l for l in ref if l.startswith(";") and "@launch" not in l)+"\n"
out+=f"; @launch kernel=k1_kernel grid=({TOT},1,1) block=(256,1,1) lds={K1LDS}\n"
out+="; @launch kernel=k2f_kernel grid=(256,1,1) block=(256,1,1) lds=157184\n"
out+=f"; @launch kernel=k3c_kernel grid=(1152,1,1) block=(256,1,1) lds={K3LDS}\n"
out+="; @launch kernel=k4f_kernel grid=(288,1,1) block=(256,1,1) lds=9216\n"
out+='.amdgcn_target "amdgcn-amd-amdhsa--gfx950"\n.text\n'
def stamp(t, n, idx):
    st=f"""    s_cmp_lg_u32 s2, 0
    s_cbranch_scc1 STK{idx}
    s_load_dwordx2 s[96:97], s[0:1], 120
    s_memrealtime s[98:99]
    s_waitcnt lgkmcnt(0)
    v_mov_b32 v1, {ST+48+4*idx}
    v_mov_b32 v2, s98
    global_store_dword v1, v2, s[96:97]
STK{idx}:
"""
    return t.replace(n+":\n", n+":\n"+st, 1)
for idx,(n,t) in enumerate((("k1_kernel",k1),("k2f_kernel",gen_k2g()),("k3c_kernel",k3),("k4f_kernel",gen_k4t()))):
    t=stamp(t,n,idx)
    out+=f".globl {n}\n.p2align 8\n.type {n},@function\n"+t
out+='.section .rodata,"a"\n'
for n,v,ac in (("k1_kernel",64,64),("k2f_kernel",512,256),("k3c_kernel",96,96),("k4f_kernel",64,64)):
    out+=".p2align 6\n"+kd(n,v,102,ac)
open(sys.argv[1] if len(sys.argv)>1 else f"cdna_kernels/{NAME}.s","w").write(out)
```

```python
from gen_common import *
from gen_v3 import *
EX = 83456
class Q:
    def __init__(s, a, name, mx): s.a=a; s.q=[]; s.n=name; s.mx=mx
    def push(s, tag): s.q.append(tag)
    def wait(s, tag):
        if tag not in s.q: return
        idx=max(i for i,x in enumerate(s.q) if x==tag)
        allow=min(len(s.q)-1-idx, s.mx)
        s.a(f"s_waitcnt {s.n}({allow})")
        s.q[:]=s.q[len(s.q)-allow:] if allow else []
    def all(s):
        if s.q: s.a(f"s_waitcnt {s.n}(0)"); s.q[:]=[]

def gen_k2k(SIDE=4, RA=5, XA=4, VMW=2):
    a = Asm()
    a(f"""k2f_kernel:
s_load_dwordx2 s[4:5], s[0:1], 120
s_mov_b32 s90, 0x7fff
s_cmp_ge_u32 s2, 256
s_cbranch_scc1 KF_END
s_waitcnt lgkmcnt(0)
s_memtime s[60:61]
s_waitcnt lgkmcnt(0)
s_and_b32 s20, s2, 7
s_lshl_b32 s20, s20, 1
s_bfe_u32 s22, s2, 0x10003
s_add_u32 s20, s20, s22
s_lshr_b32 s21, s2, 4""")
    srd(a, 8, 4, WI, 144*73728); srd(a, 12, 4, XN, L*D*2); srd(a, 28, 4, PART, 16*L*D*4); srd(a, 32, 4, B1F, F*4); srd(a, 44, 4, TB, 12288)
    a(f"""v_and_b32 v1, 63, v0
v_lshrrev_b32 v2, 6, v0
s_nop 0
v_readfirstlane_b32 s24, v2
v_lshrrev_b32 v4, 5, v1
v_lshlrev_b32 v7, 4, v1
s_lshr_b32 s22, s24, 1
s_and_b32 s23, s24, 1
s_lshl_b32 s25, s21, 2
s_lshl_b32 s26, s22, 1
s_add_u32 s26, s25, s26
s_add_u32 s43, s25, s24
s_mul_i32 s43, s43, 36864
s_mul_i32 s26, s22, 18432
s_add_u32 s26, s26, {EX}
v_add_u32 v6, s26, v7
s_mul_i32 s27, s24, 9216
s_mul_i32 s36, s20, 9
s_mul_i32 s37, s36, 73728
s_add_u32 s55, s37, 36864
s_add_u32 s38, s37, s27
s_add_u32 s38, s38, {8*73728}
s_mul_i32 s39, s22, 73728
s_add_u32 s37, s37, s39
s_mul_i32 s39, s23, 9216
s_add_u32 s37, s37, s39
s_mul_i32 s39, s23, 18432
v_add_u32 v8, s39, v7
s_lshl_b32 s42, s36, 7
v_lshlrev_b32 v10, 4, v4
v_add_u32 v10, s42, v10
s_lshl_b32 s39, s23, 7
v_add_u32 v11, s39, v10
v_add_u32 v10, 1024, v10
s_mul_i32 s39, s22, 36864
s_lshl_b32 s40, s23, 11
s_add_u32 s39, s39, s40
s_add_u32 s39, s39, {EX}
v_add_u32 v9, s39, v7
s_mul_i32 s39, s24, 18432
s_add_u32 s39, s39, {EX+16384}
v_add_u32 v14, s39, v7""")
    seen={}
    vq=Q(a,"vmcnt",63); lq=Q(a,"lgkmcnt",15)
    def dma_items(s):
        sg = 38 if s==8 else 37
        go = 0 if s==8 else (s>>1)*2*73728+(s&1)*18432
        o=[]
        for g in range(3):
            for k in range(4 if g<2 else 1):
                pre = f"s_add_u32 s40, s27, {36864*(s&1)+4096*g}\ns_add_u32 s41, s{sg}, {go+4096*g}\ns_mov_b32 m0, s40\ns_nop 0\n" if k==0 else ""
                o.append(('vm',pre+f"buffer_load_dwordx4 v7, s[8:11], s41 offen offset:{1024*k} lds",('D',s)))
        return o
    def bias_items(P):
        o=[]
        for q in range(4):
            rg=136+16*(P&1)+4*q
            if P<4: o.append(('vm',f"buffer_load_dwordx4 v[{rg}:{rg+3}], v11, s[32:35], 0 offen offset:{256*P+32*q}",('B',P)))
            else: o.append(('vm',f"buffer_load_dwordx4 v[{rg}:{rg+3}], v10, s[32:35], 0 offen offset:{32*q}",('B',P)))
        return o
    def q_items(i):
        o=[]
        for g in range(3):
            for k in range(4 if g<2 else 1):
                pre = f"s_add_u32 s40, s27, {EX+36864*(i&1)+4096*g}\ns_add_u32 s41, s43, {9216*i+4096*g}\ns_mov_b32 m0, s40\ns_nop 0\n" if k==0 else ""
                o.append(('vm',pre+f"buffer_load_dwordx4 v7, s[12:15], s41 offen offset:{1024*k} lds",('Q',i)))
        return o
    def xrd(ks):
        i=ks//9
        for r in range(2):
            a(f"ds_read_b128 {X(r,ks)}, v6 offset:{36864*(i&1)+9216*r+1024*(ks-9*i)}"); lq.push(('X',ks))
    def emit(items, n):
        k=0
        while items and k<n:
            it=items.pop(0)
            if it[0]=='v': a(it[1]); k+=1
            elif it[0]=='ds': a(it[1]); lq.push(it[2]); k+=1
            elif it[0]=='vm': a(it[1]); vq.push(it[2]); k+=VMW; seen[it[2]]=seen.get(it[2],0)+1
            elif it[0]=='w': lq.wait(it[1])
            elif it[0]=='wb':
                assert seen.get(('B',it[1]))==4
                vq.wait(('B',it[1]))
    def dma(s): emit(dma_items(s),10000)
    def bias(P): emit(bias_items(P),10000)
    def X(r,ks):
        m=36*r+ks
        return f"a[{4*m}:{4*m+3}]" if m<64 else f"v[{16+4*(m-64)}:{19+4*(m-64)}]"
    dma(0)
    emit(q_items(0),10000); emit(q_items(1),10000)
    a("s_lshl_b32 s48, s24, 10")
    for j in range(3):
        if j==2: a(f"v_add_u32 v15, s48, v7\nv_cmp_gt_u32 vcc, {4*LUT_N-8192}, v15\ns_and_saveexec_b64 s[72:73], vcc")
        a(f"s_add_u32 s49, s48, {4096*j}\ns_add_u32 s40, s49, {LUT_LDS}\ns_mov_b32 m0, s40\ns_nop 0\nbuffer_load_dwordx4 v7, s[44:47], s49 offen lds"); vq.push(('T',0))
        if j==2: a("s_mov_b64 exec, s[72:73]")
    assert LUT_LDS+4*LUT_N<=EX
    a(f"s_mov_b32 s50, 0x00010001\ns_mov_b32 s51, 0x000f000f\ns_mov_b32 s52, {(2*LUT_LO)*0x10001}\ns_mov_b32 s53, {(2*(LUT_LO+LUT_N-1))*0x10001}\ns_mov_b32 s54, {(2*LUT_N)*0x10001}")
    for r in range(16): a(f"v_mov_b32 v{168+r}, 0")
    vq.wait(('Q',0))
    a("s_barrier\ns_memtime s[62:63]\ns_waitcnt lgkmcnt(0)")
    for ks in range(XA): xrd(ks)
    XL = LUT_LDS - 2*LUT_LO
    def mish_items(P):
        st=P&1; nu=16 if P<4 else 8
        F=[];S=[]
        for p in range(nu):
            r=48+32*st+2*p; b=136+16*st+2*(p&7); t=184+4*(p%2); u=168+2*(p%8)
            f=[('v',x) for x in f"""v_cvt_pk_bf16_f32 v{t}, v{r}, v{r+1}
v_lshlrev_b32 v{r}, 16, v{t}
v_and_b32 v{r+1}, 0xffff0000, v{t}
v_add_f32 v{r}, v{r}, v{b}
v_add_f32 v{r+1}, v{r+1}, v{b+1}
v_cvt_pk_bf16_f32 v{t}, v{r}, v{r+1}
v_lshlrev_b32 v{r}, 16, v{t}
v_and_b32 v{r+1}, 0xffff0000, v{t}
v_pk_lshlrev_b16 v{t+1}, s50, v{t}
v_pk_max_u16 v{t+1}, v{t+1}, s52
v_pk_min_u16 v{t+1}, v{t+1}, s53
v_pk_lshrrev_b16 v{t}, s51, v{t}
v_pk_mad_u16 v{t+1}, v{t}, s54, v{t+1}
v_and_b32 v{t+2}, 0xffff, v{t+1}
v_lshrrev_b32 v{t+3}, 16, v{t+1}""".split("\n")]
            f.append(('ds',f"ds_read_u16_d16_hi v{u}, v{t+2} offset:{XL}",('U',P,p)))
            f.append(('ds',f"ds_read_u16_d16_hi v{u+1}, v{t+3} offset:{XL}",('U',P,p)))
            F.append(f)
            d=48+32*st+8*(p>>2)+(p&3)
            s=[('w',('U',P,p)),('v',f"v_mul_f32 v{r}, v{r}, v{u}"),('v',f"v_mul_f32 v{r+1}, v{r+1}, v{u+1}"),('v',f"v_cvt_pk_bf16_f32 v{d}, v{r}, v{r+1}")]
            if p&3==3:
                g=48+32*st+8*(p>>2)
                if P<4: s.append(('ds',f"ds_write_b128 v9, v[{g}:{g+3}] offset:{4096*P+18432*(p>>3)+1024*((p>>2)&1)}",('W',P)))
                else: s.append(('ds',f"ds_write_b128 v14, v[{g}:{g+3}] offset:{1024*((p>>2)&1)}",('W',P)))
            S.append(s)
        out=[('wb',P)]
        LAG=4
        for p in range(nu+LAG):
            if p<nu: out+=F[p]
            if p>=LAG: out+=S[p-LAG]
        return out
    side=[]
    def ring(n): return 112+4*(n%6)
    for s in range(8):
        P,kh=s>>1,s&1
        def fr(n): a(f"ds_read_b128 v[{ring(n)}:{ring(n)+3}], v8 offset:{36864*(s&1)+1024*n}"); lq.push(('F',s,n))
        for n in range(RA): fr(n)
        pre=dma_items(s+1)+(bias_items(P) if kh==0 else [])
        if kh==0 and P>0:
            side=mish_items(P-1); emit(side, 24)
        side=pre+side
        for n in range(18):
            if n+RA<18: fr(n+RA)
            ks=18*kh+n
            if s<2 and ks+XA<36:
                kx=ks+XA
                if kx%9==0:
                    i=kx//9
                    while seen.get(('Q',i),0)<9: emit(side,1)
                    lq.wait(('X',kx-1)); vq.wait(('Q',i)); a("s_barrier")
                    assert not any(it[0]=='vm' and it[2][0] in 'DQ' for it in side)
                    if i+1<4: side=q_items(i+1)+side
                xrd(kx)
            lq.wait(('X',ks)); lq.wait(('F',s,n))
            for r in range(2):
                d=48+32*(P&1)+16*r
                c="0" if ks==0 else f"v[{d}:{d+15}]"
                a(f"v_mfma_f32_32x32x16_bf16 v[{d}:{d+15}], v[{ring(n)}:{ring(n)+3}], {X(r,ks)}, {c}")
                emit(side, SIDE)
        if kh==1: emit(side, 10000)
        assert seen.get(('D',s+1))==9
        assert not any(it[0]=='vm' and it[2][0] in 'DQ' for it in side)
        vq.wait(('D',s+1))
        a("s_barrier")
    bias(4)
    a(f"""s_lshl_b32 s57, s24, 11
s_add_u32 s57, s57, s55
s_lshr_b32 s58, s24, 1
s_add_u32 s58, s58, 16
s_lshl_b32 s58, s58, 11
s_add_u32 s58, s58, s55
s_lshl_b32 s44, s20, 10
s_mul_i32 s59, s21, 2359296
s_add_u32 s44, s44, s59
s_lshl_b32 s59, s24, 17
s_add_u32 s59, s59, s44
v_add_u32 v12, s59, v7
s_lshr_b32 s59, s24, 1
s_add_u32 s59, s59, 16
s_lshl_b32 s59, s59, 17
s_and_b32 s66, s24, 1
s_lshl_b32 s66, s66, 16
s_add_u32 s59, s59, s66
s_add_u32 s59, s59, s44
v_add_u32 v13, s59, v7""")
    NR=16
    frs=[(T,ks) for T in range(5) for ks in range(18)]
    def issue_load(n):
        T,ks=frs[n]
        rg=192+4*(n%NR)
        off=(ks>>1)*73728+(ks&1)*1024+(8192*T if T<4 else 0)
        a(f"s_add_u32 s67, s{57 if T<4 else 58}, {off}\nbuffer_load_dwordx4 v[{rg}:{rg+3}], v7, s[8:11], s67 offen")
        vq.push(('L',n))
    for n in range(NR): issue_load(n)
    a("s_cmp_eq_u32 s23, 1\ns_cbranch_scc1 KF_J1")
    sv=(list(vq.q),list(lq.q))
    for j in range(2):
        vq.q[:],lq.q[:]=list(sv[0]),list(sv[1])
        if j: a("KF_J1:")
        def fr(n): a(f"ds_read_b128 v[{ring(n)}:{ring(n)+3}], v7 offset:{1024*n}"); lq.push(('F',8,n))
        for n in range(RA): fr(n)
        side=mish_items(3); emit(side,24)
        for n in range(36):
            if n+RA<36: fr(n+RA)
            lq.wait(('F',8,n))
            c="0" if n==0 else "v[48:63]"
            a(f"v_mfma_f32_32x32x16_bf16 v[48:63], v[{ring(n)}:{ring(n)+3}], {X(j,n)}, {c}")
            emit(side, 2*SIDE)
        emit(side,10000)
        if j==0: a("s_branch KF_J2")
    a("KF_J2:\ns_nop 7\ns_nop 7\ns_nop 7")
    side=mish_items(4); emit(side,10000)
    lq.all()
    a(f"""s_barrier
s_memtime s[64:65]
s_waitcnt lgkmcnt(0)
v_add_u32 v9, {EX}, v7
v_add_u32 v14, 36864, v9""")
    def areg(rt,ks):
        return f"a[{64*rt+4*ks}:{64*rt+4*ks+3}]" if ks<16 else f"v[{160+8*rt+4*(ks-16)}:{163+8*rt+4*(ks-16)}]"
    for rt in range(4):
        for ks in range(18):
            a(f"ds_read_b128 {areg(rt,ks)}, v{9 if rt<2 else 14} offset:{18432*(rt%2)+1024*ks}")
            if (rt*18+ks)%8==7: a("s_waitcnt lgkmcnt(4)")
    a("s_waitcnt lgkmcnt(0)")
    def stores(T):
        o=[]
        for r in range(4 if T<4 else 2):
            for g in range(2):
                d=16+64*(T%2)+16*r
                cv="".join(f"v_cvt_pk_f16_f32 v{d+4*g+i}, v{d+8*g+2*i}, v{d+8*g+2*i+1}\n" for i in range(4))
                rg=d+4*g
                if T<4: o.append(cv+f"s_mov_b32 s70, {524288*T+32768*r+16384*g}\nbuffer_store_dwordx4 v[{rg}:{rg+3}], v12, s[28:31], s70 offen")
                else: o.append(cv+f"s_mov_b32 s70, {32768*r+16384*g}\nbuffer_store_dwordx4 v[{rg}:{rg+3}], v13, s[28:31], s70 offen")
        return o
    def tile(T, rts, pend):
        for ks in range(18):
            n=T*18+ks
            vq.wait(('L',n))
            rg=192+4*(n%NR)
            for i,rt in enumerate(rts):
                d=16+64*(T%2)+16*i
                c="0" if ks==0 else f"v[{d}:{d+15}]"
                a(f"v_mfma_f32_32x32x16_bf16 v[{d}:{d+15}], v[{rg}:{rg+3}], {areg(rt,ks)}, {c}")
            if n+NR<len(frs): issue_load(n+NR)
            if pend and ks>=1 and ks%2==1:
                a(pend.pop(0)); vq.push(('S',0))
        while pend: a(pend.pop(0)); vq.push(('S',0))
    pend=[]
    for T in range(4):
        tile(T,[0,1,2,3],pend); pend=stores(T)
    a("s_and_b32 s66, s24, 1\ns_cmp_eq_u32 s66, 1\ns_cbranch_scc1 KF_H1")
    q0=list(vq.q); p0=list(pend)
    tile(4,[0,1],pend); a("s_branch KF_H2\nKF_H1:")
    vq.q[:]=q0
    tile(4,[2,3],p0); a("KF_H2:\ns_nop 7\ns_nop 7\ns_nop 7")
    for s in stores(4): a(s)
    a(f"""s_waitcnt vmcnt(0)
s_memtime s[66:67]
s_waitcnt lgkmcnt(0)
s_cmp_ge_u32 s2, 6
s_cbranch_scc1 KF_END
s_and_b32 s70, s2, 1
s_cmp_lg_u32 s70, 0
s_cbranch_scc1 KF_END
s_lshr_b32 s71, s2, 1
s_sub_u32 s62, s62, s60
s_sub_u32 s64, s64, s60
s_sub_u32 s66, s66, s60
s_lshl_b32 s68, s71, 4
s_add_u32 s68, s68, {ST}
v_mov_b32 v1, s68
v_mov_b32 v2, s62
v_mov_b32 v3, s64
v_mov_b32 v4, s66
s_getreg_b32 s69, hwreg(HW_REG_XCC_ID)
v_mov_b32 v5, s69
global_store_dwordx4 v1, v[2:5], s[4:5]""")
    a("KF_END:\ns_endpgm")
    return a.text()
```

```python
from gen_common import *
import gen_k1d as gen_k1
from gen_conv3 import gen_k4t
import gen_k3i
from gen_k3i import gen_k3g as gen_k3d, K3LDS
from gen_k2o import gen_k2k as gen_k2g
from gen_v3 import *
import sys
from gen_k1i import gen_k1f as gen_k1e, K1LDS
import os
if os.environ.get('KPV'): gen_k3i.KP,gen_k3i.EX=[int(x) for x in os.environ['KPV'].split(',')]
if os.environ.get('FINE'): gen_k3i.FINE=int(os.environ['FINE'])
k1,TOT=gen_k1e()
k3=gen_k3d(int(sys.argv[2]) if len(sys.argv)>2 else 0)
ref=open(f"cdna_kernels/{NAME}.s.ref").read().split("\n")
out="\n".join(l for l in ref if l.startswith(";") and "@launch" not in l)+"\n"
out+=f"; @launch kernel=k1_kernel grid=({TOT},1,1) block=(256,1,1) lds={K1LDS}\n"
out+="; @launch kernel=k2f_kernel grid=(256,1,1) block=(256,1,1) lds=157184\n"
out+=f"; @launch kernel=k3c_kernel grid=(1152,1,1) block=(256,1,1) lds={K3LDS}\n"
out+="; @launch kernel=k4f_kernel grid=(288,1,1) block=(256,1,1) lds=9216\n"
out+='.amdgcn_target "amdgcn-amd-amdhsa--gfx950"\n.text\n'
def stamp(t, n, idx):
    st=f"""    s_cmp_lg_u32 s2, 0
    s_cbranch_scc1 STK{idx}
    s_load_dwordx2 s[96:97], s[0:1], 120
    s_memrealtime s[98:99]
    s_waitcnt lgkmcnt(0)
    v_mov_b32 v1, {ST+48+4*idx}
    v_mov_b32 v2, s98
    global_store_dword v1, v2, s[96:97]
STK{idx}:
"""
    return t.replace(n+":\n", n+":\n"+st, 1)
for idx,(n,t) in enumerate((("k1_kernel",k1),("k2f_kernel",gen_k2g()),("k3c_kernel",k3),("k4f_kernel",gen_k4t()))):
    t=stamp(t,n,idx)
    out+=f".globl {n}\n.p2align 8\n.type {n},@function\n"+t
out+='.section .rodata,"a"\n'
for n,v,ac in (("k1_kernel",64,64),("k2f_kernel",512,256),("k3c_kernel",96,96),("k4f_kernel",64,64)):
    out+=".p2align 6\n"+kd(n,v,102,ac)
open(sys.argv[1] if len(sys.argv)>1 else f"cdna_kernels/{NAME}.s","w").write(out)
```

```python
from gen_common import *
from gen_v3 import *
EX = 83456
import os
DI=int(os.environ.get('DI','2')); D0=int(os.environ.get('D0','0')); AA=int(os.environ.get('AA','2')); LS=int(os.environ.get('LS','6')); TS=int(os.environ.get('TS','5'))
class Q:
    def __init__(s, a, name, mx): s.a=a; s.q=[]; s.n=name; s.mx=mx
    def push(s, tag): s.q.append(tag)
    def wait(s, tag):
        if tag not in s.q: return
        idx=max(i for i,x in enumerate(s.q) if x==tag)
        allow=min(len(s.q)-1-idx, s.mx)
        s.a(f"s_waitcnt {s.n}({allow})")
        s.q[:]=s.q[len(s.q)-allow:] if allow else []
    def all(s):
        if s.q: s.a(f"s_waitcnt {s.n}(0)"); s.q[:]=[]

def gen_k2k(SIDE=4, RA=5, PRE=6, VMW=2):
    a = Asm()
    a(f"""k2f_kernel:
s_load_dwordx2 s[4:5], s[0:1], 120
s_mov_b32 s90, 0x7fff
s_cmp_ge_u32 s2, 256
s_cbranch_scc1 KF_END
s_waitcnt lgkmcnt(0)
s_memtime s[60:61]
s_waitcnt lgkmcnt(0)
s_and_b32 s20, s2, 7
s_lshl_b32 s20, s20, 1
s_bfe_u32 s22, s2, 0x10003
s_add_u32 s20, s20, s22
s_lshr_b32 s21, s2, 4""")
    srd(a, 8, 4, WI, 144*73728); srd(a, 12, 4, XN, L*D*2); srd(a, 28, 4, PART, 16*L*D*4); srd(a, 32, 4, B1F, F*4); srd(a, 44, 4, TB, 12288)
    a(f"""v_and_b32 v1, 63, v0
v_lshrrev_b32 v2, 6, v0
s_nop 0
v_readfirstlane_b32 s24, v2
v_lshrrev_b32 v4, 5, v1
v_lshlrev_b32 v7, 4, v1
s_lshr_b32 s22, s24, 1
s_and_b32 s23, s24, 1
s_lshl_b32 s25, s21, 2
s_lshl_b32 s26, s22, 1
s_add_u32 s26, s25, s26
s_mul_i32 s26, s26, 36864
v_add_u32 v6, s26, v7
s_mul_i32 s27, s24, 9216
s_mul_i32 s36, s20, 9
s_mul_i32 s37, s36, 73728
s_add_u32 s55, s37, 36864
s_add_u32 s38, s37, s27
s_add_u32 s38, s38, {8*73728}
s_mul_i32 s39, s22, 73728
s_add_u32 s37, s37, s39
s_mul_i32 s39, s23, 9216
s_add_u32 s37, s37, s39
s_mul_i32 s39, s23, 18432
v_add_u32 v8, s39, v7
s_lshl_b32 s42, s36, 7
v_lshlrev_b32 v10, 4, v4
v_add_u32 v10, s42, v10
s_lshl_b32 s39, s23, 7
v_add_u32 v11, s39, v10
v_add_u32 v10, 1024, v10
s_mul_i32 s39, s22, 36864
s_lshl_b32 s40, s23, 11
s_add_u32 s39, s39, s40
s_add_u32 s39, s39, {EX}
v_add_u32 v9, s39, v7
s_mul_i32 s39, s24, 18432
s_add_u32 s39, s39, {EX+16384}
v_add_u32 v14, s39, v7""")
    seen={}
    vq=Q(a,"vmcnt",63); lq=Q(a,"lgkmcnt",15)
    def dma_items(s):
        sg = 38 if s==8 else 37
        go = 0 if s==8 else (s>>1)*2*73728+(s&1)*18432
        o=[]
        for g in range(3):
            for k in range(4 if g<2 else 1):
                pre = f"s_add_u32 s40, s27, {36864*(s&1)+4096*g}\ns_add_u32 s41, s{sg}, {go+4096*g}\ns_mov_b32 m0, s40\ns_nop 0\n" if k==0 else ""
                o.append(('vm',pre+f"buffer_load_dwordx4 v7, s[8:11], s41 offen offset:{1024*k} lds",('D',s)))
        return o
    def bias_items(P):
        o=[]
        for q in range(4):
            rg=136+16*(P&1)+4*q
            if P<4: o.append(('vm',f"buffer_load_dwordx4 v[{rg}:{rg+3}], v11, s[32:35], 0 offen offset:{256*P+32*q}",('B',P)))
            else: o.append(('vm',f"buffer_load_dwordx4 v[{rg}:{rg+3}], v10, s[32:35], 0 offen offset:{32*q}",('B',P)))
        return o
    def xn_items(k0,k1):
        o=[]
        for ks in range(k0,k1):
            for r in range(2):
                of=36864*r+1024*ks
                o.append(('vm',f"s_mov_b32 s49, {of&~4095}\nbuffer_load_dwordx4 {X(r,ks)}, v6, s[12:15], s49 offen offset:{of&4095}",('X',ks)))
        return o
    def emit(items, n):
        k=0
        while items and k<n:
            it=items.pop(0)
            if it[0]=='v': a(it[1]); k+=1
            elif it[0]=='ds': a(it[1]); lq.push(it[2]); k+=1
            elif it[0]=='vm': a(it[1]); vq.push(it[2]); k+=VMW; seen[it[2]]=seen.get(it[2],0)+1
            elif it[0]=='w': lq.wait(it[1])
            elif it[0]=='wb':
                assert seen.get(('B',it[1]))==4
                vq.wait(('B',it[1]))
    def dma(s): emit(dma_items(s),10000)
    def bias(P): emit(bias_items(P),10000)
    def X(r,ks):
        m=36*r+ks
        return f"a[{4*m}:{4*m+3}]" if m<64 else f"v[{16+4*(m-64)}:{19+4*(m-64)}]"
    dma(0)
    a("s_lshl_b32 s48, s24, 10")
    for j in range(3):
        a(f"s_add_u32 s49, s48, {4096*j}\ns_add_u32 s40, s49, {LUT_LDS}\ns_mov_b32 m0, s40\ns_nop 0\nbuffer_load_dwordx4 v7, s[44:47], s49 offen lds"); vq.push(('D',0))
    a(f"s_mov_b32 s50, 0x00010001\ns_mov_b32 s51, 0x000f000f\ns_mov_b32 s52, {(2*LUT_LO)*0x10001}\ns_mov_b32 s53, {(2*(LUT_LO+LUT_N-1))*0x10001}\ns_mov_b32 s54, {(2*LUT_N)*0x10001}")
    emit(xn_items(0,PRE),10000)
    for r in range(16): a(f"v_mov_b32 v{168+r}, 0")
    vq.wait(('D',0))
    a("s_barrier\ns_memtime s[62:63]\ns_waitcnt lgkmcnt(0)")
    XL = LUT_LDS - 2*LUT_LO
    def mish_items(P):
        st=P&1; nu=16 if P<4 else 8
        F=[];S=[]
        for p in range(nu):
            r=48+32*st+2*p; b=136+16*st+2*(p&7); t=184+4*(p%2); u=168+2*(p%8)
            f=[('v',x) for x in f"""v_cvt_pk_bf16_f32 v{t}, v{r}, v{r+1}
v_lshlrev_b32 v{r}, 16, v{t}
v_and_b32 v{r+1}, 0xffff0000, v{t}
v_add_f32 v{r}, v{r}, v{b}
v_add_f32 v{r+1}, v{r+1}, v{b+1}
v_cvt_pk_bf16_f32 v{t}, v{r}, v{r+1}
v_lshlrev_b32 v{r}, 16, v{t}
v_and_b32 v{r+1}, 0xffff0000, v{t}
v_pk_lshlrev_b16 v{t+1}, s50, v{t}
v_pk_max_u16 v{t+1}, v{t+1}, s52
v_pk_min_u16 v{t+1}, v{t+1}, s53
v_pk_lshrrev_b16 v{t}, s51, v{t}
v_pk_mad_u16 v{t+1}, v{t}, s54, v{t+1}
v_and_b32 v{t+2}, 0xffff, v{t+1}
v_lshrrev_b32 v{t+3}, 16, v{t+1}""".split("\n")]
            f.append(('ds',f"ds_read_u16_d16_hi v{u}, v{t+2} offset:{XL}",('U',P,p)))
            f.append(('ds',f"ds_read_u16_d16_hi v{u+1}, v{t+3} offset:{XL}",('U',P,p)))
            F.append(f)
            d=48+32*st+8*(p>>2)+(p&3)
            s=[('w',('U',P,p)),('v',f"v_mul_f32 v{r}, v{r}, v{u}"),('v',f"v_mul_f32 v{r+1}, v{r+1}, v{u+1}"),('v',f"v_cvt_pk_bf16_f32 v{d}, v{r}, v{r+1}")]
            if p&3==3:
                g=48+32*st+8*(p>>2)
                if P<4: s.append(('ds',f"ds_write_b128 v9, v[{g}:{g+3}] offset:{4096*P+18432*(p>>3)+1024*((p>>2)&1)}",('W',P)))
                else: s.append(('ds',f"ds_write_b128 v14, v[{g}:{g+3}] offset:{1024*((p>>2)&1)}",('W',P)))
            S.append(s)
        out=[('wb',P)]
        LAG=4
        for p in range(nu+LAG):
            if p<nu: out+=F[p]
            if p>=LAG: out+=S[p-LAG]
        return out
    side=[]
    def ring(n): return 112+4*(n%6)
    for s in range(8):
        P,kh=s>>1,s&1
        def fr(n): a(f"ds_read_b128 v[{ring(n)}:{ring(n)+3}], v8 offset:{36864*(s&1)+1024*n}"); lq.push(('F',s,n))
        for n in range(RA): fr(n)
        pre=dma_items(s+1)+(bias_items(P) if kh==0 else [])
        if s==0: pre+=xn_items(PRE,36)
        if kh==0 and P>0:
            side=mish_items(P-1); emit(side, 24)
        dq=[]
        if s==0: side=pre+side
        else: dq=pre
        for n in range(18):
            if n+RA<18: fr(n+RA)
            ks=18*kh+n
            assert seen.get(('X',ks))==2
            vq.wait(('X',ks)); lq.wait(('F',s,n))
            for r in range(2):
                d=48+32*(P&1)+16*r
                c="0" if ks==0 else f"v[{d}:{d+15}]"
                a(f"v_mfma_f32_32x32x16_bf16 v[{d}:{d+15}], v[{ring(n)}:{ring(n)+3}], {X(r,ks)}, {c}")
                m=2*n+r
                if dq and m>=D0 and (m-D0)%DI==0:
                    emit(dq,1); emit(side, SIDE-VMW)
                else: emit(side, SIDE)
        emit(dq,10000)
        if kh==1: emit(side, 10000)
        assert seen.get(('D',s+1))==9
        vq.wait(('D',s+1))
        a("s_barrier")
    bias(4)
    a(f"""s_lshl_b32 s57, s24, 11
s_add_u32 s57, s57, s55
s_lshr_b32 s58, s24, 1
s_add_u32 s58, s58, 16
s_lshl_b32 s58, s58, 11
s_add_u32 s58, s58, s55
s_lshl_b32 s44, s20, 10
s_mul_i32 s59, s21, 2359296
s_add_u32 s44, s44, s59
s_lshl_b32 s59, s24, 17
s_add_u32 s59, s59, s44
v_add_u32 v12, s59, v7
s_lshr_b32 s59, s24, 1
s_add_u32 s59, s59, 16
s_lshl_b32 s59, s59, 17
s_and_b32 s66, s24, 1
s_lshl_b32 s66, s66, 16
s_add_u32 s59, s59, s66
s_add_u32 s59, s59, s44
v_add_u32 v13, s59, v7""")
    NR=16
    frs=[(T,ks) for T in range(5) for ks in range(18)]
    def issue_load(n):
        T,ks=frs[n]
        rg=192+4*(n%NR)
        off=(ks>>1)*73728+(ks&1)*1024+(8192*T if T<4 else 0)
        a(f"s_add_u32 s67, s{57 if T<4 else 58}, {off}\nbuffer_load_dwordx4 v[{rg}:{rg+3}], v7, s[8:11], s67 offen")
        vq.push(('L',n))
    a("s_cmp_eq_u32 s23, 1\ns_cbranch_scc1 KF_J1")
    sv=(list(vq.q),list(lq.q))
    for j in range(2):
        vq.q[:],lq.q[:]=list(sv[0]),list(sv[1])
        if j: a("KF_J1:")
        def fr(n): a(f"ds_read_b128 v[{ring(n)}:{ring(n)+3}], v7 offset:{1024*n}"); lq.push(('F',8,n))
        for n in range(RA): fr(n)
        side=mish_items(3); emit(side,24)
        for n in range(36):
            if n+RA<36: fr(n+RA)
            lq.wait(('F',8,n))
            c="0" if n==0 else "v[48:63]"
            a(f"v_mfma_f32_32x32x16_bf16 v[48:63], v[{ring(n)}:{ring(n)+3}], {X(j,n)}, {c}")
            if n%2==0 and n//2<NR: issue_load(n//2); emit(side, LS-VMW)
            else: emit(side, LS)
        if j==0: a("s_branch KF_J2")
    a("KF_J2:")
    side3=side
    assert len(side3)>30
    a(f"""s_barrier
s_mov_b32 s64, s60
v_add_u32 v6, {EX}, v7
v_add_u32 v15, 36864, v6""")
    def areg(rt,ks):
        return f"a[{64*rt+4*ks}:{64*rt+4*ks+3}]" if ks<16 else f"v[{160+8*rt+4*(ks-16)}:{163+8*rt+4*(ks-16)}]"
    def ard(ks):
        for rt in range(4):
            a(f"ds_read_b128 {areg(rt,ks)}, v{6 if rt<2 else 15} offset:{18432*(rt%2)+1024*ks}"); lq.push(('A',ks,rt))
    ACC=((16,32,64,112),(48,80,96,128))
    def stores(T):
        o=[]
        for r in range(4 if T<4 else 2):
            for g in range(2):
                d=ACC[T%2][r]
                cv="".join(f"v_cvt_pk_f16_f32 v{d+4*g+i}, v{d+8*g+2*i}, v{d+8*g+2*i+1}\n" for i in range(4))
                rg=d+4*g
                if T<4: o.append(cv+f"s_mov_b32 s70, {524288*T+32768*r+16384*g}\nbuffer_store_dwordx4 v[{rg}:{rg+3}], v12, s[28:31], s70 offen")
                else: o.append(cv+f"s_mov_b32 s70, {32768*r+16384*g}\nbuffer_store_dwordx4 v[{rg}:{rg+3}], v13, s[28:31], s70 offen")
        return o
    def tile(T, rts, pend):
        if T==0:
            for ks in range(AA): ard(ks)
            side=mish_items(4)
        for ks in range(18):
            n=T*18+ks
            if T==0:
                kx=ks+AA
                if kx==12:
                    print("left3",len(side3)); emit(side3,10000); lq.wait(('W',3)); a("s_barrier")
                if kx==16:
                    print("left4",len(side)); emit(side,10000); lq.all(); a("s_barrier")
                if kx<18: ard(kx)
            vq.wait(('L',n))
            rg=192+4*(n%NR)
            for i,rt in enumerate(rts):
                d=ACC[T%2][i]
                c="0" if ks==0 else f"v[{d}:{d+15}]"
                if T==0: lq.wait(('A',ks,rt))
                a(f"v_mfma_f32_32x32x16_bf16 v[{d}:{d+15}], v[{rg}:{rg+3}], {areg(rt,ks)}, {c}")
                if T==0: emit(side3 if side3 else side, TS)
            if n+NR<len(frs): issue_load(n+NR)
            if pend and ks>=1 and ks%2==1:
                a(pend.pop(0)); vq.push(('S',0))
        while pend: a(pend.pop(0)); vq.push(('S',0))
    pend=[]
    for T in range(4):
        tile(T,[0,1,2,3],pend); pend=stores(T)
    a("s_and_b32 s66, s24, 1\ns_cmp_eq_u32 s66, 1\ns_cbranch_scc1 KF_H1")
    q0=list(vq.q); p0=list(pend)
    tile(4,[0,1],pend); a("s_branch KF_H2\nKF_H1:")
    vq.q[:]=q0
    tile(4,[2,3],p0); a("KF_H2:\ns_nop 7\ns_nop 7\ns_nop 7")
    for s in stores(4): a(s)
    a(f"""s_waitcnt vmcnt(0)
s_memtime s[66:67]
s_waitcnt lgkmcnt(0)
s_cmp_ge_u32 s2, 6
s_cbranch_scc1 KF_END
s_and_b32 s70, s2, 1
s_cmp_lg_u32 s70, 0
s_cbranch_scc1 KF_END
s_lshr_b32 s71, s2, 1
s_sub_u32 s62, s62, s60
s_sub_u32 s64, s64, s60
s_sub_u32 s66, s66, s60
s_lshl_b32 s68, s71, 4
s_add_u32 s68, s68, {ST}
v_mov_b32 v1, s68
v_mov_b32 v2, s62
v_mov_b32 v3, s64
v_mov_b32 v4, s66
s_getreg_b32 s69, hwreg(HW_REG_XCC_ID)
v_mov_b32 v5, s69
global_store_dwordx4 v1, v[2:5], s[4:5]""")
    a("KF_END:\ns_endpgm")
    return a.text()
```

```python
from gen_common import *
import gen_k1d as gen_k1
from gen_conv3 import gen_k4t
import gen_k3i
from gen_k3i import gen_k3g as gen_k3d, K3LDS
from gen_k2t import gen_k2k as gen_k2g
from gen_v3 import *
import sys
from gen_k1i import gen_k1f as gen_k1e, K1LDS
import os
if os.environ.get('KPV'): gen_k3i.KP,gen_k3i.EX=[int(x) for x in os.environ['KPV'].split(',')]
if os.environ.get('FINE'): gen_k3i.FINE=int(os.environ['FINE'])
k1,TOT=gen_k1e()
k3=gen_k3d(int(sys.argv[2]) if len(sys.argv)>2 else 0)
ref=open(f"cdna_kernels/{NAME}.s.ref").read().split("\n")
out="\n".join(l for l in ref if l.startswith(";") and "@launch" not in l)+"\n"
out+=f"; @launch kernel=k1_kernel grid=({TOT},1,1) block=(256,1,1) lds={K1LDS}\n"
out+="; @launch kernel=k2f_kernel grid=(256,1,1) block=(256,1,1) lds=157184\n"
out+=f"; @launch kernel=k3c_kernel grid=(1152,1,1) block=(256,1,1) lds={K3LDS}\n"
out+="; @launch kernel=k4f_kernel grid=(288,1,1) block=(256,1,1) lds=9216\n"
out+='.amdgcn_target "amdgcn-amd-amdhsa--gfx950"\n.text\n'
def stamp(t, n, idx):
    st=f"""    s_cmp_lg_u32 s2, 0
    s_cbranch_scc1 STK{idx}
    s_load_dwordx2 s[96:97], s[0:1], 120
    s_memrealtime s[98:99]
    s_waitcnt lgkmcnt(0)
    v_mov_b32 v1, {ST+48+4*idx}
    v_mov_b32 v2, s98
    global_store_dword v1, v2, s[96:97]
STK{idx}:
"""
    return t.replace(n+":\n", n+":\n"+st, 1)
for idx,(n,t) in enumerate((("k1_kernel",k1),("k2f_kernel",gen_k2g()),("k3c_kernel",k3),("k4f_kernel",gen_k4t()))):
    t=stamp(t,n,idx)
    out+=f".globl {n}\n.p2align 8\n.type {n},@function\n"+t
out+='.section .rodata,"a"\n'
for n,v,ac in (("k1_kernel",64,64),("k2f_kernel",512,256),("k3c_kernel",96,96),("k4f_kernel",64,64)):
    out+=".p2align 6\n"+kd(n,v,102,ac)
open(sys.argv[1] if len(sys.argv)>1 else f"cdna_kernels/{NAME}.s","w").write(out)
```

```python
from gen_common import *
from gen_v3 import *
EX = 83456
import os
DI=int(os.environ.get('DI','2')); D0=int(os.environ.get('D0','0')); AA=int(os.environ.get('AA','2')); LS=int(os.environ.get('LS','6')); TS=int(os.environ.get('TS','5')); SP=int(os.environ.get('SP','2'))
class Q:
    def __init__(s, a, name, mx): s.a=a; s.q=[]; s.n=name; s.mx=mx
    def push(s, tag): s.q.append(tag)
    def wait(s, tag):
        if tag not in s.q: return
        idx=max(i for i,x in enumerate(s.q) if x==tag)
        allow=min(len(s.q)-1-idx, s.mx)
        s.a(f"s_waitcnt {s.n}({allow})")
        s.q[:]=s.q[len(s.q)-allow:] if allow else []
    def all(s):
        if s.q: s.a(f"s_waitcnt {s.n}(0)"); s.q[:]=[]

def gen_k2k(SIDE=4, RA=5, PRE=6, VMW=2):
    a = Asm()
    a(f"""k2f_kernel:
s_load_dwordx2 s[4:5], s[0:1], 120
s_mov_b32 s90, 0x7fff
s_cmp_ge_u32 s2, 256
s_cbranch_scc1 KF_END
s_waitcnt lgkmcnt(0)
s_memtime s[60:61]
s_waitcnt lgkmcnt(0)
s_and_b32 s20, s2, 7
s_lshl_b32 s20, s20, 1
s_bfe_u32 s22, s2, 0x10003
s_add_u32 s20, s20, s22
s_lshr_b32 s21, s2, 4""")
    srd(a, 8, 4, WI, 144*73728); srd(a, 12, 4, XN, L*D*2); srd(a, 28, 4, PART, 16*L*D*4); srd(a, 32, 4, B1F, F*4); srd(a, 44, 4, TB, 12288)
    a(f"""v_and_b32 v1, 63, v0
v_lshrrev_b32 v2, 6, v0
s_nop 0
v_readfirstlane_b32 s24, v2
v_lshrrev_b32 v4, 5, v1
v_lshlrev_b32 v7, 4, v1
s_lshr_b32 s22, s24, 1
s_and_b32 s23, s24, 1
s_lshl_b32 s25, s21, 2
s_lshl_b32 s26, s22, 1
s_add_u32 s26, s25, s26
s_mul_i32 s26, s26, 36864
v_add_u32 v6, s26, v7
s_mul_i32 s27, s24, 9216
s_mul_i32 s36, s20, 9
s_mul_i32 s37, s36, 73728
s_add_u32 s55, s37, 36864
s_add_u32 s38, s37, s27
s_add_u32 s38, s38, {8*73728}
s_mul_i32 s39, s22, 73728
s_add_u32 s37, s37, s39
s_mul_i32 s39, s23, 9216
s_add_u32 s37, s37, s39
s_mul_i32 s39, s23, 18432
v_add_u32 v8, s39, v7
s_lshl_b32 s42, s36, 7
v_lshlrev_b32 v10, 4, v4
v_add_u32 v10, s42, v10
s_lshl_b32 s39, s23, 7
v_add_u32 v11, s39, v10
v_add_u32 v10, 1024, v10
s_mul_i32 s39, s22, 36864
s_lshl_b32 s40, s23, 11
s_add_u32 s39, s39, s40
s_add_u32 s39, s39, {EX}
v_add_u32 v9, s39, v7
s_mul_i32 s39, s24, 18432
s_add_u32 s39, s39, {EX+16384}
v_add_u32 v14, s39, v7""")
    seen={}
    vq=Q(a,"vmcnt",63); lq=Q(a,"lgkmcnt",15)
    def dma_items(s):
        sg = 38 if s==8 else 37
        go = 0 if s==8 else (s>>1)*2*73728+(s&1)*18432
        o=[]
        for g in range(3):
            for k in range(4 if g<2 else 1):
                pre = f"s_add_u32 m0, s27, {36864*(s&1)+4096*g}\ns_add_u32 s41, s{sg}, {go+4096*g}\n" if k==0 else ""
                o.append(('vm',pre+f"buffer_load_dwordx4 v7, s[8:11], s41 offen offset:{1024*k} lds",('D',s)))
        return o
    def bias_items(P):
        o=[]
        for q in range(4):
            rg=136+16*(P&1)+4*q
            if P<4: o.append(('vm',f"buffer_load_dwordx4 v[{rg}:{rg+3}], v11, s[32:35], 0 offen offset:{256*P+32*q}",('B',P)))
            else: o.append(('vm',f"buffer_load_dwordx4 v[{rg}:{rg+3}], v10, s[32:35], 0 offen offset:{32*q}",('B',P)))
        return o
    def xn_items(k0,k1):
        o=[]
        for ks in range(k0,k1):
            for r in range(2):
                of=36864*r+1024*ks
                o.append(('vm',f"s_mov_b32 s49, {of&~4095}\nbuffer_load_dwordx4 {X(r,ks)}, v6, s[12:15], s49 offen offset:{of&4095}",('X',ks)))
        return o
    def emit(items, n):
        k=0
        while items and k<n:
            it=items.pop(0)
            if it[0]=='v': a(it[1]); k+=1
            elif it[0]=='ds': a(it[1]); lq.push(it[2]); k+=1
            elif it[0]=='vm': a(it[1]); vq.push(it[2]); k+=VMW; seen[it[2]]=seen.get(it[2],0)+1
            elif it[0]=='w': lq.wait(it[1])
            elif it[0]=='wb':
                assert seen.get(('B',it[1]))==4
                vq.wait(('B',it[1]))
    def dma(s): emit(dma_items(s),10000)
    def bias(P): emit(bias_items(P),10000)
    def X(r,ks):
        m=36*r+ks
        return f"a[{4*m}:{4*m+3}]" if m<64 else f"v[{16+4*(m-64)}:{19+4*(m-64)}]"
    dma(0)
    a("s_lshl_b32 s48, s24, 10")
    for j in range(3):
        a(f"s_add_u32 s49, s48, {4096*j}\ns_add_u32 s40, s49, {LUT_LDS}\ns_mov_b32 m0, s40\ns_nop 0\nbuffer_load_dwordx4 v7, s[44:47], s49 offen lds"); vq.push(('D',0))
    a(f"s_mov_b32 s50, 0x00010001\ns_mov_b32 s51, 0x000f000f\ns_mov_b32 s52, {(2*LUT_LO)*0x10001}\ns_mov_b32 s53, {(2*(LUT_LO+LUT_N-1))*0x10001}\ns_mov_b32 s54, {(2*LUT_N)*0x10001}")
    emit(xn_items(0,PRE),10000)
    for r in range(16): a(f"v_mov_b32 v{168+r}, 0")
    vq.wait(('D',0))
    a("s_barrier\ns_memtime s[62:63]\ns_waitcnt lgkmcnt(0)")
    XL = LUT_LDS - 2*LUT_LO
    def mish_items(P):
        st=P&1; nu=16 if P<4 else 8
        F=[];S=[]
        for p in range(nu):
            r=48+32*st+2*p; b=136+16*st+2*(p&7); t=184+4*(p%2); u=168+2*(p%8)
            f=[('v',x) for x in f"""v_cvt_pk_bf16_f32 v{r}, 0, v{r}
v_cvt_pk_bf16_f32 v{r+1}, 0, v{r+1}
v_add_f32 v{r}, v{r}, v{b}
v_add_f32 v{r+1}, v{r+1}, v{b+1}
v_cvt_pk_bf16_f32 v{t}, v{r}, v{r+1}
v_lshlrev_b32 v{r}, 16, v{t}
v_and_b32 v{r+1}, 0xffff0000, v{t}
v_pk_lshlrev_b16 v{t+1}, s50, v{t}
v_pk_max_u16 v{t+1}, v{t+1}, s52
v_pk_min_u16 v{t+1}, v{t+1}, s53
v_pk_lshrrev_b16 v{t}, s51, v{t}
v_pk_mad_u16 v{t+1}, v{t}, s54, v{t+1}
v_and_b32 v{t+2}, 0xffff, v{t+1}
v_lshrrev_b32 v{t+3}, 16, v{t+1}""".split("\n")]
            f.append(('ds',f"ds_read_u16_d16_hi v{u}, v{t+2} offset:{XL}",('U',P,p)))
            f.append(('ds',f"ds_read_u16_d16_hi v{u+1}, v{t+3} offset:{XL}",('U',P,p)))
            F.append(f)
            d=48+32*st+8*(p>>2)+(p&3)
            s=[('w',('U',P,p)),('v',f"v_mul_f32 v{r}, v{r}, v{u}"),('v',f"v_mul_f32 v{r+1}, v{r+1}, v{u+1}"),('v',f"v_cvt_pk_bf16_f32 v{d}, v{r}, v{r+1}")]
            if p&3==3:
                g=48+32*st+8*(p>>2)
                if P<4: s.append(('ds',f"ds_write_b128 v9, v[{g}:{g+3}] offset:{4096*P+18432*(p>>3)+1024*((p>>2)&1)}",('W',P)))
                else: s.append(('ds',f"ds_write_b128 v14, v[{g}:{g+3}] offset:{1024*((p>>2)&1)}",('W',P)))
            S.append(s)
        out=[('wb',P)]
        LAG=4
        for p in range(nu+LAG):
            if p<nu: out+=F[p]
            if p>=LAG: out+=S[p-LAG]
        return out
    side=[]
    def ring(n): return 112+4*(n%6)
    for s in range(8):
        P,kh=s>>1,s&1
        def fr(n): a(f"ds_read_b128 v[{ring(n)}:{ring(n)+3}], v8 offset:{36864*(s&1)+1024*n}"); lq.push(('F',s,n))
        for n in range(RA): fr(n)
        pre=dma_items(s+1)+(bias_items(P) if kh==0 else [])
        if s==0: pre+=xn_items(PRE,36)
        if kh==0 and P>0:
            side=mish_items(P-1); emit(side, 24)
        dq=[]
        if s==0: side=pre+side
        else: dq=pre
        for n in range(18):
            if n+RA<18: fr(n+RA)
            ks=18*kh+n
            assert seen.get(('X',ks))==2
            vq.wait(('X',ks))
            if n%2==0: lq.wait(('F',s,n+1))
            for r in range(2):
                d=48+32*(P&1)+16*r
                c="0" if ks==0 else f"v[{d}:{d+15}]"
                a(f"v_mfma_f32_32x32x16_bf16 v[{d}:{d+15}], v[{ring(n)}:{ring(n)+3}], {X(r,ks)}, {c}")
                m=2*n+r
                if dq and m>=D0 and (m-D0)%DI==0:
                    emit(dq,1); emit(side, SIDE-VMW)
                else: emit(side, SIDE)
        emit(dq,10000)
        if kh==1: emit(side, 10000)
        assert seen.get(('D',s+1))==9
        vq.wait(('D',s+1))
        a("s_barrier")
    bias(4)
    a(f"""s_lshl_b32 s57, s24, 11
s_add_u32 s57, s57, s55
s_lshr_b32 s58, s24, 1
s_add_u32 s58, s58, 16
s_lshl_b32 s58, s58, 11
s_add_u32 s58, s58, s55
s_lshl_b32 s44, s20, 10
s_mul_i32 s59, s21, 2359296
s_add_u32 s44, s44, s59
s_lshl_b32 s59, s24, 17
s_add_u32 s59, s59, s44
v_add_u32 v12, s59, v7
s_lshr_b32 s59, s24, 1
s_add_u32 s59, s59, 16
s_lshl_b32 s59, s59, 17
s_and_b32 s66, s24, 1
s_lshl_b32 s66, s66, 16
s_add_u32 s59, s59, s66
s_add_u32 s59, s59, s44
v_add_u32 v13, s59, v7""")
    NR=16
    frs=[(T,ks) for T in range(5) for ks in range(18)]
    def issue_load(n):
        T,ks=frs[n]
        rg=192+4*(n%NR)
        off=(ks>>1)*73728+(ks&1)*1024+(8192*T if T<4 else 0)
        a(f"s_add_u32 s67, s{57 if T<4 else 58}, {off}\nbuffer_load_dwordx4 v[{rg}:{rg+3}], v7, s[8:11], s67 offen")
        vq.push(('L',n))
    a("s_cmp_eq_u32 s23, 1\ns_cbranch_scc1 KF_J1")
    sv=(list(vq.q),list(lq.q))
    for j in range(2):
        vq.q[:],lq.q[:]=list(sv[0]),list(sv[1])
        if j: a("KF_J1:")
        def fr(n): a(f"ds_read_b128 v[{ring(n)}:{ring(n)+3}], v7 offset:{1024*n}"); lq.push(('F',8,n))
        for n in range(RA): fr(n)
        side=mish_items(3); emit(side,24)
        for n in range(36):
            if n+RA<36: fr(n+RA)
            if n%2==0: lq.wait(('F',8,n+1))
            c="0" if n==0 else "v[48:63]"
            a(f"v_mfma_f32_32x32x16_bf16 v[48:63], v[{ring(n)}:{ring(n)+3}], {X(j,n)}, {c}")
            if n%2==0 and n//2<NR: issue_load(n//2); emit(side, LS-VMW)
            else: emit(side, LS)
        if j==0: a("s_branch KF_J2")
    a("KF_J2:")
    side3=side
    assert len(side3)>30
    a(f"""s_barrier
s_mov_b32 s64, s60
v_add_u32 v6, {EX}, v7
v_add_u32 v15, 36864, v6""")
    def areg(rt,ks):
        return f"a[{64*rt+4*ks}:{64*rt+4*ks+3}]" if ks<16 else f"v[{160+8*rt+4*(ks-16)}:{163+8*rt+4*(ks-16)}]"
    def ard(ks):
        for rt in range(4):
            a(f"ds_read_b128 {areg(rt,ks)}, v{6 if rt<2 else 15} offset:{18432*(rt%2)+1024*ks}"); lq.push(('A',ks,rt))
    ACC=((16,32,64,112),(48,80,96,128))
    def stores(T):
        o=[]
        for r in range(4 if T<4 else 2):
            for g in range(2):
                d=ACC[T%2][r]
                cv="".join(f"v_cvt_pk_f16_f32 v{d+4*g+i}, v{d+8*g+2*i}, v{d+8*g+2*i+1}\n" for i in range(4))
                rg=d+4*g
                if T<4: o.append(cv+f"s_mov_b32 s70, {524288*T+32768*r+16384*g}\nbuffer_store_dwordx4 v[{rg}:{rg+3}], v12, s[28:31], s70 offen")
                else: o.append(cv+f"s_mov_b32 s70, {32768*r+16384*g}\nbuffer_store_dwordx4 v[{rg}:{rg+3}], v13, s[28:31], s70 offen")
        return o
    def tile(T, rts, pend):
        if T==0:
            for ks in range(AA): ard(ks)
            side=mish_items(4)
        for ks in range(18):
            n=T*18+ks
            if T==0:
                kx=ks+AA
                if kx==12:
                    print("left3",len(side3)); emit(side3,10000); lq.wait(('W',3)); a("s_barrier")
                if kx==16:
                    print("left4",len(side)); emit(side,10000); lq.all(); a("s_barrier")
                if kx<18: ard(kx)
            vq.wait(('L',n))
            rg=192+4*(n%NR)
            for i,rt in enumerate(rts):
                d=ACC[T%2][i]
                c="0" if ks==0 else f"v[{d}:{d+15}]"
                if T==0: lq.wait(('A',ks,rt))
                a(f"v_mfma_f32_32x32x16_bf16 v[{d}:{d+15}], v[{rg}:{rg+3}], {areg(rt,ks)}, {c}")
                if T==0: emit(side3 if side3 else side, TS)
                if pend and ks>=1 and i<len(rts)-1:
                    for _ in range(SP if len(rts)==4 else 3):
                        if pend:
                            x=pend.pop(0); a(x)
                            if 'store' in x: vq.push(('S',0))
            if n+NR<len(frs): issue_load(n+NR)
        assert not pend
    pend=[]
    for T in range(4):
        tile(T,[0,1,2,3],pend); pend=[y for x in stores(T) for y in x.split('\n')]
    a("s_and_b32 s66, s24, 1\ns_cmp_eq_u32 s66, 1\ns_cbranch_scc1 KF_H1")
    q0=list(vq.q); p0=list(pend)
    tile(4,[0,1],pend); a("s_branch KF_H2\nKF_H1:")
    vq.q[:]=q0
    tile(4,[2,3],p0); a("KF_H2:\ns_nop 7\ns_nop 7\ns_nop 7")
    for s in stores(4): a(s)
    a(f"""s_waitcnt vmcnt(0)
s_memtime s[66:67]
s_waitcnt lgkmcnt(0)
s_cmp_ge_u32 s2, 6
s_cbranch_scc1 KF_END
s_and_b32 s70, s2, 1
s_cmp_lg_u32 s70, 0
s_cbranch_scc1 KF_END
s_lshr_b32 s71, s2, 1
s_sub_u32 s62, s62, s60
s_sub_u32 s64, s64, s60
s_sub_u32 s66, s66, s60
s_lshl_b32 s68, s71, 4
s_add_u32 s68, s68, {ST}
v_mov_b32 v1, s68
v_mov_b32 v2, s62
v_mov_b32 v3, s64
v_mov_b32 v4, s66
s_getreg_b32 s69, hwreg(HW_REG_XCC_ID)
v_mov_b32 v5, s69
global_store_dwordx4 v1, v[2:5], s[4:5]""")
    a("KF_END:\ns_endpgm")
    return a.text()
```

```python
from gen_common import *
import gen_k1d as gen_k1
from gen_conv3 import gen_k4t
import gen_k3i
from gen_k3i import gen_k3g as gen_k3d, K3LDS
from gen_k2v import gen_k2k as gen_k2g
from gen_v3 import *
import sys
from gen_k1i import gen_k1f as gen_k1e, K1LDS
import os
if os.environ.get('KPV'): gen_k3i.KP,gen_k3i.EX=[int(x) for x in os.environ['KPV'].split(',')]
if os.environ.get('FINE'): gen_k3i.FINE=int(os.environ['FINE'])
k1,TOT=gen_k1e()
k3=gen_k3d(int(sys.argv[2]) if len(sys.argv)>2 else 0)
ref=open(f"cdna_kernels/{NAME}.s.ref").read().split("\n")
out="\n".join(l for l in ref if l.startswith(";") and "@launch" not in l)+"\n"
out+=f"; @launch kernel=k1_kernel grid=({TOT},1,1) block=(256,1,1) lds={K1LDS}\n"
out+="; @launch kernel=k2f_kernel grid=(256,1,1) block=(256,1,1) lds=157184\n"
out+=f"; @launch kernel=k3c_kernel grid=(1152,1,1) block=(256,1,1) lds={K3LDS}\n"
out+="; @launch kernel=k4f_kernel grid=(288,1,1) block=(256,1,1) lds=9216\n"
out+='.amdgcn_target "amdgcn-amd-amdhsa--gfx950"\n.text\n'
def stamp(t, n, idx):
    st=f"""    s_cmp_lg_u32 s2, 0
    s_cbranch_scc1 STK{idx}
    s_load_dwordx2 s[96:97], s[0:1], 120
    s_memrealtime s[98:99]
    s_waitcnt lgkmcnt(0)
    v_mov_b32 v1, {ST+48+4*idx}
    v_mov_b32 v2, s98
    global_store_dword v1, v2, s[96:97]
STK{idx}:
"""
    return t.replace(n+":\n", n+":\n"+st, 1)
for idx,(n,t) in enumerate((("k1_kernel",k1),("k2f_kernel",gen_k2g()),("k3c_kernel",k3),("k4f_kernel",gen_k4t()))):
    t=stamp(t,n,idx)
    out+=f".globl {n}\n.p2align 8\n.type {n},@function\n"+t
out+='.section .rodata,"a"\n'
for n,v,ac in (("k1_kernel",64,64),("k2f_kernel",512,256),("k3c_kernel",96,96),("k4f_kernel",64,64)):
    out+=".p2align 6\n"+kd(n,v,102,ac)
open(sys.argv[1] if len(sys.argv)>1 else f"cdna_kernels/{NAME}.s","w").write(out)
```

```python
from gen_common import *
from gen_v3 import *
EX = 83456
import os
MM=int(os.environ.get('MM','3'))
DI=int(os.environ.get('DI','2')); D0=int(os.environ.get('D0','0')); AA=int(os.environ.get('AA','2')); LS=int(os.environ.get('LS','6')); TS=int(os.environ.get('TS','5')); SP=int(os.environ.get('SP','2'))
class Q:
    def __init__(s, a, name, mx): s.a=a; s.q=[]; s.n=name; s.mx=mx
    def push(s, tag): s.q.append(tag)
    def wait(s, tag):
        if tag not in s.q: return
        idx=max(i for i,x in enumerate(s.q) if x==tag)
        allow=min(len(s.q)-1-idx, s.mx)
        s.a(f"s_waitcnt {s.n}({allow})")
        s.q[:]=s.q[len(s.q)-allow:] if allow else []
    def all(s):
        if s.q: s.a(f"s_waitcnt {s.n}(0)"); s.q[:]=[]

def gen_k2k(SIDE=4, RA=5, PRE=6, VMW=2):
    a = Asm()
    a(f"""k2f_kernel:
s_load_dwordx2 s[4:5], s[0:1], 120
s_mov_b32 s90, 0x7fff
s_cmp_ge_u32 s2, 256
s_cbranch_scc1 KF_END
s_waitcnt lgkmcnt(0)
s_memtime s[60:61]
s_waitcnt lgkmcnt(0)
s_and_b32 s20, s2, {(1<<(4-MM))-1}
s_lshl_b32 s20, s20, {MM}
s_bfe_u32 s22, s2, {hex((MM<<16)|3)}
s_add_u32 s20, s20, s22
s_bfe_u32 s21, s2, {hex(((MM-1)<<16)|(4-MM))}
s_lshl_b32 s21, s21, {5-MM}
s_lshr_b32 s22, s2, {3+MM}
s_add_u32 s21, s21, s22""")
    srd(a, 8, 4, WI, 144*73728); srd(a, 12, 4, XN, L*D*2); srd(a, 28, 4, PART, 16*L*D*4); srd(a, 32, 4, B1F, F*4); srd(a, 44, 4, TB, 12288)
    a(f"""v_and_b32 v1, 63, v0
v_lshrrev_b32 v2, 6, v0
s_nop 0
v_readfirstlane_b32 s24, v2
v_lshrrev_b32 v4, 5, v1
v_lshlrev_b32 v7, 4, v1
s_lshr_b32 s22, s24, 1
s_and_b32 s23, s24, 1
s_lshl_b32 s25, s21, 2
s_add_u32 s26, s25, s24
s_mul_i32 s26, s26, 36864
s_mul_i32 s39, s22, 18432
s_add_u32 s39, s39, {EX}
v_add_u32 v6, s39, v7
s_mul_i32 s27, s24, 9216
s_mul_i32 s36, s20, 9
s_mul_i32 s37, s36, 73728
s_add_u32 s55, s37, 36864
s_add_u32 s38, s37, s27
s_add_u32 s38, s38, {8*73728}
s_mul_i32 s39, s22, 73728
s_add_u32 s37, s37, s39
s_mul_i32 s39, s23, 9216
s_add_u32 s37, s37, s39
s_mul_i32 s39, s23, 18432
v_add_u32 v8, s39, v7
s_lshl_b32 s42, s36, 7
v_lshlrev_b32 v10, 4, v4
v_add_u32 v10, s42, v10
s_lshl_b32 s39, s23, 7
v_add_u32 v11, s39, v10
v_add_u32 v10, 1024, v10
s_mul_i32 s39, s22, 36864
s_lshl_b32 s40, s23, 11
s_add_u32 s39, s39, s40
s_add_u32 s39, s39, {EX}
v_add_u32 v9, s39, v7
s_mul_i32 s39, s24, 18432
s_add_u32 s39, s39, {EX+16384}
v_add_u32 v14, s39, v7""")
    seen={}
    vq=Q(a,"vmcnt",63); lq=Q(a,"lgkmcnt",15)
    def dma_items(s):
        sg = 38 if s==8 else 37
        go = 0 if s==8 else (s>>1)*2*73728+(s&1)*18432
        o=[]
        for g in range(3):
            for k in range(4 if g<2 else 1):
                pre = f"s_add_u32 m0, s27, {36864*(s&1)+4096*g}\ns_add_u32 s41, s{sg}, {go+4096*g}\n" if k==0 else ""
                o.append(('vm',pre+f"buffer_load_dwordx4 v7, s[8:11], s41 offen offset:{1024*k} lds",('D',s)))
        return o
    def bias_items(P):
        o=[]
        for q in range(4):
            rg=136+16*(P&1)+4*q
            if P<4: o.append(('vm',f"buffer_load_dwordx4 v[{rg}:{rg+3}], v11, s[32:35], 0 offen offset:{256*P+32*q}",('B',P)))
            else: o.append(('vm',f"buffer_load_dwordx4 v[{rg}:{rg+3}], v10, s[32:35], 0 offen offset:{32*q}",('B',P)))
        return o
    def xn_items(k0,k1):
        o=[]
        for ks in range(k0,k1):
            for r in range(2):
                of=36864*r+1024*ks
                o.append(('vm',f"s_mov_b32 s49, {of&~4095}\nbuffer_load_dwordx4 {X(r,ks)}, v6, s[12:15], s49 offen offset:{of&4095}",('X',ks)))
        return o
    def emit(items, n):
        k=0
        while items and k<n:
            it=items.pop(0)
            if it[0]=='v': a(it[1]); k+=1
            elif it[0]=='ds': a(it[1]); lq.push(it[2]); k+=1
            elif it[0]=='vm': a(it[1]); vq.push(it[2]); k+=VMW; seen[it[2]]=seen.get(it[2],0)+1
            elif it[0]=='w': lq.wait(it[1])
            elif it[0]=='wb':
                assert seen.get(('B',it[1]))==4
                vq.wait(('B',it[1]))
    def dma(s): emit(dma_items(s),10000)
    def bias(P): emit(bias_items(P),10000)
    def X(r,ks):
        m=36*r+ks
        return f"a[{4*m}:{4*m+3}]" if m<64 else f"v[{16+4*(m-64)}:{19+4*(m-64)}]"
    def q_items(q):
        o=[]
        for g in range(3):
            for k in range(4 if g<2 else 1):
                pre = f"s_add_u32 m0, s27, {EX+36864*(q&1)+4096*g}\ns_add_u32 s41, s26, {9216*q+4096*g}\n" if k==0 else ""
                o.append(('vm',pre+f"buffer_load_dwordx4 v7, s[12:15], s41 offen offset:{1024*k} lds",('Q',q)))
        return o
    def lut_items():
        return [('vm',f"s_add_u32 s49, s48, {4096*j}\ns_add_u32 m0, s49, {LUT_LDS}\ns_nop 0\nbuffer_load_dwordx4 v7, s[44:47], s49 offen lds",('D',2)) for j in range(3)]
    d0=dma_items(0); q0_=q_items(0)
    PQ=int(os.environ.get('PQ','9'))
    rest=q_items(1)+dma_items(1)
    emit(q0_[:4]+d0[:4]+q0_[4:]+d0[4:]+rest[:PQ],10000); rest=rest[PQ:]
    a("s_lshl_b32 s48, s24, 10")
    a(f"s_mov_b32 s50, 0x00010001\ns_mov_b32 s51, 0x000f000f\ns_mov_b32 s52, {(2*LUT_LO)*0x10001}\ns_mov_b32 s53, {(2*(LUT_LO+LUT_N-1))*0x10001}\ns_mov_b32 s54, {(2*LUT_N)*0x10001}")
    for r in range(16): a(f"v_mov_b32 v{168+r}, 0")
    vq.wait(('D',0))
    a("s_barrier\ns_memtime s[62:63]\ns_waitcnt lgkmcnt(0)")
    XL = LUT_LDS - 2*LUT_LO
    def mish_items(P):
        st=P&1; nu=16 if P<4 else 8
        F=[];S=[]
        for p in range(nu):
            r=48+32*st+2*p; b=136+16*st+2*(p&7); t=184+4*(p%2); u=168+2*(p%8)
            f=[('v',x) for x in f"""v_cvt_pk_bf16_f32 v{r}, 0, v{r}
v_cvt_pk_bf16_f32 v{r+1}, 0, v{r+1}
v_add_f32 v{r}, v{r}, v{b}
v_add_f32 v{r+1}, v{r+1}, v{b+1}
v_cvt_pk_bf16_f32 v{t}, v{r}, v{r+1}
v_lshlrev_b32 v{r}, 16, v{t}
v_and_b32 v{r+1}, 0xffff0000, v{t}
v_pk_lshlrev_b16 v{t+1}, s50, v{t}
v_pk_max_u16 v{t+1}, v{t+1}, s52
v_pk_min_u16 v{t+1}, v{t+1}, s53
v_pk_lshrrev_b16 v{t}, s51, v{t}
v_pk_mad_u16 v{t+1}, v{t}, s54, v{t+1}
v_and_b32 v{t+2}, 0xffff, v{t+1}
v_lshrrev_b32 v{t+3}, 16, v{t+1}""".split("\n")]
            f.append(('ds',f"ds_read_u16_d16_hi v{u}, v{t+2} offset:{XL}",('U',P,p)))
            f.append(('ds',f"ds_read_u16_d16_hi v{u+1}, v{t+3} offset:{XL}",('U',P,p)))
            F.append(f)
            d=48+32*st+8*(p>>2)+(p&3)
            s=[('w',('U',P,p)),('v',f"v_mul_f32 v{r}, v{r}, v{u}"),('v',f"v_mul_f32 v{r+1}, v{r+1}, v{u+1}"),('v',f"v_cvt_pk_bf16_f32 v{d}, v{r}, v{r+1}")]
            if p&3==3:
                g=48+32*st+8*(p>>2)
                if P<4: s.append(('ds',f"ds_write_b128 v9, v[{g}:{g+3}] offset:{4096*P+18432*(p>>3)+1024*((p>>2)&1)}",('W',P)))
                else: s.append(('ds',f"ds_write_b128 v14, v[{g}:{g+3}] offset:{1024*((p>>2)&1)}",('W',P)))
            S.append(s)
        out=[('wb',P)]
        LAG=4
        for p in range(nu+LAG):
            if p<nu: out+=F[p]
            if p>=LAG: out+=S[p-LAG]
        return out
    side=[]
    def ring(n): return 112+4*(n%6)
    XA=int(os.environ.get('XA','4'))
    for s in range(2):
        def fr(n): a(f"ds_read_b128 v[{ring(n)}:{ring(n)+3}], v8 offset:{36864*(s&1)+1024*n}"); lq.push(('F',s,n))
        def xr(n):
            for r in range(2):
                a(f"ds_read_b128 {X(r,18*s+n)}, v6 offset:{36864*(n//9)+9216*r+1024*(n%9)}"); lq.push(('XR',n))
        for h in range(2):
            for n in range(max(RA,XA)):
                if n<XA: xr(9*h+n)
                if h==0 and n<RA: fr(n)
            dq={(0,0):rest,(0,1):q_items(2)+bias_items(0),(1,0):dma_items(2)+lut_items(),(1,1):[]}[(s,h)]
            for n in range(9*h,9*h+9):
                if n+XA<9*h+9: xr(n+XA)
                if n+RA<18: fr(n+RA)
                lq.wait(('XR',n)); lq.wait(('F',s,n))
                ks=18*s+n
                for r in range(2):
                    d=48+16*r
                    c="0" if ks==0 else f"v[{d}:{d+15}]"
                    a(f"v_mfma_f32_32x32x16_bf16 v[{d}:{d+15}], v[{ring(n)}:{ring(n)+3}], {X(r,ks)}, {c}")
                    emit(dq,1)
            emit(dq,10000)
            if h==0: vq.wait(('Q',2*s+1))
            else: vq.wait(('D',s+1))
            a("s_barrier")
        if s==0:
            emit(q_items(3),10000); vq.wait(('Q',2)); a("s_barrier")
    for s in range(2,8):
        P,kh=s>>1,s&1
        def fr(n): a(f"ds_read_b128 v[{ring(n)}:{ring(n)+3}], v8 offset:{36864*(s&1)+1024*n}"); lq.push(('F',s,n))
        for n in range(RA): fr(n)
        pre=dma_items(s+1)+(bias_items(P) if kh==0 else [])
        if s==0: pre+=xn_items(PRE,36)
        if kh==0 and P>0:
            side=mish_items(P-1); emit(side, 24)
        dq=[]
        if s==0: side=pre+side
        else: dq=pre
        for n in range(18):
            if n+RA<18: fr(n+RA)
            ks=18*kh+n
            if n%2==0: lq.wait(('F',s,n+1))
            for r in range(2):
                d=48+32*(P&1)+16*r
                c="0" if ks==0 else f"v[{d}:{d+15}]"
                a(f"v_mfma_f32_32x32x16_bf16 v[{d}:{d+15}], v[{ring(n)}:{ring(n)+3}], {X(r,ks)}, {c}")
                m=2*n+r
                if dq and m>=D0 and (m-D0)%DI==0:
                    emit(dq,1); emit(side, SIDE-VMW)
                else: emit(side, SIDE)
        emit(dq,10000)
        if kh==1: emit(side, 10000)
        vq.wait(('D',s+1))
        a("s_barrier")
    bias(4)
    a(f"""s_lshl_b32 s57, s24, 11
s_add_u32 s57, s57, s55
s_lshr_b32 s58, s24, 1
s_add_u32 s58, s58, 16
s_lshl_b32 s58, s58, 11
s_add_u32 s58, s58, s55
s_lshl_b32 s44, s20, 10
s_mul_i32 s59, s21, 2359296
s_add_u32 s44, s44, s59
s_lshl_b32 s59, s24, 17
s_add_u32 s59, s59, s44
v_add_u32 v12, s59, v7
s_lshr_b32 s59, s24, 1
s_add_u32 s59, s59, 16
s_lshl_b32 s59, s59, 17
s_and_b32 s66, s24, 1
s_lshl_b32 s66, s66, 16
s_add_u32 s59, s59, s66
s_add_u32 s59, s59, s44
v_add_u32 v13, s59, v7""")
    NR=16
    frs=[(T,ks) for T in range(5) for ks in range(18)]
    def issue_load(n):
        T,ks=frs[n]
        rg=192+4*(n%NR)
        off=(ks>>1)*73728+(ks&1)*1024+(8192*T if T<4 else 0)
        a(f"s_add_u32 s67, s{57 if T<4 else 58}, {off}\nbuffer_load_dwordx4 v[{rg}:{rg+3}], v7, s[8:11], s67 offen")
        vq.push(('L',n))
    a("s_cmp_eq_u32 s23, 1\ns_cbranch_scc1 KF_J1")
    sv=(list(vq.q),list(lq.q))
    for j in range(2):
        vq.q[:],lq.q[:]=list(sv[0]),list(sv[1])
        if j: a("KF_J1:")
        def fr(n): a(f"ds_read_b128 v[{ring(n)}:{ring(n)+3}], v7 offset:{1024*n}"); lq.push(('F',8,n))
        for n in range(RA): fr(n)
        side=mish_items(3); emit(side,24)
        for n in range(36):
            if n+RA<36: fr(n+RA)
            if n%2==0: lq.wait(('F',8,n+1))
            c="0" if n==0 else "v[48:63]"
            a(f"v_mfma_f32_32x32x16_bf16 v[48:63], v[{ring(n)}:{ring(n)+3}], {X(j,n)}, {c}")
            if n%2==0 and n//2<NR: issue_load(n//2); emit(side, LS-VMW)
            else: emit(side, LS)
        if j==0: a("s_branch KF_J2")
    a("KF_J2:")
    side3=side
    assert len(side3)>30
    a(f"""s_barrier
s_mov_b32 s64, s60
v_add_u32 v6, {EX}, v7
v_add_u32 v15, 36864, v6""")
    def areg(rt,ks):
        return f"a[{64*rt+4*ks}:{64*rt+4*ks+3}]" if ks<16 else f"v[{160+8*rt+4*(ks-16)}:{163+8*rt+4*(ks-16)}]"
    def ard(ks):
        for rt in range(4):
            a(f"ds_read_b128 {areg(rt,ks)}, v{6 if rt<2 else 15} offset:{18432*(rt%2)+1024*ks}"); lq.push(('A',ks,rt))
    ACC=((16,32,64,112),(48,80,96,128))
    def stores(T):
        o=[]
        for r in range(4 if T<4 else 2):
            for g in range(2):
                d=ACC[T%2][r]
                cv="".join(f"v_cvt_pk_f16_f32 v{d+4*g+i}, v{d+8*g+2*i}, v{d+8*g+2*i+1}\n" for i in range(4))
                rg=d+4*g
                if T<4: o.append(cv+f"s_mov_b32 s70, {524288*T+32768*r+16384*g}\nbuffer_store_dwordx4 v[{rg}:{rg+3}], v12, s[28:31], s70 offen")
                else: o.append(cv+f"s_mov_b32 s70, {32768*r+16384*g}\nbuffer_store_dwordx4 v[{rg}:{rg+3}], v13, s[28:31], s70 offen")
        return o
    def tile(T, rts, pend):
        if T==0:
            for ks in range(AA): ard(ks)
            side=mish_items(4)
        for ks in range(18):
            n=T*18+ks
            if T==0:
                kx=ks+AA
                if kx==12:
                    print("left3",len(side3)); emit(side3,10000); lq.wait(('W',3)); a("s_barrier")
                if kx==16:
                    print("left4",len(side)); emit(side,10000); lq.all(); a("s_barrier")
                if kx<18: ard(kx)
            vq.wait(('L',n))
            rg=192+4*(n%NR)
            for i,rt in enumerate(rts):
                d=ACC[T%2][i]
                c="0" if ks==0 else f"v[{d}:{d+15}]"
                if T==0: lq.wait(('A',ks,rt))
                a(f"v_mfma_f32_32x32x16_bf16 v[{d}:{d+15}], v[{rg}:{rg+3}], {areg(rt,ks)}, {c}")
                if T==0: emit(side3 if side3 else side, TS)
                if pend and ks>=1 and i<len(rts)-1:
                    for _ in range(SP if len(rts)==4 else 3):
                        if pend:
                            x=pend.pop(0); a(x)
                            if 'store' in x: vq.push(('S',0))
            if n+NR<len(frs): issue_load(n+NR)
        assert not pend
    pend=[]
    for T in range(4):
        tile(T,[0,1,2,3],pend); pend=[y for x in stores(T) for y in x.split('\n')]
    a("s_and_b32 s66, s24, 1\ns_cmp_eq_u32 s66, 1\ns_cbranch_scc1 KF_H1")
    q0=list(vq.q); p0=list(pend)
    tile(4,[0,1],pend); a("s_branch KF_H2\nKF_H1:")
    vq.q[:]=q0
    tile(4,[2,3],p0); a("KF_H2:\ns_nop 7\ns_nop 7\ns_nop 7")
    for s in stores(4): a(s)
    a(f"""s_waitcnt vmcnt(0)
s_memtime s[66:67]
s_waitcnt lgkmcnt(0)
s_cmp_ge_u32 s2, 6
s_cbranch_scc1 KF_END
s_and_b32 s70, s2, 1
s_cmp_lg_u32 s70, 0
s_cbranch_scc1 KF_END
s_lshr_b32 s71, s2, 1
s_sub_u32 s62, s62, s60
s_sub_u32 s64, s64, s60
s_sub_u32 s66, s66, s60
s_lshl_b32 s68, s71, 4
s_add_u32 s68, s68, {ST}
v_mov_b32 v1, s68
v_mov_b32 v2, s62
v_mov_b32 v3, s64
v_mov_b32 v4, s66
s_getreg_b32 s69, hwreg(HW_REG_XCC_ID)
v_mov_b32 v5, s69
global_store_dwordx4 v1, v[2:5], s[4:5]""")
    a("KF_END:\ns_endpgm")
    return a.text()
```

```python
from gen_common import *
import gen_k1d as gen_k1
from gen_conv3 import gen_k4t
import gen_k3i
from gen_k3i import gen_k3g as gen_k3d, K3LDS
from gen_k2z import gen_k2k as gen_k2g
from gen_v3 import *
import sys
from gen_k1i import gen_k1f as gen_k1e, K1LDS
import os
if os.environ.get('KPV'): gen_k3i.KP,gen_k3i.EX=[int(x) for x in os.environ['KPV'].split(',')]
if os.environ.get('FINE'): gen_k3i.FINE=int(os.environ['FINE'])
k1,TOT=gen_k1e()
k3=gen_k3d(int(sys.argv[2]) if len(sys.argv)>2 else 0)
ref=open(f"cdna_kernels/{NAME}.s.ref").read().split("\n")
out="\n".join(l for l in ref if l.startswith(";") and "@launch" not in l)+"\n"
out+=f"; @launch kernel=k1_kernel grid=({TOT},1,1) block=(256,1,1) lds={K1LDS}\n"
out+="; @launch kernel=k2f_kernel grid=(256,1,1) block=(256,1,1) lds=157184\n"
out+=f"; @launch kernel=k3c_kernel grid=(1152,1,1) block=(256,1,1) lds={K3LDS}\n"
out+="; @launch kernel=k4f_kernel grid=(288,1,1) block=(256,1,1) lds=9216\n"
out+='.amdgcn_target "amdgcn-amd-amdhsa--gfx950"\n.text\n'
def stamp(t, n, idx):
    st=f"""    s_cmp_lg_u32 s2, 0
    s_cbranch_scc1 STK{idx}
    s_load_dwordx2 s[96:97], s[0:1], 120
    s_memrealtime s[98:99]
    s_waitcnt lgkmcnt(0)
    v_mov_b32 v1, {ST+48+4*idx}
    v_mov_b32 v2, s98
    global_store_dword v1, v2, s[96:97]
STK{idx}:
"""
    return t.replace(n+":\n", n+":\n"+st, 1)
for idx,(n,t) in enumerate((("k1_kernel",k1),("k2f_kernel",gen_k2g()),("k3c_kernel",k3),("k4f_kernel",gen_k4t()))):
    t=stamp(t,n,idx)
    out+=f".globl {n}\n.p2align 8\n.type {n},@function\n"+t
out+='.section .rodata,"a"\n'
for n,v,ac in (("k1_kernel",64,64),("k2f_kernel",512,256),("k3c_kernel",96,96),("k4f_kernel",64,64)):
    out+=".p2align 6\n"+kd(n,v,102,ac)
open(sys.argv[1] if len(sys.argv)>1 else f"cdna_kernels/{NAME}.s","w").write(out)
```

```python
from gen_common import *
from gen_v3 import XP, KR, img_role, tab_role
import gen_k1j as gen_k1e
KD=KR; KDA=4224; KDS=KDA
TBL=0; LA=5760; SC=5952; TL=6144; K1LDS=TL+12288
def kgen_role(a):
    a("""K1_KGEN:
s_load_dwordx8 s[8:15], s[0:1], 8
s_load_dwordx4 s[16:19], s[0:1], 40
s_load_dwordx2 s[20:21], s[0:1], 56
s_waitcnt lgkmcnt(0)
s_lshl_b32 s22, s2, 8
v_lshlrev_b32 v1, 1, v0
v_add_u32 v1, s22, v1
v_cmp_gt_u32 vcc, 128, v0
s_and_saveexec_b64 s[24:25], vcc
global_load_ushort v2, v1, s[8:9]
global_load_ushort v3, v1, s[10:11]
global_load_ushort v4, v1, s[12:13]
global_load_ushort v5, v1, s[14:15]
global_load_ushort v6, v1, s[16:17]
global_load_ushort v7, v1, s[18:19]
s_lshl_b32 s23, s2, 1
v_mov_b32 v8, s23
global_load_ushort v8, v8, s[20:21]
s_mov_b64 exec, s[24:25]
v_and_b32 v12, 63, v0
v_lshrrev_b32 v13, 6, v0
v_and_b32 v14, 15, v12
v_lshrrev_b32 v15, 4, v12
v_lshl_add_u32 v16, v13, 5, v15
v_lshlrev_b32 v16, 4, v16
v_and_b32 v17, 7, v14
v_lshrrev_b32 v18, 3, v14
v_lshl_add_u32 v20, v18, 7, v17
v_and_b32 v17, 3, v14
v_lshlrev_b32 v17, 1, v17
v_bfe_u32 v18, v14, 2, 1
v_lshl_add_u32 v17, v18, 7, v17
v_add_u32 v17, 256, v17
v_and_b32 v18, 1, v14
v_lshlrev_b32 v18, 2, v18
v_bfe_u32 v19, v14, 1, 2
v_lshl_add_u32 v18, v19, 7, v18
v_add_u32 v18, 512, v18
v_cmp_gt_u32 vcc, 8, v14
v_cndmask_b32 v21, v18, v17, vcc
v_lshlrev_b32 v17, 7, v14
v_add_u32 v17, 1024, v17
v_mov_b32 v18, 2056
v_cmp_gt_u32 vcc, 9, v14
v_cndmask_b32 v22, v18, v17, vcc
v_lshlrev_b32 v23, 3, v14
v_cmp_gt_u32 vcc, 16, v0
s_and_saveexec_b64 s[24:25], vcc
v_lshlrev_b32 v17, 2, v14""")
    a(f"""ds_write_b32 v17, v20 offset:{LA}
ds_write_b32 v17, v21 offset:{LA+64}
ds_write_b32 v17, v22 offset:{LA+128}
s_mov_b64 exec, s[24:25]
v_cvt_f32_u32 v20, v20
v_cvt_f32_u32 v21, v21
v_cvt_f32_u32 v22, v22
v_cvt_f32_u32 v23, v23
v_cmp_gt_u32 vcc, 128, v0
s_and_saveexec_b64 s[24:25], vcc
s_waitcnt vmcnt(0)
v_lshlrev_b32 v2, 16, v2
v_lshlrev_b32 v3, 16, v3
v_lshlrev_b32 v4, 16, v4
v_lshlrev_b32 v5, 16, v5
v_lshlrev_b32 v6, 16, v6
v_lshlrev_b32 v7, 16, v7
v_lshlrev_b32 v8, 16, v8
v_mul_f32 v8, 0x3fb8aa3b, v8
v_exp_f32 v8, v8
s_nop 0""")
    bf16_rne(a, 8, 8, 9)
    a("""v_mul_f32 v2, v8, v2
v_mul_f32 v3, v8, v3
v_mul_f32 v4, v8, v4
v_mul_f32 v5, v8, v5
v_mul_f32 v10, v6, v4
v_fma_f32 v10, -v7, v5, v10
v_mul_f32 v11, v6, v5
v_fma_f32 v11, v7, v4, v11
v_mul_f32 v8, 0x3fb8aa3b, v2
v_mul_f32 v9, 0x3e22f983, v3
v_lshlrev_b32 v1, 4, v0
ds_write_b128 v1, v[8:11]
v_add_f32_e64 v17, |v10|, |v11|
v_lshlrev_b32 v18, 2, v13""")
    for op in ("row_shr:1 row_mask:0xf","row_shr:2 row_mask:0xf","row_shr:4 row_mask:0xf","row_shr:8 row_mask:0xf","row_bcast:15 row_mask:0xa","row_bcast:31 row_mask:0xc"):
        a(f"s_nop 1\nv_add_f32_dpp v17, v17, v17 {op} bank_mask:0xf bound_ctrl:0")
    a(f"""s_nop 1
v_readlane_b32 s30, v17, 63
s_nop 3
v_mov_b32 v17, s30
ds_write_b32 v18, v17 offset:{SC}
s_mov_b64 exec, s[24:25]
s_waitcnt lgkmcnt(0)
s_barrier""")
    for t in range(4): a(f"ds_read_b128 v[{36+4*t}:{39+4*t}], v16 offset:{64*t}")
    for t in range(8):
        pb=36+4*(t%4)
        ar,ai,wr,wi = pb,pb+1,pb+2,pb+3
        T=lambda e,k: 52+3*e+k
        a(f"s_waitcnt lgkmcnt({3 if t<5 else 7-t})")
        for e in range(4): a(f"v_mul_f32 v{T(e,0)}, v{ar}, v{20+e}\nv_mul_f32 v{T(e,1)}, v{ai}, v{20+e}")
        for e in (3,0,1,2): a(f"v_fract_f32 v{T(e,1)}, v{T(e,1)}")
        for e in (3,0,1,2): a(f"v_exp_f32 v{T(e,0)}, v{T(e,0)}\nv_sin_f32 v{T(e,2)}, v{T(e,1)}\nv_cos_f32 v{T(e,1)}, v{T(e,1)}")
        for e in (3,0,1,2): a(f"v_mul_f32 v{T(e,1)}, v{T(e,0)}, v{T(e,1)}\nv_mul_f32 v{T(e,2)}, v{T(e,0)}, v{T(e,2)}")
        a(f"v_mul_f32 v{T(3,0)}, v{wi}, v{T(3,2)}\nv_mul_f32 v{T(0,0)}, v{wi}, v{T(3,1)}")
        a(f"v_fma_f32 v{T(3,0)}, v{wr}, v{T(3,1)}, -v{T(3,0)}\nv_fma_f32 v{T(3,1)}, -v{wr}, v{T(3,2)}, -v{T(0,0)}")
        if t<4: a(f"ds_read_b128 v[{pb}:{pb+3}], v16 offset:{64*(t+4)}")
        a("s_nop 1")
        for e in range(3):
            c = "0" if t==0 else f"v[{24+4*e}:{27+4*e}]"
            a(f"v_mfma_f32_16x16x4_f32 v[{24+4*e}:{27+4*e}], v{T(e,1)}, v{T(3,0)}, {c}")
        for e in range(3):
            a(f"v_mfma_f32_16x16x4_f32 v[{24+4*e}:{27+4*e}], v{T(e,2)}, v{T(3,1)}, v[{24+4*e}:{27+4*e}]")
        a("s_nop 1")
    a(f"""s_nop 7
s_nop 7
v_mul_u32_u24 v17, 3072, v13
v_lshl_add_u32 v17, v12, 4, v17
ds_write_b128 v17, v[24:27] offset:{TL}
ds_write_b128 v17, v[28:31] offset:{TL+1024}
ds_write_b128 v17, v[32:35] offset:{TL+2048}
s_mov_b32 s26, {(-0x3f7f*4)&0xffffffff}
s_mov_b32 s27, 0x3f7f3f7f
s_mov_b32 s28, 0x00020002
s_waitcnt lgkmcnt(0)
s_barrier
v_cmp_gt_u32 vcc, 192, v0
s_and_saveexec_b64 s[24:25], vcc
v_lshlrev_b32 v17, 10, v13
v_lshl_add_u32 v17, v12, 4, v17
ds_read_b128 v[24:27], v17 offset:{TL}
ds_read_b128 v[28:31], v17 offset:{TL+3072}
ds_read_b128 v[32:35], v17 offset:{TL+6144}
ds_read_b128 v[36:39], v17 offset:{TL+9216}
v_lshlrev_b32 v18, 6, v13
v_lshl_add_u32 v18, v15, 4, v18
ds_read_b128 v[40:43], v18 offset:{LA}
v_lshlrev_b32 v19, 3, v14
v_mov_b32 v18, 0x4501
s_waitcnt lgkmcnt(0)""")
    for r in range(4):
        a(f"""v_add_f32 v{24+r}, v{24+r}, v{28+r}
v_add_f32 v{32+r}, v{32+r}, v{36+r}
v_add_f32 v{24+r}, v{24+r}, v{32+r}
v_add_u32 v{40+r}, v{40+r}, v19
v_cvt_f32_u32 v44, v{40+r}
v_lshrrev_b32 v44, 16, v44
v_max_u32 v44, 0x3f7f, v44
v_cmp_lt_u32 vcc, 2048, v{40+r}
v_cndmask_b32 v44, v44, v18, vcc
v_lshl_add_u32 v{40+r}, v44, 2, s26
ds_write_b32 v{40+r}, v{24+r} offset:{TBL}""")
    a("""s_mov_b64 exec, s[24:25]
v_lshlrev_b32 v1, 3, v0
v_sub_u32 v1, 2047, v1
v_cvt_f32_u32 v2, v1""")
    srd(a, 8, 4, KD, 576*KDS)
    a(f"s_mul_i32 s22, s2, {KDS}")
    fl={1:"1.0",2:"2.0",3:"0x40400000",4:"4.0",5:"0x40a00000",6:"0x40c00000",7:"0x40e00000"}
    for m in range(4):
        x0 = "v2" if m==0 else "v3"
        if m: a(f"v_subrev_f32 v3, {fl[2*m]}, v2")
        a(f"""v_subrev_f32 v4, {fl[2*m+1]}, v2
v_cvt_pk_bf16_f32 v5, {x0}, v4
v_pk_sub_u16 v5, v5, s27 clamp
v_pk_lshlrev_b16 v5, s28, v5
v_and_b32 v{44+2*m}, 0xffff, v5
v_lshrrev_b32 v{45+2*m}, 16, v5""")
    a(f"""v_mov_b32 v2, 0
ds_read_b64 v[32:33], v2 offset:{SC}
s_waitcnt lgkmcnt(0)
s_barrier""")
    for u in range(8): a(f"ds_read_b32 v{24+u}, v{44+u} offset:{TBL}")
    a(f"""v_add_f32 v32, v32, v33
v_lshrrev_b32 v32, 23, v32
v_max_u32 v32, 32, v32
v_sub_u32 v33, 268, v32
v_lshlrev_b32 v33, 23, v33
v_subrev_u32 v32, 24, v32
v_lshlrev_b32 v32, 23, v32
v_lshlrev_b32 v1, 4, v0
v_cmp_gt_u32 vcc, 8, v0
s_and_saveexec_b64 s[24:25], vcc
s_cbranch_execz K1_KZ
v_add_u32 v3, 4096, v1
v_cmp_eq_u32 vcc, 4, v0
v_cndmask_b32 v4, 0, v32, vcc
v_mov_b32 v5, 0
v_mov_b32 v6, 0
v_mov_b32 v7, 0
buffer_store_dwordx4 v[4:7], v3, s[8:11], s22 offen
K1_KZ:
s_mov_b64 exec, s[24:25]""")
    for m in range(4):
        a(f"""s_waitcnt lgkmcnt({6-2*m})
v_mul_f32 v{24+2*m}, v{24+2*m}, v33
v_mul_f32 v{25+2*m}, v{25+2*m}, v33
v_cvt_pk_f16_f32 v{36+m}, v{24+2*m}, v{25+2*m}""")
    a(f"""buffer_store_dwordx4 v[36:39], v1, s[8:11], s22 offen
s_branch K1_END""")

def gen_k1f():
    t,TOT=gen_k1e.gen_k1e()
    head="k1_kernel:\n    s_load_dwordx2 s[4:5], s[0:1], 120\n    s_mov_b32 s90, 0x7fff\n"
    assert t.startswith(head)
    t=head+"    s_cmp_lt_u32 s2, 576\n    s_cbranch_scc1 K1_KGEN\n    s_sub_u32 s2, s2, 576\n"+t[len(head):]
    b=Asm(); kgen_role(b)
    tail="K1_END:\n    s_endpgm\n"
    assert t.endswith(tail)
    return t[:-len(tail)]+b.text()+tail, TOT+576
```

```python
from gen_common import *
import gen_k1d as gen_k1
from gen_conv3 import gen_k4t
import gen_k3i
from gen_k3i import gen_k3g as gen_k3d, K3LDS
from gen_k2z import gen_k2k as gen_k2g
from gen_v3 import *
import sys
from gen_k1l import gen_k1f as gen_k1e, K1LDS
import os
if os.environ.get('KPV'): gen_k3i.KP,gen_k3i.EX=[int(x) for x in os.environ['KPV'].split(',')]
if os.environ.get('FINE'): gen_k3i.FINE=int(os.environ['FINE'])
k1,TOT=gen_k1e()
k3=gen_k3d(int(sys.argv[2]) if len(sys.argv)>2 else 0)
ref=open(f"cdna_kernels/{NAME}.s.ref").read().split("\n")
out="\n".join(l for l in ref if l.startswith(";") and "@launch" not in l)+"\n"
out+=f"; @launch kernel=k1_kernel grid=({TOT},1,1) block=(256,1,1) lds={K1LDS}\n"
out+="; @launch kernel=k2f_kernel grid=(256,1,1) block=(256,1,1) lds=157184\n"
out+=f"; @launch kernel=k3c_kernel grid=(1152,1,1) block=(256,1,1) lds={K3LDS}\n"
out+="; @launch kernel=k4f_kernel grid=(288,1,1) block=(256,1,1) lds=9216\n"
out+='.amdgcn_target "amdgcn-amd-amdhsa--gfx950"\n.text\n'
def stamp(t, n, idx):
    st=f"""    s_cmp_lg_u32 s2, 0
    s_cbranch_scc1 STK{idx}
    s_load_dwordx2 s[96:97], s[0:1], 120
    s_memrealtime s[98:99]
    s_waitcnt lgkmcnt(0)
    v_mov_b32 v1, {ST+48+4*idx}
    v_mov_b32 v2, s98
    global_store_dword v1, v2, s[96:97]
STK{idx}:
"""
    return t.replace(n+":\n", n+":\n"+st, 1)
for idx,(n,t) in enumerate((("k1_kernel",k1),("k2f_kernel",gen_k2g()),("k3c_kernel",k3),("k4f_kernel",gen_k4t()))):
    t=stamp(t,n,idx)
    out+=f".globl {n}\n.p2align 8\n.type {n},@function\n"+t
out+='.section .rodata,"a"\n'
for n,v,ac in (("k1_kernel",64,64),("k2f_kernel",512,256),("k3c_kernel",96,96),("k4f_kernel",64,64)):
    out+=".p2align 6\n"+kd(n,v,102,ac)
open(sys.argv[1] if len(sys.argv)>1 else f"cdna_kernels/{NAME}.s","w").write(out)
```

```python
from gen_common import *
from gen_v3 import XP, YAT, PART, YB
from gen_k1i import KD, KDA, KDS
C=2047; XB=2480; KC=XB+5120; K3LDS=40960
KP=4144; EX=0
import os
NRW=int(os.environ.get('NRW','448'))
def koff(c): return KC+c*KP+(c>>2)*EX
def conv_steps(a, qs):
    qmax=qs[-1]
    steps=[]; cur=[]; regs=0
    dlof=lambda q:(q+1)//2 if q%2 else q//2
    for q in qs:
        r=12 if dlof(q)<=31 else 8
        if regs+r>24: steps.append(cur); cur=[]; regs=0
        cur.append(q); regs+=r
    steps.append(cur)
    def reads(n):
        o=16+24*(n%2); ops=[]; cnt=0
        for q in steps[n]:
            dl=dlof(q); ks=q%2
            a(f"ds_read_b128 v[{o}:{o+3}], v12 offset:{32*(qmax-q)}")
            kb=o; o+=4; cnt+=1
            for j in ([0,1] if dl<=31 else [1]):
                off=XB+80*(32*j-dl)+32*ks
                assert off>=0
                a(f"ds_read_b128 v[{o}:{o+3}], v14 offset:{off}")
                ops.append((j,kb,o,cnt+1)); o+=4; cnt+=1
        return ops,cnt
    ops,cp=reads(0)
    for n in range(len(steps)):
        c=0
        if n+1<len(steps): on,c=reads(n+1)
        last=None
        for (j,kb,xo,need) in ops:
            w=c+cp-need
            if FINE:
                if w!=last: a(f"s_waitcnt lgkmcnt({w})")
                last=w
            elif last is None:
                a(f"s_waitcnt lgkmcnt({c})"); last=c
            a(f"v_mfma_f32_32x32x16_f16 v[{64+16*j}:{79+16*j}], v[{kb}:{kb+3}], v[{xo}:{xo+3}], v[{64+16*j}:{79+16*j}]")
        if n+1<len(steps): ops=on; cp=c
FINE=1
def gen_k3g(MIX=0, rng=((-1,26),(26,53),(53,88),(88,127))):
    a=Asm()
    a(f"""k3c_kernel:
s_load_dwordx2 s[4:5], s[0:1], 120
s_load_dwordx2 s[6:7], s[0:1], 64
s_mov_b32 s90, 0x7fff
s_cmp_ge_u32 s2, {576+NRW}
s_cbranch_scc1 K3_END""")
    if MIX==1:
        a("""s_cmp_ge_u32 s2, 864
s_cbranch_scc1 K3R
s_mul_hi_u32 s3, s2, 0x55555556
s_mul_i32 s20, s3, 3
s_add_u32 s20, s20, 2
s_cmp_lg_u32 s20, s2
s_cbranch_scc1 K3C
s_add_u32 s2, s3, 576
s_branch K3R
K3C:
s_sub_u32 s2, s2, s3""")
    else:
        a("s_cmp_ge_u32 s2, 576\ns_cbranch_scc1 K3R")
    a("s_waitcnt lgkmcnt(0)")
    srd(a, 36, 4, XP, 576*5120); srd(a, 28, 4, YAT, L*D*2); srd(a, 32, 6, 0, D*2); srd(a, 8, 4, KD, 576*KDS)
    a(f"""v_lshlrev_b32 v4, 4, v0
s_mul_i32 s41, s2, {KDS}
v_lshrrev_b32 v1, 6, v0
s_nop 0
v_readfirstlane_b32 s20, v1
buffer_load_dwordx4 v[16:19], v4, s[8:11], s41 offen
buffer_load_dwordx4 v[20:23], v4, s[8:11], s41 offen offset:16
buffer_load_dwordx4 v[24:27], v4, s[8:11], s41 offen offset:4
buffer_load_dwordx4 v[28:31], v4, s[8:11], s41 offen offset:20
s_mul_i32 s40, s2, 5120
v_add_u32 v6, 4096, v4
v_min_u32 v6, 5104, v6
buffer_load_dwordx4 v[48:51], v4, s[36:39], s40 offen
buffer_load_dwordx4 v[52:55], v6, s[36:39], s40 offen
s_lshl_b32 s27, s2, 1
v_mov_b32 v5, s27
buffer_load_ushort v5, v5, s[32:35], 0 offen
v_mov_b32 v15, 4160
buffer_load_dword v15, v15, s[8:11], s41 offen
v_and_b32 v2, 63, v0
v_lshlrev_b32 v3, 4, v2
v_min_u32 v7, {XB-16}, v4
v_bfe_u32 v8, v0, 2, 3
v_bfe_u32 v9, v0, 4, 1
v_mul_u32_u24 v8, {KP}, v8
v_mul_u32_u24 v9, {EX}, v9
v_add_u32 v8, v8, v9
v_and_b32 v9, 3, v0
v_min_u32 v9, 2, v9
v_lshl_add_u32 v8, v9, 4, v8
v_add_u32 v8, {KC+4096}, v8
v_cmp_gt_u32 vcc, 160, v0
v_cndmask_b32 v7, v8, v7, vcc
v_mov_b32 v8, 0
v_mov_b32 v9, 0
v_mov_b32 v10, 0
v_mov_b32 v11, 0
ds_write_b128 v7, v[8:11]
s_nop 0
v_and_b32 v10, 31, v2
v_lshrrev_b32 v11, 5, v2
v_lshlrev_b32 v12, 3, v11
v_sub_u32 v12, v12, v10
v_add_u32 v12, {C}, v12
v_and_b32 v13, 7, v12
v_bfe_u32 v9, v12, 2, 1
v_mul_u32_u24 v13, {KP}, v13
v_mul_u32_u24 v9, {EX}, v9
v_add_u32 v13, v13, v9
v_and_b32 v12, -8, v12
v_lshl_add_u32 v12, v12, 1, v13
v_add_u32 v12, {KC}, v12
v_mul_u32_u24 v14, 80, v10
v_lshl_add_u32 v14, v11, 4, v14""")
    for r in range(32): a(f"v_mov_b32 v{64+r}, 0")
    a(f"""s_waitcnt vmcnt(6)
ds_write_b128 v4, v[16:19] offset:{koff(0)}
ds_write_b128 v4, v[18:21] offset:{koff(4)}""")
    for k in range(6): a(f"v_alignbit_b32 v{32+k}, v{17+k}, v{16+k}, 16")
    for k in range(6): a(f"v_alignbit_b32 v{40+k}, v{18+k}, v{17+k}, 16")
    a(f"""ds_write_b128 v4, v[32:35] offset:{koff(1)}
ds_write_b128 v4, v[34:37] offset:{koff(5)}
ds_write_b128 v4, v[40:43] offset:{koff(3)}
ds_write_b128 v4, v[42:45] offset:{koff(7)}
s_waitcnt vmcnt(4)
ds_write_b128 v4, v[24:27] offset:{koff(2)}
ds_write_b128 v4, v[26:29] offset:{koff(6)}""")
    a(f"""s_waitcnt vmcnt(2)
ds_write_b128 v4, v[48:51] offset:{XB}
ds_write_b128 v6, v[52:55] offset:{XB}
s_waitcnt vmcnt(0) lgkmcnt(0)
s_barrier
s_cmp_eq_u32 s20, 1
s_cbranch_scc1 K3_W1
s_cmp_eq_u32 s20, 2
s_cbranch_scc1 K3_W2
s_cmp_eq_u32 s20, 3
s_cbranch_scc1 K3_W3""")
    for w,(qa,qb) in enumerate(rng):
        if w: a(f"K3_W{w}:")
        qs=list(range(qa,qb))
        a(f"v_subrev_u32 v12, {32*qs[-1]}, v12")
        conv_steps(a, qs)
        a("s_branch K3_F")
    a(f"""K3_F:
s_nop 7
s_nop 7
s_barrier
s_lshl_b32 s21, s20, 13
v_add_u32 v4, s21, v3""")
    for g in range(8): a(f"ds_write_b128 v4, v[{64+4*g}:{67+4*g}] offset:{KC+1024*g}")
    a(f"""s_waitcnt lgkmcnt(0)
s_barrier
s_lshl_b32 s21, s20, 11
v_add_u32 v4, s21, v3""")
    for e in range(2):
        for ww in range(4): a(f"ds_read_b128 v[{16+16*e+4*ww}:{19+16*e+4*ww}], v4 offset:{KC+8192*ww+1024*e}")
    a(f"""s_lshr_b32 s21, s20, 1
s_lshl_b32 s21, s21, 10
s_and_b32 s22, s20, 1
s_lshl_b32 s22, s22, 4
s_add_u32 s21, s21, s22
v_lshlrev_b32 v6, 5, v10
v_lshl_add_u32 v6, v11, 2, v6
v_add_u32 v6, s21, v6
v_lshrrev_b32 v7, 5, v6
v_and_b32 v9, 31, v6
v_mul_u32_u24 v7, 80, v7
v_lshl_add_u32 v7, v9, 1, v7
v_lshlrev_b32 v6, 1, v6
ds_read_b64 v[48:49], v7 offset:{XB}
ds_read_b64 v[50:51], v7 offset:{XB+16}
s_lshl_b32 s23, s2, 12
s_waitcnt vmcnt(0) lgkmcnt(0)
v_lshlrev_b32 v5, 16, v5
v_mul_f32 v5, 0x3a800000, v5""")
    for e in range(2):
        for r in range(4):
            b=16+16*e+r
            a(f"v_add_f32 v{b}, v{b}, v{b+4}\nv_add_f32 v{b+8}, v{b+8}, v{b+12}\nv_add_f32 v{b}, v{b}, v{b+8}\nv_mul_f32 v{b}, v{b}, v15")
            bf16_rne(a, b, b, 7)
            src=48+2*e+r//2
            a(f"v_fma_mix_f32 v8, v{src}, v5, 0 op_sel:[{r%2},0,0] op_sel_hi:[1,0,0]")
            bf16_rne(a, 8, 8, 7)
            a(f"v_add_f32 v{b}, v{b}, v8")
        b=16+16*e
        a(f"v_cvt_pk_bf16_f32 v52, v{b}, v{b+1}\nv_cvt_pk_bf16_f32 v53, v{b+2}, v{b+3}\nbuffer_store_dwordx2 v[52:53], v6, s[28:31], s23 offen offset:{16*e}\ns_nop 1")
    a("s_branch K3_END")
    a("""K3R:
s_waitcnt lgkmcnt(0)
s_sub_u32 s3, s2, 576""")
    srd(a, 8, 4, PART, 16*L*D*2); srd(a, 12, 4, YB, L*D*2)
    a("""v_lshrrev_b32 v1, 6, v0
v_lshlrev_b32 v2, 14, v1
v_and_b32 v3, 63, v0
v_lshl_add_u32 v2, v3, 4, v2
s_lshl_b32 s21, s3, 16""")
    from gen_k2z import Q
    vq=Q(a,"vmcnt",63)
    def ld(rd,s_):
        a(f"s_add_u32 s20, s21, {65536*NRW*rd+4096*(s_//4)}\nbuffer_load_dwordx4 v[{8+4*s_}:{11+4*s_}], v2, s[8:11], s20 offen offset:{1024*(s_%4)}"); vq.push((rd,s_))
    for s_ in range(16): ld(0,s_)
    a(f"""s_add_u32 s26, s3, {NRW}
s_mul_hi_u32 s27, s26, 0x71c71c8
s_mul_i32 s23, s27, 36
s_sub_u32 s23, s26, s23
s_and_b32 s24, s23, 1
s_lshr_b32 s25, s23, 1
s_lshl_b32 s27, s27, 7
s_lshl_b32 s24, s24, 6
s_add_u32 s27, s27, s24
s_mul_i32 s27, s27, 1152
s_lshl_b32 s25, s25, 6
s_add_u32 s27, s27, s25""")
    a("""s_mul_hi_u32 s22, s3, 0x71c71c8
s_mul_i32 s23, s22, 36
s_sub_u32 s23, s3, s23
s_and_b32 s24, s23, 1
s_lshr_b32 s25, s23, 1
s_lshl_b32 s22, s22, 7
s_lshl_b32 s24, s24, 6
s_add_u32 s22, s22, s24
s_mul_i32 s22, s22, 1152
s_lshl_b32 s25, s25, 6
s_add_u32 s22, s22, s25
v_lshrrev_b32 v4, 1, v1
v_lshlrev_b32 v4, 5, v4
v_and_b32 v5, 31, v0
v_add_u32 v4, v4, v5
v_mul_u32_u24 v4, 1152, v4
v_and_b32 v5, 1, v1
v_lshl_add_u32 v4, v5, 5, v4
v_bfe_u32 v5, v0, 5, 1
v_lshl_add_u32 v4, v5, 3, v4
""")
    def sel(h,two=False):
        if two: return f"op_sel:[{h},0,{h}] op_sel_hi:[1,0,1]"
        return f"op_sel:[{h},0,0] op_sel_hi:[1,0,0]"
    def rounds(nr):
      for rd in range(nr):
        for p in range(8):
            vq.wait((rd,2*p+1))
            c=72+8*(p&1)
            for e in range(8):
                r0=8+8*p+e//2; r1=r0+4
                if p<2: a(f"v_fma_mix_f32 v{c+e}, v{r0}, 1.0, v{r1} {sel(e%2,True)}")
                else:
                    a(f"v_fma_mix_f32 v{c+e}, v{r0}, 1.0, v{c+e} {sel(e%2)}")
            if p>=2:
                for e in range(8):
                    r1=8+8*p+e//2+4
                    a(f"v_fma_mix_f32 v{c+e}, v{r1}, 1.0, v{c+e} {sel(e%2)}")
            if rd<nr-1: ld(1,2*p); ld(1,2*p+1)
        for e in range(8): a(f"v_add_f32 v{72+e}, v{72+e}, v{80+e}")
        for e in range(4): a(f"v_cvt_pk_bf16_f32 v{88+e}, v{72+2*e}, v{73+2*e}")
        so="s27" if rd else "s22"
        a(f"buffer_store_dwordx2 v[88:89], v4, s[12:15], {so} offen\nbuffer_store_dwordx2 v[90:91], v4, s[12:15], {so} offen offset:16"); vq.push('s'); vq.push('s')
    q0=list(vq.q)
    a(f"s_cmp_lt_u32 s3, {576-NRW}\ns_cbranch_scc1 K3R2")
    rounds(1)
    a("s_branch K3_END\nK3R2:")
    vq.q[:]=q0
    rounds(2)
    a("K3_END:\ns_endpgm")
    return a.text()
```

```python
from gen_common import *
import gen_k1d as gen_k1
from gen_conv3 import gen_k4t
import gen_k3m
from gen_k3m import gen_k3g as gen_k3d, K3LDS
from gen_k2z import gen_k2k as gen_k2g
from gen_v3 import *
import sys
from gen_k1l import gen_k1f as gen_k1e, K1LDS
import os
if os.environ.get('KPV'): gen_k3m.KP,gen_k3m.EX=[int(x) for x in os.environ['KPV'].split(',')]
if os.environ.get('FINE'): gen_k3m.FINE=int(os.environ['FINE'])
k1,TOT=gen_k1e()
k3=gen_k3d(int(sys.argv[2]) if len(sys.argv)>2 else 0)
ref=open(f"cdna_kernels/{NAME}.s.ref").read().split("\n")
out="\n".join(l for l in ref if l.startswith(";") and "@launch" not in l)+"\n"
out+=f"; @launch kernel=k1_kernel grid=({TOT},1,1) block=(256,1,1) lds={K1LDS}\n"
out+="; @launch kernel=k2f_kernel grid=(256,1,1) block=(256,1,1) lds=157184\n"
out+=f"; @launch kernel=k3c_kernel grid=({576+gen_k3m.NRW},1,1) block=(256,1,1) lds={K3LDS}\n"
out+="; @launch kernel=k4f_kernel grid=(288,1,1) block=(256,1,1) lds=9216\n"
out+='.amdgcn_target "amdgcn-amd-amdhsa--gfx950"\n.text\n'
def stamp(t, n, idx):
    st=f"""    s_cmp_lg_u32 s2, 0
    s_cbranch_scc1 STK{idx}
    s_load_dwordx2 s[96:97], s[0:1], 120
    s_memrealtime s[98:99]
    s_waitcnt lgkmcnt(0)
    v_mov_b32 v1, {ST+48+4*idx}
    v_mov_b32 v2, s98
    global_store_dword v1, v2, s[96:97]
STK{idx}:
"""
    return t.replace(n+":\n", n+":\n"+st, 1)
for idx,(n,t) in enumerate((("k1_kernel",k1),("k2f_kernel",gen_k2g()),("k3c_kernel",k3),("k4f_kernel",gen_k4t()))):
    t=stamp(t,n,idx)
    out+=f".globl {n}\n.p2align 8\n.type {n},@function\n"+t
out+='.section .rodata,"a"\n'
for n,v,ac in (("k1_kernel",64,64),("k2f_kernel",512,256),("k3c_kernel",96,96),("k4f_kernel",64,64)):
    out+=".p2align 6\n"+kd(n,v,102,ac)
open(sys.argv[1] if len(sys.argv)>1 else f"cdna_kernels/{NAME}.s","w").write(out)
```

```python
from gen_common import *
from gen_v3 import XP, KR, img_role, tab_role
import gen_k1j as gen_k1e
KD=KR; KDA=4224; KDS=KDA
TBL=0; LA=5760; SC=5952; TL=6144; K1LDS=TL+12288
def kgen_role(a):
    a("""K1_KGEN:
s_load_dwordx8 s[8:15], s[0:1], 8
s_load_dwordx4 s[16:19], s[0:1], 40
s_load_dwordx2 s[20:21], s[0:1], 56
s_waitcnt lgkmcnt(0)
s_lshl_b32 s22, s2, 8
v_lshlrev_b32 v1, 1, v0
v_add_u32 v1, s22, v1
v_cmp_gt_u32 vcc, 128, v0
s_and_saveexec_b64 s[24:25], vcc
global_load_ushort v2, v1, s[8:9]
global_load_ushort v3, v1, s[10:11]
global_load_ushort v4, v1, s[12:13]
global_load_ushort v5, v1, s[14:15]
global_load_ushort v6, v1, s[16:17]
global_load_ushort v7, v1, s[18:19]
s_lshl_b32 s23, s2, 1
v_mov_b32 v8, s23
global_load_ushort v8, v8, s[20:21]
s_mov_b64 exec, s[24:25]
v_and_b32 v12, 63, v0
v_lshrrev_b32 v13, 6, v0
v_and_b32 v14, 15, v12
v_lshrrev_b32 v15, 4, v12
v_lshl_add_u32 v16, v13, 5, v15
v_lshlrev_b32 v16, 4, v16
v_and_b32 v17, 7, v14
v_lshrrev_b32 v18, 3, v14
v_lshl_add_u32 v20, v18, 7, v17
v_and_b32 v17, 3, v14
v_lshlrev_b32 v17, 1, v17
v_bfe_u32 v18, v14, 2, 1
v_lshl_add_u32 v17, v18, 7, v17
v_add_u32 v17, 256, v17
v_and_b32 v18, 1, v14
v_lshlrev_b32 v18, 2, v18
v_bfe_u32 v19, v14, 1, 2
v_lshl_add_u32 v18, v19, 7, v18
v_add_u32 v18, 512, v18
v_cmp_gt_u32 vcc, 8, v14
v_cndmask_b32 v21, v18, v17, vcc
v_lshlrev_b32 v17, 7, v14
v_add_u32 v17, 1024, v17
v_mov_b32 v18, 2056
v_cmp_gt_u32 vcc, 9, v14
v_cndmask_b32 v22, v18, v17, vcc
v_lshlrev_b32 v23, 3, v14
v_cmp_gt_u32 vcc, 16, v0
s_and_saveexec_b64 s[24:25], vcc
v_lshlrev_b32 v17, 2, v14""")
    a(f"""ds_write_b32 v17, v20 offset:{LA}
ds_write_b32 v17, v21 offset:{LA+64}
ds_write_b32 v17, v22 offset:{LA+128}
s_mov_b64 exec, s[24:25]
v_cvt_f32_u32 v20, v20
v_cvt_f32_u32 v21, v21
v_cvt_f32_u32 v22, v22
v_cvt_f32_u32 v23, v23
v_cmp_gt_u32 vcc, 128, v0
s_and_saveexec_b64 s[24:25], vcc
s_waitcnt vmcnt(0)
v_lshlrev_b32 v2, 16, v2
v_lshlrev_b32 v3, 16, v3
v_lshlrev_b32 v4, 16, v4
v_lshlrev_b32 v5, 16, v5
v_lshlrev_b32 v6, 16, v6
v_lshlrev_b32 v7, 16, v7
v_lshlrev_b32 v8, 16, v8
v_mul_f32 v8, 0x3fb8aa3b, v8
v_exp_f32 v8, v8
s_nop 0""")
    bf16_rne(a, 8, 8, 9)
    a("""v_mul_f32 v2, v8, v2
v_mul_f32 v3, v8, v3
v_mul_f32 v4, v8, v4
v_mul_f32 v5, v8, v5
v_mul_f32 v10, v6, v4
v_fma_f32 v10, -v7, v5, v10
v_mul_f32 v11, v6, v5
v_fma_f32 v11, v7, v4, v11
v_mul_f32 v8, 0x3fb8aa3b, v2
v_mul_f32 v9, 0x3e22f983, v3
v_lshlrev_b32 v1, 4, v0
ds_write_b128 v1, v[8:11]
v_add_f32_e64 v17, |v10|, |v11|
v_lshlrev_b32 v18, 2, v13""")
    for op in ("row_shr:1 row_mask:0xf","row_shr:2 row_mask:0xf","row_shr:4 row_mask:0xf","row_shr:8 row_mask:0xf","row_bcast:15 row_mask:0xa","row_bcast:31 row_mask:0xc"):
        a(f"s_nop 1\nv_add_f32_dpp v17, v17, v17 {op} bank_mask:0xf bound_ctrl:0")
    a(f"""s_nop 1
v_readlane_b32 s30, v17, 63
s_nop 3
v_mov_b32 v17, s30
ds_write_b32 v18, v17 offset:{SC}
s_mov_b64 exec, s[24:25]
s_waitcnt lgkmcnt(0)
s_barrier""")
    for t in range(4): a(f"ds_read_b128 v[{36+4*t}:{39+4*t}], v16 offset:{64*t}")
    for t in range(8):
        pb=36+4*(t%4)
        ar,ai,wr,wi = pb,pb+1,pb+2,pb+3
        T=lambda e,k: 52+3*e+k
        a(f"s_waitcnt lgkmcnt({3 if t<5 else 7-t})")
        for e in range(4): a(f"v_mul_f32 v{T(e,0)}, v{ar}, v{20+e}\nv_mul_f32 v{T(e,1)}, v{ai}, v{20+e}")
        for e in (3,0,1,2): a(f"v_fract_f32 v{T(e,1)}, v{T(e,1)}")
        for e in (3,0,1,2): a(f"v_exp_f32 v{T(e,0)}, v{T(e,0)}\nv_sin_f32 v{T(e,2)}, v{T(e,1)}\nv_cos_f32 v{T(e,1)}, v{T(e,1)}")
        for e in (3,0,1,2): a(f"v_mul_f32 v{T(e,1)}, v{T(e,0)}, v{T(e,1)}\nv_mul_f32 v{T(e,2)}, v{T(e,0)}, v{T(e,2)}")
        a(f"v_mul_f32 v{T(3,0)}, v{wi}, v{T(3,2)}\nv_mul_f32 v{T(0,0)}, v{wi}, v{T(3,1)}")
        a(f"v_fma_f32 v{T(3,0)}, v{wr}, v{T(3,1)}, -v{T(3,0)}\nv_fma_f32 v{T(3,1)}, -v{wr}, v{T(3,2)}, -v{T(0,0)}")
        if t<4: a(f"ds_read_b128 v[{pb}:{pb+3}], v16 offset:{64*(t+4)}")
        a("s_nop 1")
        for e in range(3):
            c = "0" if t==0 else f"v[{24+4*e}:{27+4*e}]"
            a(f"v_mfma_f32_16x16x4_f32 v[{24+4*e}:{27+4*e}], v{T(e,1)}, v{T(3,0)}, {c}")
        for e in range(3):
            a(f"v_mfma_f32_16x16x4_f32 v[{24+4*e}:{27+4*e}], v{T(e,2)}, v{T(3,1)}, v[{24+4*e}:{27+4*e}]")
        a("s_nop 1")
    a(f"""s_nop 7
s_nop 7
v_mul_u32_u24 v17, 3072, v13
v_lshl_add_u32 v17, v12, 4, v17
ds_write_b128 v17, v[24:27] offset:{TL}
ds_write_b128 v17, v[28:31] offset:{TL+1024}
ds_write_b128 v17, v[32:35] offset:{TL+2048}
s_mov_b32 s26, {(-0x3f7f*4)&0xffffffff}
s_mov_b32 s27, 0x3f7f3f7f
s_mov_b32 s28, 0x00020002
s_waitcnt lgkmcnt(0)
s_barrier
v_cmp_gt_u32 vcc, 192, v0
s_and_saveexec_b64 s[24:25], vcc
v_lshlrev_b32 v17, 10, v13
v_lshl_add_u32 v17, v12, 4, v17
ds_read_b128 v[24:27], v17 offset:{TL}
ds_read_b128 v[28:31], v17 offset:{TL+3072}
ds_read_b128 v[32:35], v17 offset:{TL+6144}
ds_read_b128 v[36:39], v17 offset:{TL+9216}
v_lshlrev_b32 v18, 6, v13
v_lshl_add_u32 v18, v15, 4, v18
ds_read_b128 v[40:43], v18 offset:{LA}
v_lshlrev_b32 v19, 3, v14
v_mov_b32 v18, 0x4501
s_waitcnt lgkmcnt(0)""")
    for r in range(4):
        a(f"""v_add_f32 v{24+r}, v{24+r}, v{28+r}
v_add_f32 v{32+r}, v{32+r}, v{36+r}
v_add_f32 v{24+r}, v{24+r}, v{32+r}
v_add_u32 v{40+r}, v{40+r}, v19
v_cvt_f32_u32 v44, v{40+r}
v_lshrrev_b32 v44, 16, v44
v_max_u32 v44, 0x3f7f, v44
v_cmp_lt_u32 vcc, 2048, v{40+r}
v_cndmask_b32 v44, v44, v18, vcc
v_lshl_add_u32 v{40+r}, v44, 2, s26
ds_write_b32 v{40+r}, v{24+r} offset:{TBL}""")
    a("""s_mov_b64 exec, s[24:25]
v_lshlrev_b32 v1, 3, v0
v_sub_u32 v1, 2047, v1
v_cvt_f32_u32 v2, v1""")
    srd(a, 8, 4, KD, 576*KDS)
    a(f"s_mul_i32 s22, s2, {KDS}")
    fl={1:"1.0",2:"2.0",3:"0x40400000",4:"4.0",5:"0x40a00000",6:"0x40c00000",7:"0x40e00000"}
    for m in range(4):
        x0 = "v2" if m==0 else "v3"
        if m: a(f"v_subrev_f32 v3, {fl[2*m]}, v2")
        a(f"""v_subrev_f32 v4, {fl[2*m+1]}, v2
v_cvt_pk_bf16_f32 v5, {x0}, v4
v_pk_sub_u16 v5, v5, s27 clamp
v_pk_lshlrev_b16 v5, s28, v5
v_and_b32 v{44+2*m}, 0xffff, v5
v_lshrrev_b32 v{45+2*m}, 16, v5""")
    a(f"""v_mov_b32 v2, 0
ds_read_b64 v[32:33], v2 offset:{SC}
s_waitcnt lgkmcnt(0)
s_barrier""")
    for u in range(8): a(f"ds_read_b32 v{24+u}, v{44+u} offset:{TBL}")
    a(f"""v_add_f32 v32, v32, v33
v_lshrrev_b32 v32, 23, v32
v_max_u32 v32, 32, v32
v_sub_u32 v33, 268, v32
v_lshlrev_b32 v33, 23, v33
v_subrev_u32 v32, 24, v32
v_lshlrev_b32 v32, 23, v32
v_lshlrev_b32 v1, 4, v0
v_cmp_gt_u32 vcc, 8, v0
s_and_saveexec_b64 s[24:25], vcc
s_cbranch_execz K1_KZ
v_add_u32 v3, 4096, v1
v_cmp_eq_u32 vcc, 4, v0
v_cndmask_b32 v4, 0, v32, vcc
v_mov_b32 v5, 0
v_mov_b32 v6, 0
v_mov_b32 v7, 0
buffer_store_dwordx4 v[4:7], v3, s[8:11], s22 offen
K1_KZ:
s_mov_b64 exec, s[24:25]""")
    for m in range(4):
        a(f"""s_waitcnt lgkmcnt({6-2*m})
v_mul_f32 v{24+2*m}, v{24+2*m}, v33
v_mul_f32 v{25+2*m}, v{25+2*m}, v33
v_cvt_pk_f16_f32 v{36+m}, v{24+2*m}, v{25+2*m}""")
    a(f"""buffer_store_dwordx4 v[36:39], v1, s[8:11], s22 offen""")
    from gen_v3 import YAT
    srd(a,12,4,YAT,L*D*2+4096+9216)
    a(f"""v_mov_b32 v40, -1
v_mov_b32 v41, -1
v_mov_b32 v42, -1
v_mov_b32 v43, -1
s_lshl_b32 s23, s2, 12
buffer_store_dwordx4 v[40:43], v1, s[12:15], s23 offen
s_lshl_b32 s23, s2, 4
s_add_u32 s23, s23, {L*D*2+4096}
v_mov_b32 v44, 0
v_lshlrev_b32 v45, 2, v0
v_cmp_gt_u32 vcc, 4, v0
s_and_saveexec_b64 s[24:25], vcc
buffer_store_dword v44, v45, s[12:15], s23 offen
s_branch K1_END""")

def gen_k1f():
    t,TOT=gen_k1e.gen_k1e()
    head="k1_kernel:\n    s_load_dwordx2 s[4:5], s[0:1], 120\n    s_mov_b32 s90, 0x7fff\n"
    assert t.startswith(head)
    t=head+"    s_cmp_lt_u32 s2, 576\n    s_cbranch_scc1 K1_KGEN\n    s_sub_u32 s2, s2, 576\n"+t[len(head):]
    b=Asm(); kgen_role(b)
    tail="K1_END:\n    s_endpgm\n"
    assert t.endswith(tail)
    return t[:-len(tail)]+b.text()+tail, TOT+576
```

```python
from gen_common import *
from gen_v3 import XP, YAT, PART, YB
from gen_k1i import KD, KDA, KDS
C=2047; XB=2480; KC=XB+5120; K3LDS=40960
KP=4144; EX=0
import os
NRW=int(os.environ.get('NRW','448'))
LIMIT=int(os.environ.get('LIMIT','200')); SLP=int(os.environ.get('SLP','6')); EP=int(os.environ.get('EP','1'))
CO=L*D*2+4096
SCW=os.environ.get('SCW','sc0 sc1'); SCR=os.environ.get('SCR','sc0 sc1')
CE=[0,1,2,3,8,9,10,11]; BIG=int(os.environ.get('BIG','20000'))
def fsrd(a):
    srd(a,44,80,0,L*D*2); srd(a,48,82,0,L*D*2); srd(a,56,4,YB,L*D*2)
    a("""v_and_b32 v4, 31, v0
v_lshlrev_b32 v6, 1, v4
v_mul_u32_u24 v4, 1152, v4
v_bfe_u32 v5, v0, 5, 1
v_lshl_add_u32 v4, v5, 3, v4
v_lshl_add_u32 v6, v5, 14, v6
v_mov_b32 v7, 0""")
def derive(a,T,rg,cg):
    a(f"""s_mul_i32 s{T['so']}, s{rg}, 36864
s_lshl_b32 s70, s{cg}, 5
s_add_u32 s{T['so']}, s{T['so']}, s70
s_lshl_b32 s{T['sy']}, s{cg}, 16
s_lshl_b32 s70, s{rg}, 6
s_add_u32 s{T['sy']}, s{T['sy']}, s70
s_lshl_b32 s{T['sc']}, s{cg}, 8
s_lshl_b32 s70, s{rg}, 2
s_add_u32 s{T['sc']}, s{T['sc']}, s70
s_add_u32 s{T['sc']}, s{T['sc']}, {CO}""")
def ldx(a,T):
    X=T['X']; a(f"buffer_load_dwordx2 v[{X}:{X+1}], v4, s[44:47], s{T['so']} offen\nbuffer_load_dwordx2 v[{X+2}:{X+3}], v4, s[44:47], s{T['so']} offen offset:16")
def ldy(a,T):
    for e in range(8): a(f"s_add_u32 s70, s{T['sy']}, {4096*CE[e]}\nbuffer_load_ushort v{T['Y']+e}, v6, s[52:55], s70 offen {SCR}")
def chk(a,Ts):
    r=[T['Y']+e for T in Ts for e in range(8)]
    a(f"v_max3_u32 v40, v{r[0]}, v{r[1]}, v{r[2]}"); r=r[3:]
    while len(r)>=2: a(f"v_max3_u32 v40, v40, v{r[0]}, v{r[1]}"); r=r[2:]
    a(f"v_max_u32 v40, v40, v{r[0]}\nv_cmp_eq_u32 vcc, 0xffff, v40")
def go(a,T,o=48):
    X,Y,P=T['X'],T['Y'],T['P']
    for r in range(4):
        a(f"""v_lshlrev_b32 v42, 16, v{X+r}
v_and_b32 v43, 0xffff0000, v{X+r}
v_lshlrev_b32 v44, 16, v{Y+2*r}
v_lshlrev_b32 v45, 16, v{Y+2*r+1}
v_add_f32 v42, v42, v44
v_add_f32 v43, v43, v45""")
        bf16_rne(a,42,42,46); bf16_rne(a,43,43,47)
        a(f"""v_lshlrev_b32 v44, 16, v{P+r}
v_and_b32 v45, 0xffff0000, v{P+r}
v_add_f32 v42, v42, v44
v_add_f32 v43, v43, v45
v_cvt_pk_bf16_f32 v{o+r}, v42, v43""")
    a(f"buffer_store_dwordx2 v[{o}:{o+1}], v4, s[48:51], s{T['so']} offen\nbuffer_store_dwordx2 v[{o+2}:{o+3}], v4, s[48:51], s{T['so']} offen offset:16")
def spin(a,T,tag):
    a(f"s_mov_b32 s79, 0\nK3SP{tag}:"); ldy(a,T); a("s_waitcnt vmcnt(0)"); chk(a,[T])
    a(f"s_cbranch_vccz K3SG{tag}\ns_sleep {SLP}\ns_add_u32 s79, s79, 1\ns_cmp_lt_u32 s79, {BIG}\ns_cbranch_scc1 K3SP{tag}\nK3SG{tag}:"); go(a,T)
TA=dict(P=88,X=8,Y=16,so=64,sy=65,sc=66); TB_=dict(P=92,X=12,Y=24,so=67,sy=68,sc=69)
def koff(c): return KC+c*KP+(c>>2)*EX
def conv_steps(a, qs):
    qmax=qs[-1]
    steps=[]; cur=[]; regs=0
    dlof=lambda q:(q+1)//2 if q%2 else q//2
    for q in qs:
        r=12 if dlof(q)<=31 else 8
        if regs+r>24: steps.append(cur); cur=[]; regs=0
        cur.append(q); regs+=r
    steps.append(cur)
    def reads(n):
        o=16+24*(n%2); ops=[]; cnt=0
        for q in steps[n]:
            dl=dlof(q); ks=q%2
            a(f"ds_read_b128 v[{o}:{o+3}], v12 offset:{32*(qmax-q)}")
            kb=o; o+=4; cnt+=1
            for j in ([0,1] if dl<=31 else [1]):
                off=XB+80*(32*j-dl)+32*ks
                assert off>=0
                a(f"ds_read_b128 v[{o}:{o+3}], v14 offset:{off}")
                ops.append((j,kb,o,cnt+1)); o+=4; cnt+=1
        return ops,cnt
    ops,cp=reads(0)
    for n in range(len(steps)):
        c=0
        if n+1<len(steps): on,c=reads(n+1)
        last=None
        for (j,kb,xo,need) in ops:
            w=c+cp-need
            if FINE:
                if w!=last: a(f"s_waitcnt lgkmcnt({w})")
                last=w
            elif last is None:
                a(f"s_waitcnt lgkmcnt({c})"); last=c
            a(f"v_mfma_f32_32x32x16_f16 v[{64+16*j}:{79+16*j}], v[{kb}:{kb+3}], v[{xo}:{xo+3}], v[{64+16*j}:{79+16*j}]")
        if n+1<len(steps): ops=on; cp=c
FINE=1
def gen_k3g(MIX=0, rng=((-1,26),(26,53),(53,88),(88,127))):
    a=Asm()
    a(f"""k3c_kernel:
s_load_dwordx2 s[4:5], s[0:1], 120
s_load_dwordx2 s[6:7], s[0:1], 64
s_load_dwordx2 s[80:81], s[0:1], 0
s_load_dwordx2 s[82:83], s[0:1], 104
s_mov_b32 s90, 0x7fff
s_cmp_ge_u32 s2, {576+NRW}
s_cbranch_scc1 K3_END""")
    if MIX==1:
        a("""s_cmp_ge_u32 s2, 864
s_cbranch_scc1 K3R
s_mul_hi_u32 s3, s2, 0x55555556
s_mul_i32 s20, s3, 3
s_add_u32 s20, s20, 2
s_cmp_lg_u32 s20, s2
s_cbranch_scc1 K3C
s_add_u32 s2, s3, 576
s_branch K3R
K3C:
s_sub_u32 s2, s2, s3""")
    else:
        a("s_cmp_ge_u32 s2, 576\ns_cbranch_scc1 K3R")
    a("s_waitcnt lgkmcnt(0)")
    srd(a, 36, 4, XP, 576*5120); srd(a, 52, 4, YAT, CO+9216); srd(a, 32, 6, 0, D*2); srd(a, 8, 4, KD, 576*KDS)
    a(f"""v_lshlrev_b32 v4, 4, v0
s_mul_i32 s41, s2, {KDS}
v_lshrrev_b32 v1, 6, v0
s_nop 0
v_readfirstlane_b32 s20, v1
buffer_load_dwordx4 v[16:19], v4, s[8:11], s41 offen
buffer_load_dwordx4 v[20:23], v4, s[8:11], s41 offen offset:16
buffer_load_dwordx4 v[24:27], v4, s[8:11], s41 offen offset:4
buffer_load_dwordx4 v[28:31], v4, s[8:11], s41 offen offset:20
s_mul_i32 s40, s2, 5120
v_add_u32 v6, 4096, v4
v_min_u32 v6, 5104, v6
buffer_load_dwordx4 v[48:51], v4, s[36:39], s40 offen
buffer_load_dwordx4 v[52:55], v6, s[36:39], s40 offen
s_lshl_b32 s27, s2, 1
v_mov_b32 v5, s27
buffer_load_ushort v5, v5, s[32:35], 0 offen
v_mov_b32 v15, 4160
buffer_load_dword v15, v15, s[8:11], s41 offen
v_and_b32 v2, 63, v0
v_lshlrev_b32 v3, 4, v2
v_min_u32 v7, {XB-16}, v4
v_bfe_u32 v8, v0, 2, 3
v_bfe_u32 v9, v0, 4, 1
v_mul_u32_u24 v8, {KP}, v8
v_mul_u32_u24 v9, {EX}, v9
v_add_u32 v8, v8, v9
v_and_b32 v9, 3, v0
v_min_u32 v9, 2, v9
v_lshl_add_u32 v8, v9, 4, v8
v_add_u32 v8, {KC+4096}, v8
v_cmp_gt_u32 vcc, 160, v0
v_cndmask_b32 v7, v8, v7, vcc
v_mov_b32 v8, 0
v_mov_b32 v9, 0
v_mov_b32 v10, 0
v_mov_b32 v11, 0
ds_write_b128 v7, v[8:11]
s_nop 0
v_and_b32 v10, 31, v2
v_lshrrev_b32 v11, 5, v2
v_lshlrev_b32 v12, 3, v11
v_sub_u32 v12, v12, v10
v_add_u32 v12, {C}, v12
v_and_b32 v13, 7, v12
v_bfe_u32 v9, v12, 2, 1
v_mul_u32_u24 v13, {KP}, v13
v_mul_u32_u24 v9, {EX}, v9
v_add_u32 v13, v13, v9
v_and_b32 v12, -8, v12
v_lshl_add_u32 v12, v12, 1, v13
v_add_u32 v12, {KC}, v12
v_mul_u32_u24 v14, 80, v10
v_lshl_add_u32 v14, v11, 4, v14""")
    a(f"""s_lshr_b32 s42, s2, 4
s_lshl_b32 s43, s42, 8
s_lshl_b32 s71, s20, 6
s_add_u32 s43, s43, s71
s_add_u32 s43, s43, {CO}
v_lshlrev_b32 v1, 2, v2
v_mov_b32 v13, 1
s_mov_b64 exec, 0xffff
buffer_atomic_add v13, v1, s[52:55], s43 offen sc0 sc1
s_mov_b64 exec, -1""")
    for r in range(32): a(f"v_mov_b32 v{64+r}, 0")
    a(f"""s_waitcnt vmcnt(7)
ds_write_b128 v4, v[16:19] offset:{koff(0)}
ds_write_b128 v4, v[18:21] offset:{koff(4)}""")
    for k in range(6): a(f"v_alignbit_b32 v{32+k}, v{17+k}, v{16+k}, 16")
    for k in range(6): a(f"v_alignbit_b32 v{40+k}, v{18+k}, v{17+k}, 16")
    a(f"""ds_write_b128 v4, v[32:35] offset:{koff(1)}
ds_write_b128 v4, v[34:37] offset:{koff(5)}
ds_write_b128 v4, v[40:43] offset:{koff(3)}
ds_write_b128 v4, v[42:45] offset:{koff(7)}
s_waitcnt vmcnt(5)
ds_write_b128 v4, v[24:27] offset:{koff(2)}
ds_write_b128 v4, v[26:29] offset:{koff(6)}""")
    a(f"""s_waitcnt vmcnt(3)
ds_write_b128 v4, v[48:51] offset:{XB}
ds_write_b128 v6, v[52:55] offset:{XB}
s_waitcnt lgkmcnt(0)
s_barrier
s_cmp_eq_u32 s20, 1
s_cbranch_scc1 K3_W1
s_cmp_eq_u32 s20, 2
s_cbranch_scc1 K3_W2
s_cmp_eq_u32 s20, 3
s_cbranch_scc1 K3_W3""")
    for w,(qa,qb) in enumerate(rng):
        if w: a(f"K3_W{w}:")
        qs=list(range(qa,qb))
        a(f"v_subrev_u32 v12, {32*qs[-1]}, v12")
        conv_steps(a, qs)
        a("s_branch K3_F")
    a(f"""K3_F:
s_nop 7
s_nop 7
s_barrier
s_lshl_b32 s21, s20, 13
v_add_u32 v4, s21, v3""")
    a("v_xor_b32 v6, 64, v4\nv_xor_b32 v7, 0x80, v4\nv_xor_b32 v8, 0xc0, v4")
    for g in range(8): a(f"ds_write_b128 v{[4,6,7,8][g&3]}, v[{64+4*g}:{67+4*g}] offset:{KC+1024*g}")
    a(f"""v_and_b32 v16, 3, v0
v_bfe_u32 v17, v0, 2, 5
v_lshlrev_b32 v9, 2, v16
v_xor_b32 v17, v17, v9
v_lshlrev_b32 v17, 4, v17
v_lshl_add_u32 v17, v16, 10, v17
v_lshrrev_b32 v9, 7, v0
v_lshl_add_u32 v9, v9, 12, v17
v_lshrrev_b32 v17, 2, v0
v_mul_u32_u24 v17, 80, v17
v_lshl_add_u32 v10, v16, 4, v17
ds_read_b128 v[48:51], v10 offset:{XB}
s_waitcnt lgkmcnt(0)
s_barrier""")
    for e in range(2):
        for ww in range(4): a(f"ds_read_b128 v[{16+16*e+4*ww}:{19+16*e+4*ww}], v9 offset:{KC+8192*ww+512*e}")
    a(f"""v_lshlrev_b32 v6, 4, v0
s_lshl_b32 s23, s2, 12
s_mov_b32 s24, 0xfffefffe
s_waitcnt vmcnt(0) lgkmcnt(0)
v_lshlrev_b32 v5, 16, v5
v_mul_f32 v5, 0x3a800000, v5""")
    for e in range(2):
        for r in range(4):
            b=16+16*e+r
            a(f"v_add_f32 v{b}, v{b}, v{b+4}\nv_add_f32 v{b+8}, v{b+8}, v{b+12}\nv_add_f32 v{b}, v{b}, v{b+8}\nv_mul_f32 v{b}, v{b}, v15")
            bf16_rne(a, b, b, 7)
            src=48+2*e+r//2
            a(f"v_fma_mix_f32 v8, v{src}, v5, 0 op_sel:[{r%2},0,0] op_sel_hi:[1,0,0]")
            bf16_rne(a, 8, 8, 7)
            a(f"v_add_f32 v{b}, v{b}, v8")
        b=16+16*e
        a(f"v_cvt_pk_bf16_f32 v{52+2*e}, v{b}, v{b+1}\nv_cvt_pk_bf16_f32 v{53+2*e}, v{b+2}, v{b+3}\nv_pk_min_u16 v{52+2*e}, v{52+2*e}, s24\nv_pk_min_u16 v{53+2*e}, v{53+2*e}, s24")
    a(f"buffer_store_dwordx4 v[52:55], v6, s[52:55], s23 offen {SCW}")
    a("""s_mov_b64 exec, 0xffff
v_cmp_eq_u32 vcc, 0x10f, v13
s_mov_b64 exec, -1
s_cbranch_vccz K3_END
s_mov_b32 s78, vcc_lo""")
    fsrd(a)
    a("""K3CL:
s_ff1_i32_b32 s72, s78
s_bitset0_b32 s78, s72
s_lshl_b32 s71, s20, 4
s_add_u32 s72, s72, s71""")
    derive(a,TA,72,42); ldx(a,TA)
    a("buffer_load_dwordx2 v[88:89], v4, s[56:59], s64 offen sc0 sc1\nbuffer_load_dwordx2 v[90:91], v4, s[56:59], s64 offen offset:16 sc0 sc1")
    spin(a,TA,"C")
    a("s_cmp_lg_u32 s78, 0\ns_cbranch_scc1 K3CL\ns_branch K3_END")
    a("""K3R:
s_waitcnt lgkmcnt(0)
s_sub_u32 s3, s2, 576""")
    srd(a, 8, 4, PART, 16*L*D*2)
    a("""v_lshrrev_b32 v1, 6, v0
v_lshlrev_b32 v2, 14, v1
v_and_b32 v3, 63, v0
v_lshl_add_u32 v2, v3, 4, v2
s_lshl_b32 s21, s3, 16""")
    from gen_k2z import Q
    vq=Q(a,"vmcnt",63)
    def ld(rd,s_):
        a(f"s_add_u32 s20, s21, {65536*NRW*rd+4096*(s_//4)}\nbuffer_load_dwordx4 v[{8+4*s_}:{11+4*s_}], v2, s[8:11], s20 offen offset:{1024*(s_%4)}"); vq.push((rd,s_))
    for s_ in range(16): ld(0,s_)
    srd(a, 52, 4, YAT, CO+9216); fsrd(a)
    a("v_readfirstlane_b32 s77, v1\ns_lshr_b32 s74, s77, 1\ns_and_b32 s75, s77, 1")
    for T,t in ((TA,"s3"),(TB_,"s26")):
        a(f"""s_add_u32 s26, s3, {NRW}
s_mul_hi_u32 s27, {t}, 0x71c71c8
s_mul_i32 s23, s27, 36
s_sub_u32 s23, {t}, s23
s_and_b32 s24, s23, 1
s_lshl_b32 s24, s24, 1
s_lshl_b32 s72, s27, 2
s_add_u32 s72, s72, s24
s_add_u32 s72, s72, s74
s_and_b32 s73, s23, -2
s_add_u32 s73, s73, s75""")
        derive(a,T,72,73)
    def sel(h,two=False):
        if two: return f"op_sel:[{h},0,{h}] op_sel_hi:[1,0,1]"
        return f"op_sel:[{h},0,0] op_sel_hi:[1,0,0]"
    def rounds(nr):
      for rd in range(nr):
        for p in range(8):
            vq.wait((rd,2*p+1))
            c=72+8*(p&1)
            for e in range(8):
                r0=8+8*p+e//2; r1=r0+4
                if p<2: a(f"v_fma_mix_f32 v{c+e}, v{r0}, 1.0, v{r1} {sel(e%2,True)}")
                else:
                    a(f"v_fma_mix_f32 v{c+e}, v{r0}, 1.0, v{c+e} {sel(e%2)}")
            if p>=2:
                for e in range(8):
                    r1=8+8*p+e//2+4
                    a(f"v_fma_mix_f32 v{c+e}, v{r1}, 1.0, v{c+e} {sel(e%2)}")
            if rd<nr-1: ld(1,2*p); ld(1,2*p+1)
            else:
                Ts=[TA,TB_][:nr]
                if p==0:
                    for T in Ts: ldx(a,T); vq.push('x'); vq.push('x')
                if p==max(EP,2):
                    for T in Ts:
                        ldy(a,T)
                        for e in range(8): vq.push('y')
        for e in range(8): a(f"v_add_f32 v{72+e}, v{72+e}, v{80+e}")
        for e in range(4): a(f"v_cvt_pk_bf16_f32 v{88+4*rd+e}, v{72+2*e}, v{73+2*e}")
      Ts=[TA,TB_][:nr]
      a(f"s_mov_b32 s76, 0\nK3P{nr}:\ns_waitcnt vmcnt(0)")
      if LIMIT==0: a(f"s_branch K3S{nr}")
      chk(a,Ts)
      a(f"""s_cbranch_vccz K3G{nr}
s_add_u32 s76, s76, 1
s_cmp_ge_u32 s76, {LIMIT}
s_cbranch_scc1 K3S{nr}
s_sleep {SLP}""")
      for T in Ts: ldy(a,T)
      a(f"s_branch K3P{nr}\nK3G{nr}:")
      for k,T in enumerate(Ts): go(a,T,48+4*k)
      a(f"s_branch K3_END\nK3S{nr}:")
      for k,T in enumerate(Ts):
        P=T['P']
        a(f"""buffer_store_dwordx2 v[{P}:{P+1}], v4, s[56:59], s{T['so']} offen sc0 sc1
buffer_store_dwordx2 v[{P+2}:{P+3}], v4, s[56:59], s{T['so']} offen offset:16 sc0 sc1
v_mov_b32 v41, 0x100
s_waitcnt vmcnt(0)
s_mov_b64 exec, 1
buffer_atomic_add v41, v7, s[52:55], s{T['sc']} offen sc0 sc1
s_waitcnt vmcnt(0)
s_mov_b64 exec, -1
v_readfirstlane_b32 s70, v41
s_cmp_lg_u32 s70, 16
s_cbranch_scc1 K3K{nr}{k}""")
        spin(a,T,f"{nr}{k}")
        a(f"K3K{nr}{k}:")
    q0=list(vq.q)
    a(f"s_cmp_lt_u32 s3, {576-NRW}\ns_cbranch_scc1 K3R2")
    rounds(1)
    a("s_branch K3_END\nK3R2:")
    vq.q[:]=q0
    rounds(2)
    a("K3_END:\ns_endpgm")
    return a.text()
```

```python
from gen_common import *
import gen_k1d as gen_k1
from gen_conv3 import gen_k4t
import gen_k3n
from gen_k3n import gen_k3g as gen_k3d, K3LDS
from gen_k2z import gen_k2k as gen_k2g
from gen_v3 import *
import sys
from gen_k1o import gen_k1f as gen_k1e, K1LDS
import os
if os.environ.get('KPV'): gen_k3n.KP,gen_k3n.EX=[int(x) for x in os.environ['KPV'].split(',')]
if os.environ.get('FINE'): gen_k3n.FINE=int(os.environ['FINE'])
k1,TOT=gen_k1e()
k3=gen_k3d(int(sys.argv[2]) if len(sys.argv)>2 else 0)
ref=open(f"cdna_kernels/{NAME}.s.ref").read().split("\n")
out="\n".join(l for l in ref if l.startswith(";") and "@launch" not in l)+"\n"
out+=f"; @launch kernel=k1_kernel grid=({TOT},1,1) block=(256,1,1) lds={K1LDS}\n"
out+="; @launch kernel=k2f_kernel grid=(256,1,1) block=(256,1,1) lds=157184\n"
out+=f"; @launch kernel=k3c_kernel grid=({576+gen_k3n.NRW},1,1) block=(256,1,1) lds={K3LDS}\n"
out+='.amdgcn_target "amdgcn-amd-amdhsa--gfx950"\n.text\n'
def stamp(t, n, idx):
    st=f"""    s_cmp_lg_u32 s2, 0
    s_cbranch_scc1 STK{idx}
    s_load_dwordx2 s[96:97], s[0:1], 120
    s_memrealtime s[98:99]
    s_waitcnt lgkmcnt(0)
    v_mov_b32 v1, {ST+48+4*idx}
    v_mov_b32 v2, s98
    global_store_dword v1, v2, s[96:97]
STK{idx}:
"""
    return t.replace(n+":\n", n+":\n"+st, 1)
for idx,(n,t) in enumerate((("k1_kernel",k1),("k2f_kernel",gen_k2g()),("k3c_kernel",k3))):
    t=stamp(t,n,idx)
    out+=f".globl {n}\n.p2align 8\n.type {n},@function\n"+t
out+='.section .rodata,"a"\n'
for n,v,ac in (("k1_kernel",64,64),("k2f_kernel",512,256),("k3c_kernel",96,96)):
    out+=".p2align 6\n"+kd(n,v,102,ac)
open(sys.argv[1] if len(sys.argv)>1 else f"cdna_kernels/{NAME}.s","w").write(out)
```

```python
from gen_common import *
from gen_v3 import XP, YAT, PART, YB
from gen_k1i import KD, KDA, KDS
C=2047; XB=2480; KC=XB+5120; K3LDS=40960
KP=4144; EX=0
import os
NRW=int(os.environ.get('NRW','448'))
LIMIT=int(os.environ.get('LIMIT','200')); SLP=int(os.environ.get('SLP','6')); EP=int(os.environ.get('EP','1'))
CO=L*D*2+4096
SCW=os.environ.get('SCW','sc0 sc1'); SCR=os.environ.get('SCR','sc0 sc1')
PRIO=int(os.environ.get('PRIO','0')); RD=int(os.environ.get('RD','0'))
CE=[0,1,2,3,8,9,10,11]; BIG=int(os.environ.get('BIG','20000'))
def fsrd(a):
    srd(a,44,80,0,L*D*2); srd(a,48,82,0,L*D*2); srd(a,56,4,YB,L*D*2)
    a("""v_and_b32 v4, 31, v0
v_lshlrev_b32 v6, 1, v4
v_mul_u32_u24 v4, 1152, v4
v_bfe_u32 v5, v0, 5, 1
v_lshl_add_u32 v4, v5, 3, v4
v_lshl_add_u32 v6, v5, 14, v6
v_mov_b32 v7, 0""")
def derive(a,T,rg,cg):
    a(f"""s_mul_i32 s{T['so']}, s{rg}, 36864
s_lshl_b32 s70, s{cg}, 5
s_add_u32 s{T['so']}, s{T['so']}, s70
s_lshl_b32 s{T['sy']}, s{cg}, 16
s_lshl_b32 s70, s{rg}, 6
s_add_u32 s{T['sy']}, s{T['sy']}, s70
s_lshl_b32 s{T['sc']}, s{cg}, 8
s_lshl_b32 s70, s{rg}, 2
s_add_u32 s{T['sc']}, s{T['sc']}, s70
s_add_u32 s{T['sc']}, s{T['sc']}, {CO}""")
def ldx(a,T):
    X=T['X']; a(f"buffer_load_dwordx2 v[{X}:{X+1}], v4, s[44:47], s{T['so']} offen\nbuffer_load_dwordx2 v[{X+2}:{X+3}], v4, s[44:47], s{T['so']} offen offset:16")
def ldy(a,T):
    for e in range(8): a(f"s_add_u32 s70, s{T['sy']}, {4096*CE[e]}\nbuffer_load_ushort v{T['Y']+e}, v6, s[52:55], s70 offen {SCR}")
def chk(a,Ts):
    r=[T['Y']+e for T in Ts for e in range(8)]
    a(f"v_max3_u32 v40, v{r[0]}, v{r[1]}, v{r[2]}"); r=r[3:]
    while len(r)>=2: a(f"v_max3_u32 v40, v40, v{r[0]}, v{r[1]}"); r=r[2:]
    a(f"v_max_u32 v40, v40, v{r[0]}\nv_cmp_eq_u32 vcc, 0xffff, v40")
def go(a,T,o=48):
    X,Y,P=T['X'],T['Y'],T['P']
    for r in range(4):
        a(f"""v_lshlrev_b32 v42, 16, v{X+r}
v_and_b32 v43, 0xffff0000, v{X+r}
v_lshlrev_b32 v44, 16, v{Y+2*r}
v_lshlrev_b32 v45, 16, v{Y+2*r+1}
v_add_f32 v42, v42, v44
v_add_f32 v43, v43, v45""")
        bf16_rne(a,42,42,46); bf16_rne(a,43,43,47)
        a(f"""v_lshlrev_b32 v44, 16, v{P+r}
v_and_b32 v45, 0xffff0000, v{P+r}
v_add_f32 v42, v42, v44
v_add_f32 v43, v43, v45
v_cvt_pk_bf16_f32 v{o+r}, v42, v43""")
    a(f"buffer_store_dwordx2 v[{o}:{o+1}], v4, s[48:51], s{T['so']} offen\nbuffer_store_dwordx2 v[{o+2}:{o+3}], v4, s[48:51], s{T['so']} offen offset:16")
def spin(a,T,tag):
    a(f"s_mov_b32 s79, 0\nK3SP{tag}:"); ldy(a,T); a("s_waitcnt vmcnt(0)"); chk(a,[T])
    a(f"s_cbranch_vccz K3SG{tag}\ns_sleep {SLP}\ns_add_u32 s79, s79, 1\ns_cmp_lt_u32 s79, {BIG}\ns_cbranch_scc1 K3SP{tag}\nK3SG{tag}:"); go(a,T)
TA=dict(P=88,X=8,Y=16,so=64,sy=65,sc=66); TB_=dict(P=92,X=12,Y=24,so=67,sy=68,sc=69)
def koff(c): return KC+c*KP+(c>>2)*EX
def conv_steps(a, qs):
    qmax=qs[-1]
    steps=[]; cur=[]; regs=0
    dlof=lambda q:(q+1)//2 if q%2 else q//2
    for q in qs:
        r=12 if dlof(q)<=31 else 8
        if regs+r>24: steps.append(cur); cur=[]; regs=0
        cur.append(q); regs+=r
    steps.append(cur)
    def reads(n):
        o=16+24*(n%2); ops=[]; cnt=0
        for q in steps[n]:
            dl=dlof(q); ks=q%2
            a(f"ds_read_b128 v[{o}:{o+3}], v12 offset:{32*(qmax-q)}")
            kb=o; o+=4; cnt+=1
            for j in ([0,1] if dl<=31 else [1]):
                off=XB+80*(32*j-dl)+32*ks
                assert off>=0
                a(f"ds_read_b128 v[{o}:{o+3}], v14 offset:{off}")
                ops.append((j,kb,o,cnt+1)); o+=4; cnt+=1
        return ops,cnt
    ops,cp=reads(0)
    for n in range(len(steps)):
        c=0
        if n+1<len(steps): on,c=reads(n+1)
        last=None
        for (j,kb,xo,need) in ops:
            w=c+cp-need
            if FINE:
                if w!=last: a(f"s_waitcnt lgkmcnt({w})")
                last=w
            elif last is None:
                a(f"s_waitcnt lgkmcnt({c})"); last=c
            a(f"v_mfma_f32_32x32x16_f16 v[{64+16*j}:{79+16*j}], v[{kb}:{kb+3}], v[{xo}:{xo+3}], v[{64+16*j}:{79+16*j}]")
        if n+1<len(steps): ops=on; cp=c
FINE=1
def gen_k3g(MIX=0, rng=((-1,26),(26,53),(53,88),(88,127))):
    a=Asm()
    a(f"""k3c_kernel:
s_load_dwordx2 s[4:5], s[0:1], 120
s_load_dwordx2 s[6:7], s[0:1], 64
s_load_dwordx2 s[80:81], s[0:1], 0
s_load_dwordx2 s[82:83], s[0:1], 104
s_mov_b32 s90, 0x7fff
s_cmp_ge_u32 s2, {576+NRW}
s_cbranch_scc1 K3_END""")
    if MIX==1:
        a("""s_cmp_ge_u32 s2, 864
s_cbranch_scc1 K3R
s_mul_hi_u32 s3, s2, 0x55555556
s_mul_i32 s20, s3, 3
s_add_u32 s20, s20, 2
s_cmp_lg_u32 s20, s2
s_cbranch_scc1 K3C
s_add_u32 s2, s3, 576
s_branch K3R
K3C:
s_sub_u32 s2, s2, s3""")
    else:
        a("s_cmp_ge_u32 s2, 576\ns_cbranch_scc1 K3R")
    a("s_waitcnt lgkmcnt(0)")
    srd(a, 36, 4, XP, 576*5120); srd(a, 52, 4, YAT, CO+9216); srd(a, 32, 6, 0, D*2); srd(a, 8, 4, KD, 576*KDS)
    a(f"""v_lshlrev_b32 v4, 4, v0
s_mul_i32 s41, s2, {KDS}
v_lshrrev_b32 v1, 6, v0
s_nop 0
v_readfirstlane_b32 s20, v1
buffer_load_dwordx4 v[16:19], v4, s[8:11], s41 offen
buffer_load_dwordx4 v[20:23], v4, s[8:11], s41 offen offset:16
buffer_load_dwordx4 v[24:27], v4, s[8:11], s41 offen offset:4
buffer_load_dwordx4 v[28:31], v4, s[8:11], s41 offen offset:20
s_mul_i32 s40, s2, 5120
v_add_u32 v6, 4096, v4
v_min_u32 v6, 5104, v6
buffer_load_dwordx4 v[48:51], v4, s[36:39], s40 offen
buffer_load_dwordx4 v[52:55], v6, s[36:39], s40 offen
s_lshl_b32 s27, s2, 1
v_mov_b32 v1, s27
buffer_load_ushort v1, v1, s[32:35], 0 offen
v_mov_b32 v15, 4160
buffer_load_dword v15, v15, s[8:11], s41 offen
v_and_b32 v2, 63, v0
v_lshlrev_b32 v3, 4, v2
v_min_u32 v7, {XB-16}, v4
v_bfe_u32 v8, v0, 2, 3
v_bfe_u32 v9, v0, 4, 1
v_mul_u32_u24 v8, {KP}, v8
v_mul_u32_u24 v9, {EX}, v9
v_add_u32 v8, v8, v9
v_and_b32 v9, 3, v0
v_min_u32 v9, 2, v9
v_lshl_add_u32 v8, v9, 4, v8
v_add_u32 v8, {KC+4096}, v8
v_cmp_gt_u32 vcc, 160, v0
v_cndmask_b32 v7, v8, v7, vcc
v_mov_b32 v8, 0
v_mov_b32 v9, 0
v_mov_b32 v10, 0
v_mov_b32 v11, 0
ds_write_b128 v7, v[8:11]
s_nop 0
v_and_b32 v10, 31, v2
v_lshrrev_b32 v11, 5, v2
v_lshlrev_b32 v12, 3, v11
v_sub_u32 v12, v12, v10
v_add_u32 v12, {C}, v12
v_and_b32 v13, 7, v12
v_bfe_u32 v9, v12, 2, 1
v_mul_u32_u24 v13, {KP}, v13
v_mul_u32_u24 v9, {EX}, v9
v_add_u32 v13, v13, v9
v_and_b32 v12, -8, v12
v_lshl_add_u32 v12, v12, 1, v13
v_add_u32 v12, {KC}, v12
v_mul_u32_u24 v14, 80, v10
v_lshl_add_u32 v14, v11, 4, v14""")
    a(f"""s_lshr_b32 s42, s2, 4
s_lshl_b32 s43, s42, 8
s_lshl_b32 s71, s20, 6
s_add_u32 s43, s43, s71
s_add_u32 s43, s43, {CO}
v_lshlrev_b32 v5, 2, v2
v_mov_b32 v13, 1
s_mov_b64 exec, 0xffff
buffer_atomic_add v13, v5, s[52:55], s43 offen sc0 sc1
s_mov_b64 exec, -1""")
    a(f"""s_mul_i32 s21, s20, 512
s_add_u32 s21, s21, {32*79}
v_subrev_u32 v12, s21, v12
s_mul_i32 s21, s20, 640
s_sub_u32 s21, {XB-560}, s21
v_add_u32 v14, s21, v14
s_mov_b32 s30, 0xffff0000
s_mov_b32 s31, 0xffff0000""")
    if PRIO: a(f"s_setprio {PRIO}")
    a(f"""s_waitcnt vmcnt(7)
ds_write_b128 v4, v[16:19] offset:{koff(0)}
ds_write_b128 v4, v[18:21] offset:{koff(4)}""")
    for k in range(6): a(f"v_alignbit_b32 v{32+k}, v{17+k}, v{16+k}, 16")
    for k in range(6): a(f"v_alignbit_b32 v{40+k}, v{18+k}, v{17+k}, 16")
    a(f"""ds_write_b128 v4, v[32:35] offset:{koff(1)}
ds_write_b128 v4, v[34:37] offset:{koff(5)}
ds_write_b128 v4, v[40:43] offset:{koff(3)}
ds_write_b128 v4, v[42:45] offset:{koff(7)}
s_waitcnt vmcnt(5)
ds_write_b128 v4, v[24:27] offset:{koff(2)}
ds_write_b128 v4, v[26:29] offset:{koff(6)}""")
    a(f"""s_waitcnt vmcnt(3)
ds_write_b128 v4, v[48:51] offset:{XB}
ds_write_b128 v6, v[52:55] offset:{XB}
s_waitcnt lgkmcnt(0)
s_barrier
""")
    from gen_k2z import Q
    lq=Q(a,"lgkmcnt",15)
    KS=[48,56,4]
    def rk(n):
        b=KS[n%3]
        a(f"ds_read_b128 v[{b}:{b+3}], v12 offset:{32*(80-2*n)}"); lq.push(('kl',n))
        a(f"ds_read_b128 v[{b+4}:{b+7}], v12 offset:{32*(16-2*n)}"); lq.push(('kh',n))
    def rx(n,j,ks):
        b=16+16*(n%2)+8*ks+4*j
        a(f"ds_read_b128 v[{b}:{b+3}], v14 offset:{80*(7-n)+2560*j+32*ks}"); lq.push(('x',n,j,ks))
    def reads(n):
        rx(n,0,1); rx(n,1,1); rk(n+1); rx(n,1,0); rx(n,0,0)
    used=set()
    def mf(acc,kb,n,j,ks):
        lq.wait(('x',n,j,ks))
        xb=16+16*(n%2)+8*ks+4*j
        c=f"v[{acc}:{acc+15}]" if acc in used else "0"
        used.add(acc)
        a(f"v_mfma_f32_32x32x16_f16 v[{acc}:{acc+15}], v[{kb}:{kb+3}], v[{xb}:{xb+3}], {c}")
    rk(0); reads(0)
    for n in range(8):
        if n<7: reads(n+1)
        b=KS[n%3]; b2=KS[(n+1)%3]
        mf(80,b+4,n,0,1); mf(64,b,n,0,1); mf(80,b,n,1,1)
        lq.wait(('kh',n+1))
        for e in range(8): a(f"v_cndmask_b32 v{b+e}, v{b2+e}, v{b+e}, s[30:31]")
        mf(112,b,n,1,0); mf(96,b,n,0,0); mf(112,b+4,n,0,0)
    a("s_nop 7\ns_nop 7\ns_nop 3")
    for k in range(32): a(f"v_add_f32 v{64+k}, v{64+k}, v{96+(k^8)}")
    a(f"""s_barrier
s_lshl_b32 s21, s20, 13
v_add_u32 v4, s21, v3""")
    a("v_xor_b32 v6, 64, v4\nv_xor_b32 v7, 0x80, v4\nv_xor_b32 v8, 0xc0, v4")
    for g in range(8): a(f"ds_write_b128 v{[4,6,7,8][g&3]}, v[{64+4*g}:{67+4*g}] offset:{KC+1024*g}")
    a(f"""v_and_b32 v16, 3, v0
v_bfe_u32 v17, v0, 2, 5
v_lshlrev_b32 v9, 2, v16
v_xor_b32 v17, v17, v9
v_lshlrev_b32 v17, 4, v17
v_lshl_add_u32 v17, v16, 10, v17
v_lshrrev_b32 v9, 7, v0
v_lshl_add_u32 v9, v9, 12, v17
v_lshrrev_b32 v17, 2, v0
v_mul_u32_u24 v17, 80, v17
v_lshl_add_u32 v10, v16, 4, v17
ds_read_b128 v[48:51], v10 offset:{XB}
s_waitcnt lgkmcnt(0)
s_barrier""")
    for e in range(2):
        for ww in range(4): a(f"ds_read_b128 v[{16+16*e+4*ww}:{19+16*e+4*ww}], v9 offset:{KC+8192*ww+512*e}")
    a(f"""v_lshlrev_b32 v6, 4, v0
s_lshl_b32 s23, s2, 12
s_mov_b32 s24, 0xfffefffe
s_waitcnt vmcnt(0) lgkmcnt(0)
v_lshlrev_b32 v5, 16, v1
v_mul_f32 v5, 0x3a800000, v5""")
    for e in range(2):
        for r in range(4):
            b=16+16*e+r
            a(f"v_add_f32 v{b}, v{b}, v{b+4}\nv_add_f32 v{b+8}, v{b+8}, v{b+12}\nv_add_f32 v{b}, v{b}, v{b+8}\nv_mul_f32 v{b}, v{b}, v15")
            bf16_rne(a, b, b, 7)
            src=48+2*e+r//2
            a(f"v_fma_mix_f32 v8, v{src}, v5, 0 op_sel:[{r%2},0,0] op_sel_hi:[1,0,0]")
            bf16_rne(a, 8, 8, 7)
            a(f"v_add_f32 v{b}, v{b}, v8")
        b=16+16*e
        a(f"v_cvt_pk_bf16_f32 v{52+2*e}, v{b}, v{b+1}\nv_cvt_pk_bf16_f32 v{53+2*e}, v{b+2}, v{b+3}\nv_pk_min_u16 v{52+2*e}, v{52+2*e}, s24\nv_pk_min_u16 v{53+2*e}, v{53+2*e}, s24")
    a(f"buffer_store_dwordx4 v[52:55], v6, s[52:55], s23 offen {SCW}")
    a("""s_mov_b64 exec, 0xffff
v_cmp_eq_u32 vcc, 0x10f, v13
s_mov_b64 exec, -1
s_cbranch_vccz K3_END
s_mov_b32 s78, vcc_lo""")
    fsrd(a)
    a("""K3CL:
s_ff1_i32_b32 s72, s78
s_bitset0_b32 s78, s72
s_lshl_b32 s71, s20, 4
s_add_u32 s72, s72, s71""")
    derive(a,TA,72,42); ldx(a,TA)
    a("buffer_load_dwordx2 v[88:89], v4, s[56:59], s64 offen sc0 sc1\nbuffer_load_dwordx2 v[90:91], v4, s[56:59], s64 offen offset:16 sc0 sc1")
    spin(a,TA,"C")
    a("s_cmp_lg_u32 s78, 0\ns_cbranch_scc1 K3CL\ns_branch K3_END")
    a("""K3R:
s_waitcnt lgkmcnt(0)
s_sub_u32 s3, s2, 576""")
    srd(a, 8, 4, PART, 16*L*D*2)
    a("""v_lshrrev_b32 v1, 6, v0
v_lshlrev_b32 v2, 14, v1
v_and_b32 v3, 63, v0
v_lshl_add_u32 v2, v3, 4, v2
s_lshl_b32 s21, s3, 16""")
    from gen_k2z import Q
    vq=Q(a,"vmcnt",63)
    def ld(rd,s_):
        a(f"s_add_u32 s20, s21, {65536*NRW*rd+4096*(s_//4)}\nbuffer_load_dwordx4 v[{8+4*s_}:{11+4*s_}], v2, s[8:11], s20 offen offset:{1024*(s_%4)}"); vq.push((rd,s_))
    if RD: a(f"s_sleep {RD}")
    for s_ in range(16): ld(0,s_)
    srd(a, 52, 4, YAT, CO+9216); fsrd(a)
    a("v_readfirstlane_b32 s77, v1\ns_lshr_b32 s74, s77, 1\ns_and_b32 s75, s77, 1")
    for T,t in ((TA,"s3"),(TB_,"s26")):
        a(f"""s_add_u32 s26, s3, {NRW}
s_mul_hi_u32 s27, {t}, 0x71c71c8
s_mul_i32 s23, s27, 36
s_sub_u32 s23, {t}, s23
s_and_b32 s24, s23, 1
s_lshl_b32 s24, s24, 1
s_lshl_b32 s72, s27, 2
s_add_u32 s72, s72, s24
s_add_u32 s72, s72, s74
s_and_b32 s73, s23, -2
s_add_u32 s73, s73, s75""")
        derive(a,T,72,73)
    def sel(h,two=False):
        if two: return f"op_sel:[{h},0,{h}] op_sel_hi:[1,0,1]"
        return f"op_sel:[{h},0,0] op_sel_hi:[1,0,0]"
    def rounds(nr):
      for rd in range(nr):
        for p in range(8):
            vq.wait((rd,2*p+1))
            c=72+8*(p&1)
            for e in range(8):
                r0=8+8*p+e//2; r1=r0+4
                if p<2: a(f"v_fma_mix_f32 v{c+e}, v{r0}, 1.0, v{r1} {sel(e%2,True)}")
                else:
                    a(f"v_fma_mix_f32 v{c+e}, v{r0}, 1.0, v{c+e} {sel(e%2)}")
            if p>=2:
                for e in range(8):
                    r1=8+8*p+e//2+4
                    a(f"v_fma_mix_f32 v{c+e}, v{r1}, 1.0, v{c+e} {sel(e%2)}")
            if rd<nr-1: ld(1,2*p); ld(1,2*p+1)
            else:
                Ts=[TA,TB_][:nr]
                if p==0:
                    for T in Ts: ldx(a,T); vq.push('x'); vq.push('x')
                if p==max(EP,2):
                    for T in Ts:
                        ldy(a,T)
                        for e in range(8): vq.push('y')
        for e in range(8): a(f"v_add_f32 v{72+e}, v{72+e}, v{80+e}")
        for e in range(4): a(f"v_cvt_pk_bf16_f32 v{88+4*rd+e}, v{72+2*e}, v{73+2*e}")
      Ts=[TA,TB_][:nr]
      a(f"s_mov_b32 s76, 0\nK3P{nr}:\ns_waitcnt vmcnt(0)")
      if LIMIT==0: a(f"s_branch K3S{nr}")
      chk(a,Ts)
      a(f"""s_cbranch_vccz K3G{nr}
s_add_u32 s76, s76, 1
s_cmp_ge_u32 s76, {LIMIT}
s_cbranch_scc1 K3S{nr}
s_sleep {SLP}""")
      for T in Ts: ldy(a,T)
      a(f"s_branch K3P{nr}\nK3G{nr}:")
      for k,T in enumerate(Ts): go(a,T,48+4*k)
      a(f"s_branch K3_END\nK3S{nr}:")
      for k,T in enumerate(Ts):
        P=T['P']
        a(f"""buffer_store_dwordx2 v[{P}:{P+1}], v4, s[56:59], s{T['so']} offen sc0 sc1
buffer_store_dwordx2 v[{P+2}:{P+3}], v4, s[56:59], s{T['so']} offen offset:16 sc0 sc1
v_mov_b32 v41, 0x100
s_waitcnt vmcnt(0)
s_mov_b64 exec, 1
buffer_atomic_add v41, v7, s[52:55], s{T['sc']} offen sc0 sc1
s_waitcnt vmcnt(0)
s_mov_b64 exec, -1
v_readfirstlane_b32 s70, v41
s_cmp_lg_u32 s70, 16
s_cbranch_scc1 K3K{nr}{k}""")
        spin(a,T,f"{nr}{k}")
        a(f"K3K{nr}{k}:")
    q0=list(vq.q)
    a(f"s_cmp_lt_u32 s3, {576-NRW}\ns_cbranch_scc1 K3R2")
    rounds(1)
    a("s_branch K3_END\nK3R2:")
    vq.q[:]=q0
    rounds(2)
    a("K3_END:\ns_endpgm")
    return a.text()
```

```python
from gen_common import *
import gen_k1d as gen_k1
from gen_conv3 import gen_k4t
import gen_k3p
from gen_k3p import gen_k3g as gen_k3d, K3LDS
from gen_k2z import gen_k2k as gen_k2g
from gen_v3 import *
import sys
from gen_k1o import gen_k1f as gen_k1e, K1LDS
import os
if os.environ.get('KPV'): gen_k3p.KP,gen_k3p.EX=[int(x) for x in os.environ['KPV'].split(',')]
if os.environ.get('FINE'): gen_k3p.FINE=int(os.environ['FINE'])
k1,TOT=gen_k1e()
k3=gen_k3d(int(sys.argv[2]) if len(sys.argv)>2 else 0)
ref=open(f"cdna_kernels/{NAME}.s.ref").read().split("\n")
out="\n".join(l for l in ref if l.startswith(";") and "@launch" not in l)+"\n"
out+=f"; @launch kernel=k1_kernel grid=({TOT},1,1) block=(256,1,1) lds={K1LDS}\n"
out+="; @launch kernel=k2f_kernel grid=(256,1,1) block=(256,1,1) lds=157184\n"
out+=f"; @launch kernel=k3c_kernel grid=({576+gen_k3p.NRW},1,1) block=(256,1,1) lds={K3LDS}\n"
out+='.amdgcn_target "amdgcn-amd-amdhsa--gfx950"\n.text\n'
def stamp(t, n, idx):
    st=f"""    s_cmp_lg_u32 s2, 0
    s_cbranch_scc1 STK{idx}
    s_load_dwordx2 s[96:97], s[0:1], 120
    s_memrealtime s[98:99]
    s_waitcnt lgkmcnt(0)
    v_mov_b32 v1, {ST+48+4*idx}
    v_mov_b32 v2, s98
    global_store_dword v1, v2, s[96:97]
STK{idx}:
"""
    return t.replace(n+":\n", n+":\n"+st, 1)
for idx,(n,t) in enumerate((("k1_kernel",k1),("k2f_kernel",gen_k2g()),("k3c_kernel",k3))):
    t=stamp(t,n,idx)
    out+=f".globl {n}\n.p2align 8\n.type {n},@function\n"+t
out+='.section .rodata,"a"\n'
for n,v,ac in (("k1_kernel",64,64),("k2f_kernel",512,256),("k3c_kernel",128,128)):
    out+=".p2align 6\n"+kd(n,v,102,ac)
open(sys.argv[1] if len(sys.argv)>1 else f"cdna_kernels/{NAME}.s","w").write(out)
```

```python
from gen_common import *
from gen_v3 import XP, YAT, PART, YB
from gen_k1i import KD, KDA, KDS
C=2047; XB=2480; KC=XB+5120; K3LDS=40960
KP=4144; EX=0
import os
NRW=int(os.environ.get('NRW','448'))
LIMIT=int(os.environ.get('LIMIT','200')); SLP=int(os.environ.get('SLP','20')); EP=int(os.environ.get('EP','7'))
CO=L*D*2+4096
SCW=os.environ.get('SCW','sc0 sc1'); SCR=os.environ.get('SCR','sc0 sc1')
PRIO=int(os.environ.get('PRIO','0')); RD=int(os.environ.get('RD','0'))
CE=[0,1,2,3,8,9,10,11]; BIG=int(os.environ.get('BIG','20000'))
def fsrd(a):
    srd(a,44,80,0,L*D*2); srd(a,48,82,0,L*D*2); srd(a,56,4,YB,L*D*2)
    a("""v_and_b32 v4, 31, v0
v_lshrrev_b32 v7, 6, v0
v_mul_u32_u24 v7, 1280, v7
v_lshl_add_u32 v97, v4, 1, v7
v_mul_u32_u24 v4, 1152, v4
v_bfe_u32 v5, v0, 5, 1
v_lshl_add_u32 v4, v5, 3, v4
v_mul_u32_u24 v5, 320, v5
v_add_u32 v97, v97, v5
v_bfe_u32 v5, v0, 2, 4
v_and_b32 v96, 3, v0
v_lshlrev_b32 v96, 4, v96
v_lshl_add_u32 v6, v5, 12, v96
v_mul_u32_u24 v5, 80, v5
v_add3_u32 v96, v96, v5, v7
v_mov_b32 v7, 0""")
def derive(a,T,rg,cg):
    a(f"""s_mul_i32 s{T['so']}, s{rg}, 36864
s_lshl_b32 s70, s{cg}, 5
s_add_u32 s{T['so']}, s{T['so']}, s70
s_lshl_b32 s{T['sy']}, s{cg}, 16
s_lshl_b32 s70, s{rg}, 6
s_add_u32 s{T['sy']}, s{T['sy']}, s70
s_lshl_b32 s{T['sc']}, s{cg}, 8
s_lshl_b32 s70, s{rg}, 2
s_add_u32 s{T['sc']}, s{T['sc']}, s70
s_add_u32 s{T['sc']}, s{T['sc']}, {CO}""")
def ldx(a,T):
    X=T['X']; a(f"buffer_load_dwordx2 v[{X}:{X+1}], v4, s[44:47], s{T['so']} offen\nbuffer_load_dwordx2 v[{X+2}:{X+3}], v4, s[44:47], s{T['so']} offen offset:16")
def ldy(a,T):
    R=T['R']; a(f"buffer_load_dwordx4 v[{R}:{R+3}], v6, s[52:55], s{T['sy']} offen {SCR}")
def chk(a,Ts):
    r=[T['R']+e for T in Ts for e in range(4)]
    a(f"v_pk_max_u16 v40, v{r[0]}, v{r[1]}")
    for x in r[2:]: a(f"v_pk_max_u16 v40, v40, v{x}")
    a("v_lshrrev_b32 v41, 16, v40\nv_and_b32 v40, 0xffff, v40\nv_max_u32 v40, v40, v41\nv_cmp_eq_u32 vcc, 0xffff, v40")
def tr(a,Ts):
    for T in Ts: a(f"ds_write_b128 v96, v[{T['R']}:{T['R']+3}] offset:{T['lo']}")
    a("s_waitcnt lgkmcnt(0)")
    for T in Ts:
        for e in range(8): a(f"ds_read_u16 v{T['Y']+e}, v97 offset:{T['lo']+80*CE[e]}")
    a("s_waitcnt lgkmcnt(0)")
def go(a,T,o=48):
    X,Y,P=T['X'],T['Y'],T['P']
    for r in range(4):
        a(f"""v_lshlrev_b32 v42, 16, v{X+r}
v_and_b32 v43, 0xffff0000, v{X+r}
v_lshlrev_b32 v44, 16, v{Y+2*r}
v_lshlrev_b32 v45, 16, v{Y+2*r+1}
v_add_f32 v42, v42, v44
v_add_f32 v43, v43, v45""")
        bf16_rne(a,42,42,46); bf16_rne(a,43,43,47)
        a(f"""v_lshlrev_b32 v44, 16, v{P+r}
v_and_b32 v45, 0xffff0000, v{P+r}
v_add_f32 v42, v42, v44
v_add_f32 v43, v43, v45
v_cvt_pk_bf16_f32 v{o+r}, v42, v43""")
    a(f"buffer_store_dwordx2 v[{o}:{o+1}], v4, s[48:51], s{T['so']} offen\nbuffer_store_dwordx2 v[{o+2}:{o+3}], v4, s[48:51], s{T['so']} offen offset:16")
def spin(a,T,tag):
    a(f"s_mov_b32 s79, 0\nK3SP{tag}:"); ldy(a,T); a("s_waitcnt vmcnt(0)"); chk(a,[T])
    a(f"s_cbranch_vccz K3SG{tag}\ns_sleep {SLP}\ns_add_u32 s79, s79, 1\ns_cmp_lt_u32 s79, {BIG}\ns_cbranch_scc1 K3SP{tag}\nK3SG{tag}:"); tr(a,[T]); go(a,T)
TA=dict(P=88,X=100,Y=16,R=108,lo=0,so=64,sy=65,sc=66); TB_=dict(P=92,X=104,Y=24,R=112,lo=5120,so=67,sy=68,sc=69)
def koff(c): return KC+c*KP+(c>>2)*EX
def conv_steps(a, qs):
    qmax=qs[-1]
    steps=[]; cur=[]; regs=0
    dlof=lambda q:(q+1)//2 if q%2 else q//2
    for q in qs:
        r=12 if dlof(q)<=31 else 8
        if regs+r>24: steps.append(cur); cur=[]; regs=0
        cur.append(q); regs+=r
    steps.append(cur)
    def reads(n):
        o=16+24*(n%2); ops=[]; cnt=0
        for q in steps[n]:
            dl=dlof(q); ks=q%2
            a(f"ds_read_b128 v[{o}:{o+3}], v12 offset:{32*(qmax-q)}")
            kb=o; o+=4; cnt+=1
            for j in ([0,1] if dl<=31 else [1]):
                off=XB+80*(32*j-dl)+32*ks
                assert off>=0
                a(f"ds_read_b128 v[{o}:{o+3}], v14 offset:{off}")
                ops.append((j,kb,o,cnt+1)); o+=4; cnt+=1
        return ops,cnt
    ops,cp=reads(0)
    for n in range(len(steps)):
        c=0
        if n+1<len(steps): on,c=reads(n+1)
        last=None
        for (j,kb,xo,need) in ops:
            w=c+cp-need
            if FINE:
                if w!=last: a(f"s_waitcnt lgkmcnt({w})")
                last=w
            elif last is None:
                a(f"s_waitcnt lgkmcnt({c})"); last=c
            a(f"v_mfma_f32_32x32x16_f16 v[{64+16*j}:{79+16*j}], v[{kb}:{kb+3}], v[{xo}:{xo+3}], v[{64+16*j}:{79+16*j}]")
        if n+1<len(steps): ops=on; cp=c
FINE=1
def gen_k3g(MIX=0, rng=((-1,26),(26,53),(53,88),(88,127))):
    a=Asm()
    a(f"""k3c_kernel:
s_load_dwordx2 s[4:5], s[0:1], 120
s_load_dwordx2 s[6:7], s[0:1], 64
s_load_dwordx2 s[80:81], s[0:1], 0
s_load_dwordx2 s[82:83], s[0:1], 104
s_mov_b32 s90, 0x7fff
s_cmp_ge_u32 s2, {576+NRW}
s_cbranch_scc1 K3_END""")
    if MIX==1:
        a("""s_cmp_ge_u32 s2, 864
s_cbranch_scc1 K3R
s_mul_hi_u32 s3, s2, 0x55555556
s_mul_i32 s20, s3, 3
s_add_u32 s20, s20, 2
s_cmp_lg_u32 s20, s2
s_cbranch_scc1 K3C
s_add_u32 s2, s3, 576
s_branch K3R
K3C:
s_sub_u32 s2, s2, s3""")
    else:
        a("s_cmp_ge_u32 s2, 576\ns_cbranch_scc1 K3R")
    a("s_waitcnt lgkmcnt(0)")
    srd(a, 36, 4, XP, 576*5120); srd(a, 52, 4, YAT, CO+9216); srd(a, 32, 6, 0, D*2); srd(a, 8, 4, KD, 576*KDS)
    a(f"""v_lshlrev_b32 v4, 4, v0
s_mul_i32 s41, s2, {KDS}
v_lshrrev_b32 v1, 6, v0
s_nop 0
v_readfirstlane_b32 s20, v1
buffer_load_dwordx4 v[16:19], v4, s[8:11], s41 offen
buffer_load_dwordx4 v[20:23], v4, s[8:11], s41 offen offset:16
buffer_load_dwordx4 v[24:27], v4, s[8:11], s41 offen offset:4
buffer_load_dwordx4 v[28:31], v4, s[8:11], s41 offen offset:20
s_mul_i32 s40, s2, 5120
v_add_u32 v6, 4096, v4
v_min_u32 v6, 5104, v6
buffer_load_dwordx4 v[48:51], v4, s[36:39], s40 offen
buffer_load_dwordx4 v[52:55], v6, s[36:39], s40 offen
s_lshl_b32 s27, s2, 1
v_mov_b32 v1, s27
buffer_load_ushort v1, v1, s[32:35], 0 offen
v_mov_b32 v15, 4160
buffer_load_dword v15, v15, s[8:11], s41 offen
v_and_b32 v2, 63, v0
v_lshlrev_b32 v3, 4, v2
v_min_u32 v7, {XB-16}, v4
v_bfe_u32 v8, v0, 2, 3
v_bfe_u32 v9, v0, 4, 1
v_mul_u32_u24 v8, {KP}, v8
v_mul_u32_u24 v9, {EX}, v9
v_add_u32 v8, v8, v9
v_and_b32 v9, 3, v0
v_min_u32 v9, 2, v9
v_lshl_add_u32 v8, v9, 4, v8
v_add_u32 v8, {KC+4096}, v8
v_cmp_gt_u32 vcc, 160, v0
v_cndmask_b32 v7, v8, v7, vcc
v_mov_b32 v8, 0
v_mov_b32 v9, 0
v_mov_b32 v10, 0
v_mov_b32 v11, 0
ds_write_b128 v7, v[8:11]
s_nop 0
v_and_b32 v10, 31, v2
v_lshrrev_b32 v11, 5, v2
v_lshlrev_b32 v12, 3, v11
v_sub_u32 v12, v12, v10
v_add_u32 v12, {C}, v12
v_and_b32 v13, 7, v12
v_bfe_u32 v9, v12, 2, 1
v_mul_u32_u24 v13, {KP}, v13
v_mul_u32_u24 v9, {EX}, v9
v_add_u32 v13, v13, v9
v_and_b32 v12, -8, v12
v_lshl_add_u32 v12, v12, 1, v13
v_add_u32 v12, {KC}, v12
v_mul_u32_u24 v14, 80, v10
v_lshl_add_u32 v14, v11, 4, v14""")
    a(f"""s_lshr_b32 s42, s2, 4
s_lshl_b32 s43, s42, 8
s_lshl_b32 s71, s20, 6
s_add_u32 s43, s43, s71
s_add_u32 s43, s43, {CO}
v_lshlrev_b32 v5, 2, v2
v_mov_b32 v13, 1
s_mov_b64 exec, 0xffff
buffer_atomic_add v13, v5, s[52:55], s43 offen sc0 sc1
s_mov_b64 exec, -1""")
    a(f"""s_mul_i32 s21, s20, 512
s_add_u32 s21, s21, {32*79}
v_subrev_u32 v12, s21, v12
s_mul_i32 s21, s20, 640
s_sub_u32 s21, {XB-560}, s21
v_add_u32 v14, s21, v14
s_mov_b32 s30, 0xffff0000
s_mov_b32 s31, 0xffff0000""")
    if PRIO: a(f"s_setprio {PRIO}")
    a(f"""s_waitcnt vmcnt(7)
ds_write_b128 v4, v[16:19] offset:{koff(0)}
ds_write_b128 v4, v[18:21] offset:{koff(4)}""")
    for k in range(6): a(f"v_alignbit_b32 v{32+k}, v{17+k}, v{16+k}, 16")
    for k in range(6): a(f"v_alignbit_b32 v{40+k}, v{18+k}, v{17+k}, 16")
    a(f"""ds_write_b128 v4, v[32:35] offset:{koff(1)}
ds_write_b128 v4, v[34:37] offset:{koff(5)}
ds_write_b128 v4, v[40:43] offset:{koff(3)}
ds_write_b128 v4, v[42:45] offset:{koff(7)}
s_waitcnt vmcnt(5)
ds_write_b128 v4, v[24:27] offset:{koff(2)}
ds_write_b128 v4, v[26:29] offset:{koff(6)}""")
    a(f"""s_waitcnt vmcnt(3)
ds_write_b128 v4, v[48:51] offset:{XB}
ds_write_b128 v6, v[52:55] offset:{XB}
s_waitcnt lgkmcnt(0)
s_barrier
""")
    from gen_k2z import Q
    lq=Q(a,"lgkmcnt",15)
    KS=[48,56,4]
    def rk(n):
        b=KS[n%3]
        a(f"ds_read_b128 v[{b}:{b+3}], v12 offset:{32*(80-2*n)}"); lq.push(('kl',n))
        a(f"ds_read_b128 v[{b+4}:{b+7}], v12 offset:{32*(16-2*n)}"); lq.push(('kh',n))
    def rx(n,j,ks):
        b=16+16*(n%2)+8*ks+4*j
        a(f"ds_read_b128 v[{b}:{b+3}], v14 offset:{80*(7-n)+2560*j+32*ks}"); lq.push(('x',n,j,ks))
    def reads(n):
        rx(n,0,1); rx(n,1,1); rk(n+1); rx(n,1,0); rx(n,0,0)
    used=set()
    def mf(acc,kb,n,j,ks):
        lq.wait(('x',n,j,ks))
        xb=16+16*(n%2)+8*ks+4*j
        c=f"v[{acc}:{acc+15}]" if acc in used else "0"
        used.add(acc)
        a(f"v_mfma_f32_32x32x16_f16 v[{acc}:{acc+15}], v[{kb}:{kb+3}], v[{xb}:{xb+3}], {c}")
    rk(0); reads(0)
    for n in range(8):
        if n<7: reads(n+1)
        b=KS[n%3]; b2=KS[(n+1)%3]
        mf(80,b+4,n,0,1); mf(64,b,n,0,1); mf(80,b,n,1,1)
        lq.wait(('kh',n+1))
        for e in range(8): a(f"v_cndmask_b32 v{b+e}, v{b2+e}, v{b+e}, s[30:31]")
        mf(112,b,n,1,0); mf(96,b,n,0,0); mf(112,b+4,n,0,0)
    a("s_nop 7\ns_nop 7\ns_nop 3")
    for k in range(32): a(f"v_add_f32 v{64+k}, v{64+k}, v{96+(k^8)}")
    a(f"""s_barrier
s_lshl_b32 s21, s20, 13
v_add_u32 v4, s21, v3""")
    a("v_xor_b32 v6, 64, v4\nv_xor_b32 v7, 0x80, v4\nv_xor_b32 v8, 0xc0, v4")
    for g in range(8): a(f"ds_write_b128 v{[4,6,7,8][g&3]}, v[{64+4*g}:{67+4*g}] offset:{KC+1024*g}")
    a(f"""v_and_b32 v16, 3, v0
v_bfe_u32 v17, v0, 2, 5
v_lshlrev_b32 v9, 2, v16
v_xor_b32 v17, v17, v9
v_lshlrev_b32 v17, 4, v17
v_lshl_add_u32 v17, v16, 10, v17
v_lshrrev_b32 v9, 7, v0
v_lshl_add_u32 v9, v9, 12, v17
v_lshrrev_b32 v17, 2, v0
v_mul_u32_u24 v17, 80, v17
v_lshl_add_u32 v10, v16, 4, v17
ds_read_b128 v[48:51], v10 offset:{XB}
s_waitcnt lgkmcnt(0)
s_barrier""")
    for e in range(2):
        for ww in range(4): a(f"ds_read_b128 v[{16+16*e+4*ww}:{19+16*e+4*ww}], v9 offset:{KC+8192*ww+512*e}")
    a(f"""v_lshlrev_b32 v6, 4, v0
s_lshl_b32 s23, s2, 12
s_mov_b32 s24, 0xfffefffe
s_waitcnt vmcnt(0) lgkmcnt(0)
v_lshlrev_b32 v5, 16, v1
v_mul_f32 v5, 0x3a800000, v5""")
    for e in range(2):
        for r in range(4):
            b=16+16*e+r
            a(f"v_add_f32 v{b}, v{b}, v{b+4}\nv_add_f32 v{b+8}, v{b+8}, v{b+12}\nv_add_f32 v{b}, v{b}, v{b+8}\nv_mul_f32 v{b}, v{b}, v15")
            bf16_rne(a, b, b, 7)
            src=48+2*e+r//2
            a(f"v_fma_mix_f32 v8, v{src}, v5, 0 op_sel:[{r%2},0,0] op_sel_hi:[1,0,0]")
            bf16_rne(a, 8, 8, 7)
            a(f"v_add_f32 v{b}, v{b}, v8")
        b=16+16*e
        a(f"v_cvt_pk_bf16_f32 v{52+2*e}, v{b}, v{b+1}\nv_cvt_pk_bf16_f32 v{53+2*e}, v{b+2}, v{b+3}\nv_pk_min_u16 v{52+2*e}, v{52+2*e}, s24\nv_pk_min_u16 v{53+2*e}, v{53+2*e}, s24")
    a(f"buffer_store_dwordx4 v[52:55], v6, s[52:55], s23 offen {SCW}")
    a("""s_mov_b64 exec, 0xffff
v_cmp_eq_u32 vcc, 0x10f, v13
s_mov_b64 exec, -1
s_cbranch_vccz K3_END
s_mov_b32 s78, vcc_lo""")
    fsrd(a)
    a("""K3CL:
s_ff1_i32_b32 s72, s78
s_bitset0_b32 s78, s72
s_lshl_b32 s71, s20, 4
s_add_u32 s72, s72, s71""")
    derive(a,TA,72,42); ldx(a,TA)
    a("buffer_load_dwordx2 v[88:89], v4, s[56:59], s64 offen sc0 sc1\nbuffer_load_dwordx2 v[90:91], v4, s[56:59], s64 offen offset:16 sc0 sc1")
    spin(a,TA,"C")
    a("s_cmp_lg_u32 s78, 0\ns_cbranch_scc1 K3CL\ns_branch K3_END")
    a("""K3R:
s_waitcnt lgkmcnt(0)
s_sub_u32 s3, s2, 576""")
    srd(a, 8, 4, PART, 16*L*D*2)
    a(f"""v_lshrrev_b32 v1, 6, v0
v_lshlrev_b32 v2, 14, v1
v_and_b32 v3, 63, v0
v_lshl_add_u32 v2, v3, 4, v2
s_add_u32 s26, s3, {NRW}""")
    for u,t in ((3,62),(26,63)):
        a(f"""s_lshr_b32 s22, s{u}, 4
s_lshl_b32 s22, s22, 3
s_and_b32 s23, s{u}, 7
s_or_b32 s22, s22, s23
s_and_b32 s23, s22, 1
s_lshl_b32 s22, s22, 1
s_sub_u32 s22, s22, s23
s_lshr_b32 s23, s{u}, 2
s_and_b32 s23, s23, 2
s_add_u32 s{t}, s22, s23""")
    a("s_lshl_b32 s21, s62, 16\ns_lshl_b32 s25, s63, 16")
    from gen_k2z import Q
    vq=Q(a,"vmcnt",63)
    def ld(rd,s_):
        a(f"s_add_u32 s20, s{21+4*rd}, {4096*(s_//4)}\nbuffer_load_dwordx4 v[{8+4*s_}:{11+4*s_}], v2, s[8:11], s20 offen offset:{1024*(s_%4)}"); vq.push((rd,s_))
    if RD: a(f"s_sleep {RD}")
    for s_ in range(16): ld(0,s_)
    srd(a, 52, 4, YAT, CO+9216); fsrd(a)
    a("v_readfirstlane_b32 s77, v1\ns_lshr_b32 s74, s77, 1\ns_and_b32 s75, s77, 1")
    for T,t in ((TA,"s62"),(TB_,"s63")):
        a(f"""s_mul_hi_u32 s27, {t}, 0x71c71c8
s_mul_i32 s23, s27, 36
s_sub_u32 s23, {t}, s23
s_and_b32 s24, s23, 1
s_lshl_b32 s24, s24, 1
s_lshl_b32 s72, s27, 2
s_add_u32 s72, s72, s24
s_add_u32 s72, s72, s74
s_and_b32 s73, s23, -2
s_add_u32 s73, s73, s75""")
        derive(a,T,72,73)
    def sel(h,two=False):
        if two: return f"op_sel:[{h},0,{h}] op_sel_hi:[1,0,1]"
        return f"op_sel:[{h},0,0] op_sel_hi:[1,0,0]"
    def rounds(nr):
      for T in [TA,TB_][:nr]: ldx(a,T); vq.push('x'); vq.push('x')
      for rd in range(nr):
        for p in range(8):
            vq.wait((rd,2*p+1))
            c=72+8*(p&1)
            for e in range(8):
                r0=8+8*p+e//2; r1=r0+4
                if p<2: a(f"v_fma_mix_f32 v{c+e}, v{r0}, 1.0, v{r1} {sel(e%2,True)}")
                else:
                    a(f"v_fma_mix_f32 v{c+e}, v{r0}, 1.0, v{c+e} {sel(e%2)}")
            if p>=2:
                for e in range(8):
                    r1=8+8*p+e//2+4
                    a(f"v_fma_mix_f32 v{c+e}, v{r1}, 1.0, v{c+e} {sel(e%2)}")
            if rd<nr-1: ld(1,2*p); ld(1,2*p+1)
            else:
                Ts=[TA,TB_][:nr]
                if p==EP:
                    for T in Ts: ldy(a,T); vq.push('y')
        for e in range(8): a(f"v_add_f32 v{72+e}, v{72+e}, v{80+e}")
        for e in range(4): a(f"v_cvt_pk_bf16_f32 v{88+4*rd+e}, v{72+2*e}, v{73+2*e}")
      Ts=[TA,TB_][:nr]
      a(f"s_mov_b32 s76, 0\nK3P{nr}:\ns_waitcnt vmcnt(0)")
      if LIMIT==0: a(f"s_branch K3S{nr}")
      chk(a,Ts)
      a(f"""s_cbranch_vccz K3G{nr}
s_add_u32 s76, s76, 1
s_cmp_ge_u32 s76, {LIMIT}
s_cbranch_scc1 K3S{nr}
s_sleep {SLP}""")
      for T in Ts: ldy(a,T)
      a(f"s_branch K3P{nr}\nK3G{nr}:")
      tr(a,Ts)
      for k,T in enumerate(Ts): go(a,T,48+4*k)
      a(f"s_branch K3_END\nK3S{nr}:")
      for k,T in enumerate(Ts):
        P=T['P']
        a(f"""buffer_store_dwordx2 v[{P}:{P+1}], v4, s[56:59], s{T['so']} offen sc0 sc1
buffer_store_dwordx2 v[{P+2}:{P+3}], v4, s[56:59], s{T['so']} offen offset:16 sc0 sc1
v_mov_b32 v41, 0x100
s_waitcnt vmcnt(0)
s_mov_b64 exec, 1
buffer_atomic_add v41, v7, s[52:55], s{T['sc']} offen sc0 sc1
s_waitcnt vmcnt(0)
s_mov_b64 exec, -1
v_readfirstlane_b32 s70, v41
s_cmp_lg_u32 s70, 16
s_cbranch_scc1 K3K{nr}{k}""")
        spin(a,T,f"{nr}{k}")
        a(f"K3K{nr}{k}:")
    q0=list(vq.q)
    a(f"s_cmp_lt_u32 s3, {576-NRW}\ns_cbranch_scc1 K3R2")
    rounds(1)
    a("s_branch K3_END\nK3R2:")
    vq.q[:]=q0
    rounds(2)
    a("K3_END:\ns_endpgm")
    return a.text()
```

```python
from gen_common import *
import gen_k1d as gen_k1
from gen_conv3 import gen_k4t
import gen_k3s
from gen_k3s import gen_k3g as gen_k3d, K3LDS
from gen_k2z import gen_k2k as gen_k2g
from gen_v3 import *
import sys
from gen_k1o import gen_k1f as gen_k1e, K1LDS
import os
if os.environ.get('KPV'): gen_k3s.KP,gen_k3s.EX=[int(x) for x in os.environ['KPV'].split(',')]
if os.environ.get('FINE'): gen_k3s.FINE=int(os.environ['FINE'])
k1,TOT=gen_k1e()
k3=gen_k3d(int(sys.argv[2]) if len(sys.argv)>2 else 0)
ref=open(f"cdna_kernels/{NAME}.s.ref").read().split("\n")
out="\n".join(l for l in ref if l.startswith(";") and "@launch" not in l)+"\n"
out+=f"; @launch kernel=k1_kernel grid=({TOT},1,1) block=(256,1,1) lds={K1LDS}\n"
out+="; @launch kernel=k2f_kernel grid=(256,1,1) block=(256,1,1) lds=157184\n"
out+=f"; @launch kernel=k3c_kernel grid=({576+gen_k3s.NRW},1,1) block=(256,1,1) lds={K3LDS}\n"
out+='.amdgcn_target "amdgcn-amd-amdhsa--gfx950"\n.text\n'
def stamp(t, n, idx):
    st=f"""    s_cmp_lg_u32 s2, 0
    s_cbranch_scc1 STK{idx}
    s_load_dwordx2 s[96:97], s[0:1], 120
    s_memrealtime s[98:99]
    s_waitcnt lgkmcnt(0)
    v_mov_b32 v1, {ST+48+4*idx}
    v_mov_b32 v2, s98
    global_store_dword v1, v2, s[96:97]
STK{idx}:
"""
    return t.replace(n+":\n", n+":\n"+st, 1)
for idx,(n,t) in enumerate((("k1_kernel",k1),("k2f_kernel",gen_k2g()),("k3c_kernel",k3))):
    t=stamp(t,n,idx)
    out+=f".globl {n}\n.p2align 8\n.type {n},@function\n"+t
out+='.section .rodata,"a"\n'
for n,v,ac in (("k1_kernel",64,64),("k2f_kernel",512,256),("k3c_kernel",128,128)):
    out+=".p2align 6\n"+kd(n,v,102,ac)
open(sys.argv[1] if len(sys.argv)>1 else f"cdna_kernels/{NAME}.s","w").write(out)
```

```python
from gen_common import *
from gen_v3 import XP, img_role, tab_role
R=2
NLN=L//(4*R)
def gen_k1e():
    a = Asm()
    T0=NLN; I0=NLN+19; TOT=I0+2592
    a(f"""k1_kernel:
s_load_dwordx2 s[4:5], s[0:1], 120
s_mov_b32 s90, 0x7fff
s_cmp_ge_u32 s2, {TOT}
s_cbranch_scc1 K1_END
s_cmp_ge_u32 s2, {I0}
s_cbranch_scc1 K1_TR
s_cmp_ge_u32 s2, {T0}
s_cbranch_scc1 K1_TAB""")
    a("s_load_dwordx2 s[6:7], s[0:1], 0\ns_waitcnt lgkmcnt(0)")
    srd(a, 8, 6, 0, L*D*2)
    srd(a, 12, 4, XN, L*D*2)
    srd(a, 16, 4, XP, 576*5120)
    a(f"""v_lshrrev_b32 v1, 6, v0
v_and_b32 v2, 63, v0
s_mul_i32 s20, s2, {4*R*1152}
v_mul_u32_u24 v4, {R*1152}, v1
v_lshl_add_u32 v4, v2, 2, v4
v_cmp_gt_u32 s[22:23], 32, v2""")
    DA=8; UP=8+5*R; MU=UP+10*R; VA=MU+R; RC=VA+R; TM=RC+R
    for i in range(R):
        for j in range(4): a(f"buffer_load_dword v{DA+5*i+j}, v4, s[8:11], s20 offen offset:{1152*i+256*j}")
        a(f"v_mov_b32 v{DA+5*i+4}, 0")
    a("s_mov_b64 s[24:25], exec\ns_mov_b64 exec, s[22:23]")
    for i in range(R): a(f"buffer_load_dword v{DA+5*i+4}, v4, s[8:11], s20 offen offset:{1152*i+1024}")
    a("s_mov_b64 exec, s[24:25]\ns_waitcnt vmcnt(0)")
    for i in range(R):
        for j in range(5):
            a(f"v_lshlrev_b32 v{UP+10*i+2*j}, 16, v{DA+5*i+j}\nv_and_b32 v{UP+10*i+2*j+1}, 0xffff0000, v{DA+5*i+j}")
    def reduce(base):
        for op in ("row_shr:1 row_mask:0xf","row_shr:2 row_mask:0xf","row_shr:4 row_mask:0xf","row_shr:8 row_mask:0xf","row_bcast:15 row_mask:0xa","row_bcast:31 row_mask:0xc"):
            a("s_nop 1")
            for i in range(R): a(f"v_add_f32_dpp v{base+i}, v{base+i}, v{base+i} {op} bank_mask:0xf bound_ctrl:0")
        a("s_nop 1")
        for i in range(R): a(f"v_readlane_b32 s{40+i}, v{base+i}, 63")
        for i in range(R): a(f"v_mov_b32 v{base+i}, s{40+i}")
    for i in range(R):
        a(f"v_add_f32 v{MU+i}, v{UP+10*i}, v{UP+10*i+1}")
        for j in range(2,10): a(f"v_add_f32 v{MU+i}, v{MU+i}, v{UP+10*i+j}")
    reduce(MU)
    a("s_mov_b32 s26, 0x3ae38e39")
    for i in range(R): a(f"v_mul_f32 v{MU+i}, s26, v{MU+i}")
    for i in range(R):
        a(f"v_mov_b32 v{VA+i}, 0")
        for j in range(10):
            a(f"v_sub_f32 v7, v{UP+10*i+j}, v{MU+i}")
            if j >= 8: a(f"v_cndmask_b32 v7, 0, v7, s[22:23]")
            a(f"v_fmac_f32 v{VA+i}, v7, v7")
    reduce(VA)
    for i in range(R):
        a(f"v_mul_f32 v{VA+i}, s26, v{VA+i}")
        bf16_rne(a, MU+i, MU+i, 7)
        bf16_rne(a, VA+i, VA+i, 7)
        a(f"v_add_f32 v{VA+i}, 0x3727c5ac, v{VA+i}")
        bf16_rne(a, VA+i, VA+i, 7)
        a(f"v_sqrt_f32 v{VA+i}, v{VA+i}\ns_nop 0")
        bf16_rne(a, VA+i, VA+i, 7)
        a(f"v_rcp_f32 v{RC+i}, v{VA+i}\ns_nop 0")
    a(f"v_mul_u32_u24 v5, {1168*R}, v1\nv_lshl_add_u32 v5, v2, 2, v5")
    for i in range(R):
        for j in range(10):
            r = UP+10*i+j
            a(f"v_sub_f32 v{r}, v{r}, v{MU+i}")
            bf16_rne(a, r, r, 7)
            a(f"v_mul_f32 v7, v{r}, v{RC+i}\nv_fma_f32 v{r}, -v7, v{VA+i}, v{r}\nv_fma_f32 v{r}, v{r}, v{RC+i}, v7")
        for j in range(5):
            a(f"v_cvt_pk_bf16_f32 v{DA+5*i+j}, v{UP+10*i+2*j}, v{UP+10*i+2*j+1}")
    for i in range(R):
        for j in range(4): a(f"ds_write_b32 v5, v{DA+5*i+j} offset:{1168*i+256*j}")
    a("s_mov_b64 exec, s[22:23]")
    for i in range(R): a(f"ds_write_b32 v5, v{DA+5*i+4} offset:{1168*i+1024}")
    NR=4*R
    G=32//NR
    a(f"""s_mov_b64 exec, s[24:25]
s_lshr_b32 s27, s2, {G.bit_length()-1}
s_and_b32 s28, s2, {G-1}
s_mul_i32 s29, s27, 36864
s_mul_i32 s30, s28, {NR*16}
s_add_u32 s29, s29, s30
s_mul_i32 s30, s2, 9216
s_mov_b32 s36, {10<<23}
s_waitcnt lgkmcnt(0)
s_barrier""")
    assert NR==8
    for p in range(3):
        b=8+16*p
        a(f"v_add_u32 v{b}, {256*p}, v0")
        if p == 2: a(f"v_cmp_gt_u32 vcc, 576, v{b}\ns_and_saveexec_b64 s[24:25], vcc")
        a(f"""v_lshlrev_b32 v{b+1}, 1, v{b}
v_and_b32 v{b+2}, 7, v{b}
v_lshrrev_b32 v{b+3}, 3, v{b}
v_mul_u32_u24 v4, 1168, v{b+2}
v_lshl_add_u32 v4, v{b+3}, 4, v4
ds_read_b128 v[{b+4}:{b+7}], v4""")
        for r in range(8): a(f"ds_read_u16 v{b+8+r}, v{b+1} offset:{1168*r}")
        a(f"""v_lshlrev_b32 v{b+2}, 4, v{b+2}
v_lshl_add_u32 v{b+2}, v{b+3}, 9, v{b+2}
v_lshlrev_b32 v{b+1}, 4, v{b}""")
    for p in range(3):
        b=8+16*p
        if p==0: a("s_mov_b64 s[34:35], exec\ns_mov_b64 exec, s[24:25]")
        if p==2: a("s_mov_b64 exec, s[34:35]")
        a(f"s_waitcnt lgkmcnt({min(15,9*(2-p)+8)})\nbuffer_store_dwordx4 v[{b+4}:{b+7}], v{b+2}, s[12:15], s29 offen\ns_waitcnt lgkmcnt({min(15,9*(2-p))})")
        for r in range(4): a(f"v_lshl_add_u32 v{b+8+2*r}, v{b+8+2*r}, 16, s36\nv_lshl_add_u32 v{b+8+2*r+1}, v{b+8+2*r+1}, 16, s36\nv_cvt_pk_f16_f32 v{b+8+r}, v{b+8+2*r}, v{b+8+2*r+1}")
        a(f"buffer_store_dwordx4 v[{b+8}:{b+11}], v{b+1}, s[16:19], s30 offen")
    a("s_branch K1_END")
    b=Asm(); img_role(b); b("s_branch K1_END"); tab_role(b,T0)
    return a.text()+b.text().replace("s_sub_u32 s3, s2, 640",f"s_sub_u32 s3, s2, {I0}")+"K1_END:\n    s_endpgm\n", TOT
```

```python
from gen_common import *
from gen_v3 import XP, KR, img_role, tab_role
import gen_k1r as gen_k1e
KD=KR; KDA=4224; KDS=KDA
TBL=0; LA=5760; SC=5952; TL=6144; K1LDS=TL+12288
def kgen_role(a):
    a("""K1_KGEN:
s_load_dwordx8 s[8:15], s[0:1], 8
s_load_dwordx4 s[16:19], s[0:1], 40
s_load_dwordx2 s[20:21], s[0:1], 56
s_waitcnt lgkmcnt(0)
s_lshl_b32 s22, s2, 8
v_lshlrev_b32 v1, 1, v0
v_add_u32 v1, s22, v1
v_cmp_gt_u32 vcc, 128, v0
s_and_saveexec_b64 s[24:25], vcc
global_load_ushort v2, v1, s[8:9]
global_load_ushort v3, v1, s[10:11]
global_load_ushort v4, v1, s[12:13]
global_load_ushort v5, v1, s[14:15]
global_load_ushort v6, v1, s[16:17]
global_load_ushort v7, v1, s[18:19]
s_lshl_b32 s23, s2, 1
v_mov_b32 v8, s23
global_load_ushort v8, v8, s[20:21]
s_mov_b64 exec, s[24:25]
v_and_b32 v12, 63, v0
v_lshrrev_b32 v13, 6, v0
v_and_b32 v14, 15, v12
v_lshrrev_b32 v15, 4, v12
v_lshl_add_u32 v16, v13, 5, v15
v_lshlrev_b32 v16, 4, v16
v_and_b32 v17, 7, v14
v_lshrrev_b32 v18, 3, v14
v_lshl_add_u32 v20, v18, 7, v17
v_and_b32 v17, 3, v14
v_lshlrev_b32 v17, 1, v17
v_bfe_u32 v18, v14, 2, 1
v_lshl_add_u32 v17, v18, 7, v17
v_add_u32 v17, 256, v17
v_and_b32 v18, 1, v14
v_lshlrev_b32 v18, 2, v18
v_bfe_u32 v19, v14, 1, 2
v_lshl_add_u32 v18, v19, 7, v18
v_add_u32 v18, 512, v18
v_cmp_gt_u32 vcc, 8, v14
v_cndmask_b32 v21, v18, v17, vcc
v_lshlrev_b32 v17, 7, v14
v_add_u32 v17, 1024, v17
v_mov_b32 v18, 2056
v_cmp_gt_u32 vcc, 9, v14
v_cndmask_b32 v22, v18, v17, vcc
v_lshlrev_b32 v23, 3, v14
v_cmp_gt_u32 vcc, 16, v0
s_and_saveexec_b64 s[24:25], vcc
v_lshlrev_b32 v17, 2, v14""")
    a(f"""ds_write_b32 v17, v20 offset:{LA}
ds_write_b32 v17, v21 offset:{LA+64}
ds_write_b32 v17, v22 offset:{LA+128}
s_mov_b64 exec, s[24:25]
v_cvt_f32_u32 v20, v20
v_cvt_f32_u32 v21, v21
v_cvt_f32_u32 v22, v22
v_cvt_f32_u32 v23, v23
v_cmp_gt_u32 vcc, 128, v0
s_and_saveexec_b64 s[24:25], vcc
s_waitcnt vmcnt(0)
v_lshlrev_b32 v2, 16, v2
v_lshlrev_b32 v3, 16, v3
v_lshlrev_b32 v4, 16, v4
v_lshlrev_b32 v5, 16, v5
v_lshlrev_b32 v6, 16, v6
v_lshlrev_b32 v7, 16, v7
v_lshlrev_b32 v8, 16, v8
v_mul_f32 v8, 0x3fb8aa3b, v8
v_exp_f32 v8, v8
s_nop 0""")
    bf16_rne(a, 8, 8, 9)
    a("""v_mul_f32 v2, v8, v2
v_mul_f32 v3, v8, v3
v_mul_f32 v4, v8, v4
v_mul_f32 v5, v8, v5
v_mul_f32 v10, v6, v4
v_fma_f32 v10, -v7, v5, v10
v_mul_f32 v11, v6, v5
v_fma_f32 v11, v7, v4, v11
v_mul_f32 v8, 0x3fb8aa3b, v2
v_mul_f32 v9, 0x3e22f983, v3
v_lshlrev_b32 v1, 4, v0
ds_write_b128 v1, v[8:11]
v_add_f32_e64 v17, |v10|, |v11|
v_lshlrev_b32 v18, 2, v13""")
    for op in ("row_shr:1 row_mask:0xf","row_shr:2 row_mask:0xf","row_shr:4 row_mask:0xf","row_shr:8 row_mask:0xf","row_bcast:15 row_mask:0xa","row_bcast:31 row_mask:0xc"):
        a(f"s_nop 1\nv_add_f32_dpp v17, v17, v17 {op} bank_mask:0xf bound_ctrl:0")
    a(f"""s_nop 1
v_readlane_b32 s30, v17, 63
s_nop 3
v_mov_b32 v17, s30
ds_write_b32 v18, v17 offset:{SC}
s_mov_b64 exec, s[24:25]
s_waitcnt lgkmcnt(0)
s_barrier""")
    for t in range(4): a(f"ds_read_b128 v[{36+4*t}:{39+4*t}], v16 offset:{64*t}")
    for t in range(8):
        pb=36+4*(t%4)
        ar,ai,wr,wi = pb,pb+1,pb+2,pb+3
        T=lambda e,k: 52+3*e+k
        a(f"s_waitcnt lgkmcnt({3 if t<5 else 7-t})")
        for e in range(4): a(f"v_mul_f32 v{T(e,0)}, v{ar}, v{20+e}\nv_mul_f32 v{T(e,1)}, v{ai}, v{20+e}")
        for e in (3,0,1,2): a(f"v_fract_f32 v{T(e,1)}, v{T(e,1)}")
        for e in (3,0,1,2): a(f"v_exp_f32 v{T(e,0)}, v{T(e,0)}\nv_sin_f32 v{T(e,2)}, v{T(e,1)}\nv_cos_f32 v{T(e,1)}, v{T(e,1)}")
        for e in (3,0,1,2): a(f"v_mul_f32 v{T(e,1)}, v{T(e,0)}, v{T(e,1)}\nv_mul_f32 v{T(e,2)}, v{T(e,0)}, v{T(e,2)}")
        a(f"v_mul_f32 v{T(3,0)}, v{wi}, v{T(3,2)}\nv_mul_f32 v{T(0,0)}, v{wi}, v{T(3,1)}")
        a(f"v_fma_f32 v{T(3,0)}, v{wr}, v{T(3,1)}, -v{T(3,0)}\nv_fma_f32 v{T(3,1)}, -v{wr}, v{T(3,2)}, -v{T(0,0)}")
        if t<4: a(f"ds_read_b128 v[{pb}:{pb+3}], v16 offset:{64*(t+4)}")
        a("s_nop 1")
        for e in range(3):
            c = "0" if t==0 else f"v[{24+4*e}:{27+4*e}]"
            a(f"v_mfma_f32_16x16x4_f32 v[{24+4*e}:{27+4*e}], v{T(e,1)}, v{T(3,0)}, {c}")
        for e in range(3):
            a(f"v_mfma_f32_16x16x4_f32 v[{24+4*e}:{27+4*e}], v{T(e,2)}, v{T(3,1)}, v[{24+4*e}:{27+4*e}]")
        a("s_nop 1")
    a(f"""s_nop 7
s_nop 7
v_mul_u32_u24 v17, 3072, v13
v_lshl_add_u32 v17, v12, 4, v17
ds_write_b128 v17, v[24:27] offset:{TL}
ds_write_b128 v17, v[28:31] offset:{TL+1024}
ds_write_b128 v17, v[32:35] offset:{TL+2048}
s_mov_b32 s26, {(-0x3f7f*4)&0xffffffff}
s_mov_b32 s27, 0x3f7f3f7f
s_mov_b32 s28, 0x00020002
s_waitcnt lgkmcnt(0)
s_barrier
v_cmp_gt_u32 vcc, 192, v0
s_and_saveexec_b64 s[24:25], vcc
v_lshlrev_b32 v17, 10, v13
v_lshl_add_u32 v17, v12, 4, v17
ds_read_b128 v[24:27], v17 offset:{TL}
ds_read_b128 v[28:31], v17 offset:{TL+3072}
ds_read_b128 v[32:35], v17 offset:{TL+6144}
ds_read_b128 v[36:39], v17 offset:{TL+9216}
v_lshlrev_b32 v18, 6, v13
v_lshl_add_u32 v18, v15, 4, v18
ds_read_b128 v[40:43], v18 offset:{LA}
v_lshlrev_b32 v19, 3, v14
v_mov_b32 v18, 0x4501
s_waitcnt lgkmcnt(0)""")
    for r in range(4):
        a(f"""v_add_f32 v{24+r}, v{24+r}, v{28+r}
v_add_f32 v{32+r}, v{32+r}, v{36+r}
v_add_f32 v{24+r}, v{24+r}, v{32+r}
v_add_u32 v{40+r}, v{40+r}, v19
v_cvt_f32_u32 v44, v{40+r}
v_lshrrev_b32 v44, 16, v44
v_max_u32 v44, 0x3f7f, v44
v_cmp_lt_u32 vcc, 2048, v{40+r}
v_cndmask_b32 v44, v44, v18, vcc
v_lshl_add_u32 v{40+r}, v44, 2, s26
ds_write_b32 v{40+r}, v{24+r} offset:{TBL}""")
    a("""s_mov_b64 exec, s[24:25]
v_lshlrev_b32 v1, 3, v0
v_sub_u32 v1, 2047, v1
v_cvt_f32_u32 v2, v1""")
    srd(a, 8, 4, KD, 576*KDS)
    a(f"s_mul_i32 s22, s2, {KDS}")
    fl={1:"1.0",2:"2.0",3:"0x40400000",4:"4.0",5:"0x40a00000",6:"0x40c00000",7:"0x40e00000"}
    for m in range(4):
        x0 = "v2" if m==0 else "v3"
        if m: a(f"v_subrev_f32 v3, {fl[2*m]}, v2")
        a(f"""v_subrev_f32 v4, {fl[2*m+1]}, v2
v_cvt_pk_bf16_f32 v5, {x0}, v4
v_pk_sub_u16 v5, v5, s27 clamp
v_pk_lshlrev_b16 v5, s28, v5
v_and_b32 v{44+2*m}, 0xffff, v5
v_lshrrev_b32 v{45+2*m}, 16, v5""")
    a(f"""v_mov_b32 v2, 0
ds_read_b64 v[32:33], v2 offset:{SC}
s_waitcnt lgkmcnt(0)
s_barrier""")
    for u in range(8): a(f"ds_read_b32 v{24+u}, v{44+u} offset:{TBL}")
    a(f"""v_add_f32 v32, v32, v33
v_lshrrev_b32 v32, 23, v32
v_max_u32 v32, 32, v32
v_sub_u32 v33, 268, v32
v_lshlrev_b32 v33, 23, v33
v_subrev_u32 v32, 24, v32
v_lshlrev_b32 v32, 23, v32
v_lshlrev_b32 v1, 4, v0
v_cmp_gt_u32 vcc, 8, v0
s_and_saveexec_b64 s[24:25], vcc
s_cbranch_execz K1_KZ
v_add_u32 v3, 4096, v1
v_cmp_eq_u32 vcc, 4, v0
v_cndmask_b32 v4, 0, v32, vcc
v_mov_b32 v5, 0
v_mov_b32 v6, 0
v_mov_b32 v7, 0
buffer_store_dwordx4 v[4:7], v3, s[8:11], s22 offen
K1_KZ:
s_mov_b64 exec, s[24:25]""")
    for m in range(4):
        a(f"""s_waitcnt lgkmcnt({6-2*m})
v_mul_f32 v{24+2*m}, v{24+2*m}, v33
v_mul_f32 v{25+2*m}, v{25+2*m}, v33
v_cvt_pk_f16_f32 v{36+m}, v{24+2*m}, v{25+2*m}""")
    a(f"""buffer_store_dwordx4 v[36:39], v1, s[8:11], s22 offen""")
    from gen_v3 import YAT
    srd(a,12,4,YAT,L*D*2+4096+9216)
    a(f"""v_mov_b32 v40, -1
v_mov_b32 v41, -1
v_mov_b32 v42, -1
v_mov_b32 v43, -1
s_lshl_b32 s23, s2, 12
buffer_store_dwordx4 v[40:43], v1, s[12:15], s23 offen
s_lshl_b32 s23, s2, 4
s_add_u32 s23, s23, {L*D*2+4096}
v_mov_b32 v44, 0
v_lshlrev_b32 v45, 2, v0
v_cmp_gt_u32 vcc, 4, v0
s_and_saveexec_b64 s[24:25], vcc
buffer_store_dword v44, v45, s[12:15], s23 offen
s_branch K1_END""")

def gen_k1f():
    t,TOT=gen_k1e.gen_k1e()
    head="k1_kernel:\n    s_load_dwordx2 s[4:5], s[0:1], 120\n    s_mov_b32 s90, 0x7fff\n"
    assert t.startswith(head)
    t=head+"    s_cmp_lt_u32 s2, 576\n    s_cbranch_scc1 K1_KGEN\n    s_sub_u32 s2, s2, 576\n"+t[len(head):]
    b=Asm(); kgen_role(b)
    tail="K1_END:\n    s_endpgm\n"
    assert t.endswith(tail)
    return t[:-len(tail)]+b.text()+tail, TOT+576
```

```python
from gen_common import *
from gen_v3 import XP, YAT, PART, YB
from gen_k1i import KD, KDA, KDS
C=2047; XB=2480; KC=XB+5120; K3LDS=40960
KP=4144; EX=0
import os
NRW=int(os.environ.get('NRW','448'))
LIMIT=int(os.environ.get('LIMIT','200')); SLP=int(os.environ.get('SLP','20')); EP=int(os.environ.get('EP','7'))
CO=L*D*2+4096
SCW=os.environ.get('SCW','sc0 sc1'); SCR=os.environ.get('SCR','sc0 sc1')
PRIO=int(os.environ.get('PRIO','0')); RD=int(os.environ.get('RD','0'))
CE=[0,1,2,3,8,9,10,11]; BIG=int(os.environ.get('BIG','20000'))
def fsrd(a):
    srd(a,44,80,0,L*D*2); srd(a,48,82,0,L*D*2); srd(a,56,4,YB,L*D*2)
    a("""v_and_b32 v4, 31, v0
v_lshrrev_b32 v7, 6, v0
v_mul_u32_u24 v7, 1280, v7
v_lshl_add_u32 v97, v4, 1, v7
v_mul_u32_u24 v4, 1152, v4
v_bfe_u32 v5, v0, 5, 1
v_lshl_add_u32 v4, v5, 3, v4
v_mul_u32_u24 v5, 320, v5
v_add_u32 v97, v97, v5
v_bfe_u32 v5, v0, 2, 4
v_and_b32 v96, 3, v0
v_lshlrev_b32 v96, 4, v96
v_lshl_add_u32 v6, v5, 12, v96
v_mul_u32_u24 v5, 80, v5
v_add3_u32 v96, v96, v5, v7
v_mov_b32 v7, 0""")
def derive(a,T,rg,cg):
    a(f"""s_mul_i32 s{T['so']}, s{rg}, 36864
s_lshl_b32 s70, s{cg}, 5
s_add_u32 s{T['so']}, s{T['so']}, s70
s_lshl_b32 s{T['sy']}, s{cg}, 16
s_lshl_b32 s70, s{rg}, 6
s_add_u32 s{T['sy']}, s{T['sy']}, s70
s_lshl_b32 s{T['sc']}, s{cg}, 8
s_lshl_b32 s70, s{rg}, 2
s_add_u32 s{T['sc']}, s{T['sc']}, s70
s_add_u32 s{T['sc']}, s{T['sc']}, {CO}""")
def ldx(a,T):
    X=T['X']; a(f"buffer_load_dwordx2 v[{X}:{X+1}], v4, s[44:47], s{T['so']} offen\nbuffer_load_dwordx2 v[{X+2}:{X+3}], v4, s[44:47], s{T['so']} offen offset:16")
def ldy(a,T):
    R=T['R']; a(f"buffer_load_dwordx4 v[{R}:{R+3}], v6, s[52:55], s{T['sy']} offen {SCR}")
def chk(a,Ts):
    r=[T['R']+e for T in Ts for e in range(4)]
    a(f"v_pk_max_u16 v40, v{r[0]}, v{r[1]}")
    for x in r[2:]: a(f"v_pk_max_u16 v40, v40, v{x}")
    a("v_lshrrev_b32 v41, 16, v40\nv_and_b32 v40, 0xffff, v40\nv_max_u32 v40, v40, v41\nv_cmp_eq_u32 vcc, 0xffff, v40")
def tr(a,Ts):
    for T in Ts: a(f"ds_write_b128 v96, v[{T['R']}:{T['R']+3}] offset:{T['lo']}")
    a("s_waitcnt lgkmcnt(0)")
    for T in Ts:
        for e in range(8): a(f"ds_read_u16 v{T['Y']+e}, v97 offset:{T['lo']+80*CE[e]}")
    a("s_waitcnt lgkmcnt(0)")
def go(a,T,o=48):
    X,Y,P=T['X'],T['Y'],T['P']
    for r in range(4):
        a(f"""v_lshlrev_b32 v42, 16, v{X+r}
v_and_b32 v43, 0xffff0000, v{X+r}
v_lshlrev_b32 v44, 16, v{Y+2*r}
v_lshlrev_b32 v45, 16, v{Y+2*r+1}
v_add_f32 v42, v42, v44
v_add_f32 v43, v43, v45""")
        bf16_rne(a,42,42,46); bf16_rne(a,43,43,47)
        a(f"""v_lshlrev_b32 v44, 16, v{P+r}
v_and_b32 v45, 0xffff0000, v{P+r}
v_add_f32 v42, v42, v44
v_add_f32 v43, v43, v45
v_cvt_pk_bf16_f32 v{o+r}, v42, v43""")
    a(f"buffer_store_dwordx2 v[{o}:{o+1}], v4, s[48:51], s{T['so']} offen\nbuffer_store_dwordx2 v[{o+2}:{o+3}], v4, s[48:51], s{T['so']} offen offset:16")
def spin(a,T,tag):
    a(f"s_mov_b32 s79, 0\nK3SP{tag}:"); ldy(a,T); a("s_waitcnt vmcnt(0)"); chk(a,[T])
    a(f"s_cbranch_vccz K3SG{tag}\ns_sleep {SLP}\ns_add_u32 s79, s79, 1\ns_cmp_lt_u32 s79, {BIG}\ns_cbranch_scc1 K3SP{tag}\nK3SG{tag}:"); tr(a,[T]); go(a,T)
TA=dict(P=88,X=100,Y=16,R=108,lo=0,so=64,sy=65,sc=66); TB_=dict(P=92,X=104,Y=24,R=112,lo=5120,so=67,sy=68,sc=69)
def koff(c): return KC+c*KP+(c>>2)*EX
def conv_steps(a, qs):
    qmax=qs[-1]
    steps=[]; cur=[]; regs=0
    dlof=lambda q:(q+1)//2 if q%2 else q//2
    for q in qs:
        r=12 if dlof(q)<=31 else 8
        if regs+r>24: steps.append(cur); cur=[]; regs=0
        cur.append(q); regs+=r
    steps.append(cur)
    def reads(n):
        o=16+24*(n%2); ops=[]; cnt=0
        for q in steps[n]:
            dl=dlof(q); ks=q%2
            a(f"ds_read_b128 v[{o}:{o+3}], v12 offset:{32*(qmax-q)}")
            kb=o; o+=4; cnt+=1
            for j in ([0,1] if dl<=31 else [1]):
                off=XB+80*(32*j-dl)+32*ks
                assert off>=0
                a(f"ds_read_b128 v[{o}:{o+3}], v14 offset:{off}")
                ops.append((j,kb,o,cnt+1)); o+=4; cnt+=1
        return ops,cnt
    ops,cp=reads(0)
    for n in range(len(steps)):
        c=0
        if n+1<len(steps): on,c=reads(n+1)
        last=None
        for (j,kb,xo,need) in ops:
            w=c+cp-need
            if FINE:
                if w!=last: a(f"s_waitcnt lgkmcnt({w})")
                last=w
            elif last is None:
                a(f"s_waitcnt lgkmcnt({c})"); last=c
            a(f"v_mfma_f32_32x32x16_f16 v[{64+16*j}:{79+16*j}], v[{kb}:{kb+3}], v[{xo}:{xo+3}], v[{64+16*j}:{79+16*j}]")
        if n+1<len(steps): ops=on; cp=c
FINE=1
def gen_k3g(MIX=0, rng=((-1,26),(26,53),(53,88),(88,127))):
    a=Asm()
    a(f"""k3c_kernel:
s_load_dwordx2 s[4:5], s[0:1], 120
s_load_dwordx2 s[6:7], s[0:1], 64
s_load_dwordx2 s[80:81], s[0:1], 0
s_load_dwordx2 s[82:83], s[0:1], 104
s_mov_b32 s90, 0x7fff
s_cmp_ge_u32 s2, {576+NRW}
s_cbranch_scc1 K3_END""")
    if MIX==1:
        a("""s_cmp_ge_u32 s2, 864
s_cbranch_scc1 K3R
s_mul_hi_u32 s3, s2, 0x55555556
s_mul_i32 s20, s3, 3
s_add_u32 s20, s20, 2
s_cmp_lg_u32 s20, s2
s_cbranch_scc1 K3C
s_add_u32 s2, s3, 576
s_branch K3R
K3C:
s_sub_u32 s2, s2, s3""")
    else:
        a("""s_cmp_ge_u32 s2, 576
s_cbranch_scc1 K3R
s_and_b32 s20, s2, 7
s_lshl_b32 s20, s20, 3
s_bfe_u32 s21, s2, 0x30003
s_andn2_b32 s2, s2, 63
s_or_b32 s2, s2, s20
s_or_b32 s2, s2, s21""")
    a("s_waitcnt lgkmcnt(0)")
    srd(a, 36, 4, XP, 576*5120); srd(a, 52, 4, YAT, CO+9216); srd(a, 32, 6, 0, D*2); srd(a, 8, 4, KD, 576*KDS)
    a(f"""v_lshlrev_b32 v4, 4, v0
s_mul_i32 s41, s2, {KDS}
v_lshrrev_b32 v1, 6, v0
s_nop 0
v_readfirstlane_b32 s20, v1
buffer_load_dwordx4 v[16:19], v4, s[8:11], s41 offen
buffer_load_dwordx4 v[20:23], v4, s[8:11], s41 offen offset:16
buffer_load_dwordx4 v[24:27], v4, s[8:11], s41 offen offset:4
buffer_load_dwordx4 v[28:31], v4, s[8:11], s41 offen offset:20
s_lshl_b32 s40, s2, 4
v_mul_u32_u24 v6, 9216, v0
buffer_load_dwordx4 v[48:51], v6, s[36:39], s40 offen
v_lshrrev_b32 v6, 2, v0
v_lshl_add_u32 v6, v6, 4, v4
s_lshl_b32 s27, s2, 1
v_mov_b32 v1, s27
buffer_load_ushort v1, v1, s[32:35], 0 offen
v_mov_b32 v15, 4160
buffer_load_dword v15, v15, s[8:11], s41 offen
v_and_b32 v2, 63, v0
v_lshlrev_b32 v3, 4, v2
v_min_u32 v7, {XB-16}, v4
v_bfe_u32 v8, v0, 2, 3
v_bfe_u32 v9, v0, 4, 1
v_mul_u32_u24 v8, {KP}, v8
v_mul_u32_u24 v9, {EX}, v9
v_add_u32 v8, v8, v9
v_and_b32 v9, 3, v0
v_min_u32 v9, 2, v9
v_lshl_add_u32 v8, v9, 4, v8
v_add_u32 v8, {KC+4096}, v8
v_cmp_gt_u32 vcc, 160, v0
v_cndmask_b32 v7, v8, v7, vcc
v_mov_b32 v8, 0
v_mov_b32 v9, 0
v_mov_b32 v10, 0
v_mov_b32 v11, 0
ds_write_b128 v7, v[8:11]
s_nop 0
v_and_b32 v10, 31, v2
v_lshrrev_b32 v11, 5, v2
v_lshlrev_b32 v12, 3, v11
v_sub_u32 v12, v12, v10
v_add_u32 v12, {C}, v12
v_and_b32 v13, 7, v12
v_bfe_u32 v9, v12, 2, 1
v_mul_u32_u24 v13, {KP}, v13
v_mul_u32_u24 v9, {EX}, v9
v_add_u32 v13, v13, v9
v_and_b32 v12, -8, v12
v_lshl_add_u32 v12, v12, 1, v13
v_add_u32 v12, {KC}, v12
v_mul_u32_u24 v14, 80, v10
v_lshl_add_u32 v14, v11, 4, v14""")
    a(f"""s_lshr_b32 s42, s2, 4
s_lshl_b32 s43, s42, 8
s_lshl_b32 s71, s20, 6
s_add_u32 s43, s43, s71
s_add_u32 s43, s43, {CO}
v_lshlrev_b32 v5, 2, v2
v_mov_b32 v13, 1
s_mov_b64 exec, 0xffff
buffer_atomic_add v13, v5, s[52:55], s43 offen sc0 sc1
s_mov_b64 exec, -1""")
    a(f"""s_mul_i32 s21, s20, 512
s_add_u32 s21, s21, {32*79}
v_subrev_u32 v12, s21, v12
s_mul_i32 s21, s20, 640
s_sub_u32 s21, {XB-560}, s21
v_add_u32 v14, s21, v14
s_mov_b32 s30, 0xffff0000
s_mov_b32 s31, 0xffff0000""")
    if PRIO: a(f"s_setprio {PRIO}")
    a(f"""s_waitcnt vmcnt(6)
ds_write_b128 v4, v[16:19] offset:{koff(0)}
ds_write_b128 v4, v[18:21] offset:{koff(4)}""")
    for k in range(6): a(f"v_alignbit_b32 v{32+k}, v{17+k}, v{16+k}, 16")
    for k in range(6): a(f"v_alignbit_b32 v{40+k}, v{18+k}, v{17+k}, 16")
    a(f"""ds_write_b128 v4, v[32:35] offset:{koff(1)}
ds_write_b128 v4, v[34:37] offset:{koff(5)}
ds_write_b128 v4, v[40:43] offset:{koff(3)}
ds_write_b128 v4, v[42:45] offset:{koff(7)}
s_waitcnt vmcnt(4)
ds_write_b128 v4, v[24:27] offset:{koff(2)}
ds_write_b128 v4, v[26:29] offset:{koff(6)}""")
    a(f"""s_waitcnt vmcnt(3)
ds_write_b128 v6, v[48:51] offset:{XB}
s_waitcnt lgkmcnt(0)
s_barrier
""")
    from gen_k2z import Q
    lq=Q(a,"lgkmcnt",15)
    KS=[48,56,4]
    def rk(n):
        b=KS[n%3]
        a(f"ds_read_b128 v[{b}:{b+3}], v12 offset:{32*(80-2*n)}"); lq.push(('kl',n))
        a(f"ds_read_b128 v[{b+4}:{b+7}], v12 offset:{32*(16-2*n)}"); lq.push(('kh',n))
    def rx(n,j,ks):
        b=16+16*(n%2)+8*ks+4*j
        a(f"ds_read_b128 v[{b}:{b+3}], v14 offset:{80*(7-n)+2560*j+32*ks}"); lq.push(('x',n,j,ks))
    def reads(n):
        rx(n,0,1); rx(n,1,1); rk(n+1); rx(n,1,0); rx(n,0,0)
    used=set()
    def mf(acc,kb,n,j,ks):
        lq.wait(('x',n,j,ks))
        xb=16+16*(n%2)+8*ks+4*j
        c=f"v[{acc}:{acc+15}]" if acc in used else "0"
        used.add(acc)
        a(f"v_mfma_f32_32x32x16_f16 v[{acc}:{acc+15}], v[{kb}:{kb+3}], v[{xb}:{xb+3}], {c}")
    rk(0); reads(0)
    for n in range(8):
        if n<7: reads(n+1)
        b=KS[n%3]; b2=KS[(n+1)%3]
        mf(80,b+4,n,0,1); mf(64,b,n,0,1); mf(80,b,n,1,1)
        lq.wait(('kh',n+1))
        for e in range(8): a(f"v_cndmask_b32 v{b+e}, v{b2+e}, v{b+e}, s[30:31]")
        mf(112,b,n,1,0); mf(96,b,n,0,0); mf(112,b+4,n,0,0)
    a("s_nop 7\ns_nop 7\ns_nop 3")
    for k in range(32): a(f"v_add_f32 v{64+k}, v{64+k}, v{96+(k^8)}")
    a(f"""s_barrier
s_lshl_b32 s21, s20, 13
v_add_u32 v4, s21, v3""")
    a("v_xor_b32 v6, 64, v4\nv_xor_b32 v7, 0x80, v4\nv_xor_b32 v8, 0xc0, v4")
    for g in range(8): a(f"ds_write_b128 v{[4,6,7,8][g&3]}, v[{64+4*g}:{67+4*g}] offset:{KC+1024*g}")
    a(f"""v_and_b32 v16, 3, v0
v_bfe_u32 v17, v0, 2, 5
v_lshlrev_b32 v9, 2, v16
v_xor_b32 v17, v17, v9
v_lshlrev_b32 v17, 4, v17
v_lshl_add_u32 v17, v16, 10, v17
v_lshrrev_b32 v9, 7, v0
v_lshl_add_u32 v9, v9, 12, v17
v_lshrrev_b32 v17, 2, v0
v_mul_u32_u24 v17, 80, v17
v_lshl_add_u32 v10, v16, 4, v17
ds_read_b128 v[48:51], v10 offset:{XB}
s_waitcnt lgkmcnt(0)
s_barrier""")
    for e in range(2):
        for ww in range(4): a(f"ds_read_b128 v[{16+16*e+4*ww}:{19+16*e+4*ww}], v9 offset:{KC+8192*ww+512*e}")
    a(f"""v_lshlrev_b32 v6, 4, v0
s_lshl_b32 s23, s2, 12
s_mov_b32 s24, 0xfffefffe
s_waitcnt vmcnt(0) lgkmcnt(0)
v_lshlrev_b32 v5, 16, v1
v_mul_f32 v5, 0x3a800000, v5""")
    for e in range(2):
        for r in range(4):
            b=16+16*e+r
            a(f"v_add_f32 v{b}, v{b}, v{b+4}\nv_add_f32 v{b+8}, v{b+8}, v{b+12}\nv_add_f32 v{b}, v{b}, v{b+8}\nv_mul_f32 v{b}, v{b}, v15")
            bf16_rne(a, b, b, 7)
            src=48+2*e+r//2
            a(f"v_fma_mix_f32 v8, v{src}, v5, 0 op_sel:[{r%2},0,0] op_sel_hi:[1,0,0]")
            bf16_rne(a, 8, 8, 7)
            a(f"v_add_f32 v{b}, v{b}, v8")
        b=16+16*e
        a(f"v_cvt_pk_bf16_f32 v{52+2*e}, v{b}, v{b+1}\nv_cvt_pk_bf16_f32 v{53+2*e}, v{b+2}, v{b+3}\nv_pk_min_u16 v{52+2*e}, v{52+2*e}, s24\nv_pk_min_u16 v{53+2*e}, v{53+2*e}, s24")
    a(f"buffer_store_dwordx4 v[52:55], v6, s[52:55], s23 offen {SCW}")
    a("""s_mov_b64 exec, 0xffff
v_cmp_eq_u32 vcc, 0x10f, v13
s_mov_b64 exec, -1
s_cbranch_vccz K3_END
s_mov_b32 s78, vcc_lo""")
    fsrd(a)
    a("""K3CL:
s_ff1_i32_b32 s72, s78
s_bitset0_b32 s78, s72
s_lshl_b32 s71, s20, 4
s_add_u32 s72, s72, s71""")
    derive(a,TA,72,42); ldx(a,TA)
    a("buffer_load_dwordx2 v[88:89], v4, s[56:59], s64 offen sc0 sc1\nbuffer_load_dwordx2 v[90:91], v4, s[56:59], s64 offen offset:16 sc0 sc1")
    spin(a,TA,"C")
    a("s_cmp_lg_u32 s78, 0\ns_cbranch_scc1 K3CL\ns_branch K3_END")
    a("""K3R:
s_waitcnt lgkmcnt(0)
s_sub_u32 s3, s2, 576""")
    srd(a, 8, 4, PART, 16*L*D*2)
    a(f"""v_lshrrev_b32 v1, 6, v0
v_lshlrev_b32 v2, 14, v1
v_and_b32 v3, 63, v0
v_lshl_add_u32 v2, v3, 4, v2
s_add_u32 s26, s3, {NRW}""")
    for u,t in ((3,62),(26,63)):
        a(f"""s_lshr_b32 s22, s{u}, 4
s_lshl_b32 s22, s22, 3
s_and_b32 s23, s{u}, 7
s_or_b32 s22, s22, s23
s_and_b32 s23, s22, 1
s_lshl_b32 s22, s22, 1
s_sub_u32 s22, s22, s23
s_lshr_b32 s23, s{u}, 2
s_and_b32 s23, s23, 2
s_add_u32 s{t}, s22, s23""")
    a("s_lshl_b32 s21, s62, 16\ns_lshl_b32 s25, s63, 16")
    from gen_k2z import Q
    vq=Q(a,"vmcnt",63)
    def ld(rd,s_):
        a(f"s_add_u32 s20, s{21+4*rd}, {4096*(s_//4)}\nbuffer_load_dwordx4 v[{8+4*s_}:{11+4*s_}], v2, s[8:11], s20 offen offset:{1024*(s_%4)}"); vq.push((rd,s_))
    if RD: a(f"s_sleep {RD}")
    for s_ in range(16): ld(0,s_)
    srd(a, 52, 4, YAT, CO+9216); fsrd(a)
    a("v_readfirstlane_b32 s77, v1\ns_lshr_b32 s74, s77, 1\ns_and_b32 s75, s77, 1")
    for T,t in ((TA,"s62"),(TB_,"s63")):
        a(f"""s_mul_hi_u32 s27, {t}, 0x71c71c8
s_mul_i32 s23, s27, 36
s_sub_u32 s23, {t}, s23
s_and_b32 s24, s23, 1
s_lshl_b32 s24, s24, 1
s_lshl_b32 s72, s27, 2
s_add_u32 s72, s72, s24
s_add_u32 s72, s72, s74
s_and_b32 s73, s23, -2
s_add_u32 s73, s73, s75""")
        derive(a,T,72,73)
    def sel(h,two=False):
        if two: return f"op_sel:[{h},0,{h}] op_sel_hi:[1,0,1]"
        return f"op_sel:[{h},0,0] op_sel_hi:[1,0,0]"
    def rounds(nr):
      for T in [TA,TB_][:nr]: ldx(a,T); vq.push('x'); vq.push('x')
      for rd in range(nr):
        for p in range(8):
            vq.wait((rd,2*p+1))
            c=72+8*(p&1)
            for e in range(8):
                r0=8+8*p+e//2; r1=r0+4
                if p<2: a(f"v_fma_mix_f32 v{c+e}, v{r0}, 1.0, v{r1} {sel(e%2,True)}")
                else:
                    a(f"v_fma_mix_f32 v{c+e}, v{r0}, 1.0, v{c+e} {sel(e%2)}")
            if p>=2:
                for e in range(8):
                    r1=8+8*p+e//2+4
                    a(f"v_fma_mix_f32 v{c+e}, v{r1}, 1.0, v{c+e} {sel(e%2)}")
            if rd<nr-1: ld(1,2*p); ld(1,2*p+1)
            else:
                Ts=[TA,TB_][:nr]
                if p==EP:
                    for T in Ts: ldy(a,T); vq.push('y')
        for e in range(8): a(f"v_add_f32 v{72+e}, v{72+e}, v{80+e}")
        for e in range(4): a(f"v_cvt_pk_bf16_f32 v{88+4*rd+e}, v{72+2*e}, v{73+2*e}")
      Ts=[TA,TB_][:nr]
      a(f"s_mov_b32 s76, 0\nK3P{nr}:\ns_waitcnt vmcnt(0)")
      if LIMIT==0: a(f"s_branch K3S{nr}")
      chk(a,Ts)
      a(f"""s_cbranch_vccz K3G{nr}
s_add_u32 s76, s76, 1
s_cmp_ge_u32 s76, {LIMIT}
s_cbranch_scc1 K3S{nr}
s_sleep {SLP}""")
      for T in Ts: ldy(a,T)
      a(f"s_branch K3P{nr}\nK3G{nr}:")
      tr(a,Ts)
      for k,T in enumerate(Ts): go(a,T,48+4*k)
      a(f"s_branch K3_END\nK3S{nr}:")
      for k,T in enumerate(Ts):
        P=T['P']
        a(f"""buffer_store_dwordx2 v[{P}:{P+1}], v4, s[56:59], s{T['so']} offen sc0 sc1
buffer_store_dwordx2 v[{P+2}:{P+3}], v4, s[56:59], s{T['so']} offen offset:16 sc0 sc1
v_mov_b32 v41, 0x100
s_waitcnt vmcnt(0)
s_mov_b64 exec, 1
buffer_atomic_add v41, v7, s[52:55], s{T['sc']} offen sc0 sc1
s_waitcnt vmcnt(0)
s_mov_b64 exec, -1
v_readfirstlane_b32 s70, v41
s_cmp_lg_u32 s70, 16
s_cbranch_scc1 K3K{nr}{k}""")
        spin(a,T,f"{nr}{k}")
        a(f"K3K{nr}{k}:")
    q0=list(vq.q)
    a(f"s_cmp_lt_u32 s3, {576-NRW}\ns_cbranch_scc1 K3R2")
    rounds(1)
    a("s_branch K3_END\nK3R2:")
    vq.q[:]=q0
    rounds(2)
    a("K3_END:\ns_endpgm")
    return a.text()
```

```python
from gen_common import *
import gen_k1d as gen_k1
from gen_conv3 import gen_k4t
import gen_k3u
from gen_k3u import gen_k3g as gen_k3d, K3LDS
from gen_k2z import gen_k2k as gen_k2g
from gen_v3 import *
import sys
from gen_k1s import gen_k1f as gen_k1e, K1LDS
import os
if os.environ.get('KPV'): gen_k3u.KP,gen_k3u.EX=[int(x) for x in os.environ['KPV'].split(',')]
if os.environ.get('FINE'): gen_k3u.FINE=int(os.environ['FINE'])
k1,TOT=gen_k1e()
k3=gen_k3d(int(sys.argv[2]) if len(sys.argv)>2 else 0)
ref=open(f"cdna_kernels/{NAME}.s.ref").read().split("\n")
out="\n".join(l for l in ref if l.startswith(";") and "@launch" not in l)+"\n"
out+=f"; @launch kernel=k1_kernel grid=({TOT},1,1) block=(256,1,1) lds={K1LDS}\n"
out+="; @launch kernel=k2f_kernel grid=(256,1,1) block=(256,1,1) lds=157184\n"
out+=f"; @launch kernel=k3c_kernel grid=({576+gen_k3u.NRW},1,1) block=(256,1,1) lds={K3LDS}\n"
out+='.amdgcn_target "amdgcn-amd-amdhsa--gfx950"\n.text\n'
def stamp(t, n, idx):
    st=f"""    s_cmp_lg_u32 s2, 0
    s_cbranch_scc1 STK{idx}
    s_load_dwordx2 s[96:97], s[0:1], 120
    s_memrealtime s[98:99]
    s_waitcnt lgkmcnt(0)
    v_mov_b32 v1, {ST+48+4*idx}
    v_mov_b32 v2, s98
    global_store_dword v1, v2, s[96:97]
STK{idx}:
"""
    return t.replace(n+":\n", n+":\n"+st, 1)
for idx,(n,t) in enumerate((("k1_kernel",k1),("k2f_kernel",gen_k2g()),("k3c_kernel",k3))):
    if idx<2: t='\n'.join(l+' sc1' if 'buffer_store' in l else l for l in t.split('\n'))
    t=stamp(t,n,idx)
    out+=f".globl {n}\n.p2align 8\n.type {n},@function\n"+t
out+='.section .rodata,"a"\n'
for n,v,ac in (("k1_kernel",64,64),("k2f_kernel",512,256),("k3c_kernel",128,128)):
    out+=".p2align 6\n"+kd(n,v,102,ac)
open(sys.argv[1] if len(sys.argv)>1 else f"cdna_kernels/{NAME}.s","w").write(out)
```

```python
from gen_common import *
from gen_v3 import XP, tab_role, WI
def img_role(a):
    a("""K1_TR:
s_load_dwordx2 s[6:7], s[0:1], 80
s_load_dwordx2 s[28:29], s[0:1], 96
s_sub_u32 s3, s2, 640
s_cmp_ge_u32 s3, 648
s_cselect_b32 s30, 648, 0
s_sub_u32 s3, s3, s30
s_mul_hi_u32 s20, s3, 0x1c71c71d
s_mul_i32 s21, s20, 9
s_sub_u32 s21, s3, s21
s_lshl_b32 s21, s21, 8
v_add_u32 v1, s21, v0
s_mul_i32 s22, s20, 147456
v_lshlrev_b32 v2, 4, v1
v_and_b32 v3, 31, v1
v_lshrrev_b32 v4, 5, v1
s_mov_b32 s23, 73728
v_mul_lo_u32 v4, v4, s23
s_lshl_b32 s24, s20, 7
v_lshl_add_u32 v4, v3, 1, v4
v_lshrrev_b32 v7, 7, v1
v_lshlrev_b32 v7, 6, v7
v_lshl_add_u32 v7, v3, 1, v7
v_bfe_u32 v5, v1, 5, 2
v_lshrrev_b32 v6, 1, v5
v_and_b32 v5, 1, v5
v_lshlrev_b32 v6, 4, v6
v_lshl_add_u32 v5, v5, 2, v6
v_mul_u32_u24 v5, 1152, v5
v_add_u32 v7, v7, v5
s_mul_i32 s25, s20, 73728
s_waitcnt lgkmcnt(0)""")
    a("s_cmp_lg_u32 s30, 0\ns_cbranch_scc1 K1_I2")
    srd(a, 8, 6, 0, D*F*2)
    for i in range(8):
        a(f"s_add_u32 s26, s24, {9216*i}\nbuffer_load_ushort v{8+i}, v4, s[8:11], s26 offen\nbuffer_load_ushort v{24+i}, v4, s[8:11], s26 offen offset:64")
    a("s_branch K1_I3\nK1_I2:")
    srd(a, 8, 28, 0, D*F*2)
    for h in range(2):
        for i,f in enumerate((0,1,2,3,8,9,10,11)):
            a(f"s_add_u32 s26, s25, {1152*f+36864*h}\nbuffer_load_ushort v{8+16*h+i}, v7, s[8:11], s26 offen")
    a("s_add_u32 s22, s22, 36864\nK1_I3:")
    srd(a, 12, 4, WI, 144*73728)
    a("s_add_u32 s23, s22, 73728\ns_waitcnt vmcnt(0)")
    for r in range(4): a(f"v_lshl_or_b32 v{16+r}, v{8+2*r+1}, 16, v{8+2*r}")
    a("buffer_store_dwordx4 v[16:19], v2, s[12:15], s22 offen\ns_waitcnt vmcnt(1)")
    for r in range(4): a(f"v_lshl_or_b32 v{20+r}, v{24+2*r+1}, 16, v{24+2*r}")
    a("buffer_store_dwordx4 v[20:23], v2, s[12:15], s23 offen")
R=2
NLN=L//(4*R)
def gen_k1e():
    a = Asm()
    T0=NLN; I0=NLN+19; TOT=I0+1296
    a(f"""k1_kernel:
s_load_dwordx2 s[4:5], s[0:1], 120
s_mov_b32 s90, 0x7fff
s_cmp_ge_u32 s2, {TOT}
s_cbranch_scc1 K1_END
s_cmp_ge_u32 s2, {I0}
s_cbranch_scc1 K1_TR
s_cmp_ge_u32 s2, {T0}
s_cbranch_scc1 K1_TAB""")
    a("s_load_dwordx2 s[6:7], s[0:1], 0\ns_waitcnt lgkmcnt(0)")
    srd(a, 8, 6, 0, L*D*2)
    srd(a, 12, 4, XN, L*D*2)
    srd(a, 16, 4, XP, 576*5120)
    a(f"""v_lshrrev_b32 v1, 6, v0
v_and_b32 v2, 63, v0
s_mul_i32 s20, s2, {4*R*1152}
v_mul_u32_u24 v4, {R*1152}, v1
v_lshl_add_u32 v4, v2, 2, v4
v_cmp_gt_u32 s[22:23], 32, v2""")
    DA=8; UP=8+5*R; MU=UP+10*R; VA=MU+R; RC=VA+R; TM=RC+R
    for i in range(R):
        for j in range(4): a(f"buffer_load_dword v{DA+5*i+j}, v4, s[8:11], s20 offen offset:{1152*i+256*j}")
        a(f"v_mov_b32 v{DA+5*i+4}, 0")
    a("s_mov_b64 s[24:25], exec\ns_mov_b64 exec, s[22:23]")
    for i in range(R): a(f"buffer_load_dword v{DA+5*i+4}, v4, s[8:11], s20 offen offset:{1152*i+1024}")
    a("s_mov_b64 exec, s[24:25]\ns_waitcnt vmcnt(0)")
    for i in range(R):
        for j in range(5):
            a(f"v_lshlrev_b32 v{UP+10*i+2*j}, 16, v{DA+5*i+j}\nv_and_b32 v{UP+10*i+2*j+1}, 0xffff0000, v{DA+5*i+j}")
    def reduce(base):
        for op in ("row_shr:1 row_mask:0xf","row_shr:2 row_mask:0xf","row_shr:4 row_mask:0xf","row_shr:8 row_mask:0xf","row_bcast:15 row_mask:0xa","row_bcast:31 row_mask:0xc"):
            a("s_nop 1")
            for i in range(R): a(f"v_add_f32_dpp v{base+i}, v{base+i}, v{base+i} {op} bank_mask:0xf bound_ctrl:0")
        a("s_nop 1")
        for i in range(R): a(f"v_readlane_b32 s{40+i}, v{base+i}, 63")
        for i in range(R): a(f"v_mov_b32 v{base+i}, s{40+i}")
    for i in range(R):
        a(f"v_add_f32 v{MU+i}, v{UP+10*i}, v{UP+10*i+1}")
        for j in range(2,10): a(f"v_add_f32 v{MU+i}, v{MU+i}, v{UP+10*i+j}")
    reduce(MU)
    a("s_mov_b32 s26, 0x3ae38e39")
    for i in range(R): a(f"v_mul_f32 v{MU+i}, s26, v{MU+i}")
    for i in range(R):
        a(f"v_mov_b32 v{VA+i}, 0")
        for j in range(10):
            a(f"v_sub_f32 v7, v{UP+10*i+j}, v{MU+i}")
            if j >= 8: a(f"v_cndmask_b32 v7, 0, v7, s[22:23]")
            a(f"v_fmac_f32 v{VA+i}, v7, v7")
    reduce(VA)
    for i in range(R):
        a(f"v_mul_f32 v{VA+i}, s26, v{VA+i}")
        bf16_rne(a, MU+i, MU+i, 7)
        bf16_rne(a, VA+i, VA+i, 7)
        a(f"v_add_f32 v{VA+i}, 0x3727c5ac, v{VA+i}")
        bf16_rne(a, VA+i, VA+i, 7)
        a(f"v_sqrt_f32 v{VA+i}, v{VA+i}\ns_nop 0")
        bf16_rne(a, VA+i, VA+i, 7)
        a(f"v_rcp_f32 v{RC+i}, v{VA+i}\ns_nop 0")
    a(f"v_mul_u32_u24 v5, {1168*R}, v1\nv_lshl_add_u32 v5, v2, 2, v5")
    for i in range(R):
        for j in range(10):
            r = UP+10*i+j
            a(f"v_sub_f32 v{r}, v{r}, v{MU+i}")
            bf16_rne(a, r, r, 7)
            a(f"v_mul_f32 v7, v{r}, v{RC+i}\nv_fma_f32 v{r}, -v7, v{VA+i}, v{r}\nv_fma_f32 v{r}, v{r}, v{RC+i}, v7")
        for j in range(5):
            a(f"v_cvt_pk_bf16_f32 v{DA+5*i+j}, v{UP+10*i+2*j}, v{UP+10*i+2*j+1}")
    for i in range(R):
        for j in range(4): a(f"ds_write_b32 v5, v{DA+5*i+j} offset:{1168*i+256*j}")
    a("s_mov_b64 exec, s[22:23]")
    for i in range(R): a(f"ds_write_b32 v5, v{DA+5*i+4} offset:{1168*i+1024}")
    NR=4*R
    G=32//NR
    a(f"""s_mov_b64 exec, s[24:25]
s_lshr_b32 s27, s2, {G.bit_length()-1}
s_and_b32 s28, s2, {G-1}
s_mul_i32 s29, s27, 36864
s_mul_i32 s30, s28, {NR*16}
s_add_u32 s29, s29, s30
s_mul_i32 s30, s2, 9216
s_mov_b32 s36, {10<<23}
s_waitcnt lgkmcnt(0)
s_barrier""")
    assert NR==8
    for p in range(3):
        b=8+16*p
        a(f"v_add_u32 v{b}, {256*p}, v0")
        if p == 2: a(f"v_cmp_gt_u32 vcc, 576, v{b}\ns_and_saveexec_b64 s[24:25], vcc")
        a(f"""v_lshlrev_b32 v{b+1}, 1, v{b}
v_and_b32 v{b+2}, 7, v{b}
v_lshrrev_b32 v{b+3}, 3, v{b}
v_mul_u32_u24 v4, 1168, v{b+2}
v_lshl_add_u32 v4, v{b+3}, 4, v4
ds_read_b128 v[{b+4}:{b+7}], v4""")
        for r in range(8): a(f"ds_read_u16 v{b+8+r}, v{b+1} offset:{1168*r}")
        a(f"""v_lshlrev_b32 v{b+2}, 4, v{b+2}
v_lshl_add_u32 v{b+2}, v{b+3}, 9, v{b+2}
v_lshlrev_b32 v{b+1}, 4, v{b}""")
    for p in range(3):
        b=8+16*p
        if p==0: a("s_mov_b64 s[34:35], exec\ns_mov_b64 exec, s[24:25]")
        if p==2: a("s_mov_b64 exec, s[34:35]")
        a(f"s_waitcnt lgkmcnt({min(15,9*(2-p)+8)})\nbuffer_store_dwordx4 v[{b+4}:{b+7}], v{b+2}, s[12:15], s29 offen\ns_waitcnt lgkmcnt({min(15,9*(2-p))})")
        for r in range(4): a(f"v_lshl_add_u32 v{b+8+2*r}, v{b+8+2*r}, 16, s36\nv_lshl_add_u32 v{b+8+2*r+1}, v{b+8+2*r+1}, 16, s36\nv_cvt_pk_f16_f32 v{b+8+r}, v{b+8+2*r}, v{b+8+2*r+1}")
        a(f"buffer_store_dwordx4 v[{b+8}:{b+11}], v{b+1}, s[16:19], s30 offen")
    a("s_branch K1_END")
    b=Asm(); img_role(b); b("s_branch K1_END"); tab_role(b,T0)
    return a.text()+b.text().replace("s_sub_u32 s3, s2, 640",f"s_sub_u32 s3, s2, {I0}")+"K1_END:\n    s_endpgm\n", TOT
```

```python
from gen_common import *
from gen_v3 import XP, KR, img_role, tab_role
import gen_k1v as gen_k1e
KD=KR; KDA=4224; KDS=KDA
TBL=0; LA=5760; SC=5952; TL=6144; K1LDS=TL+12288
def kgen_role(a):
    a("""K1_KGEN:
s_load_dwordx8 s[8:15], s[0:1], 8
s_load_dwordx4 s[16:19], s[0:1], 40
s_load_dwordx2 s[20:21], s[0:1], 56
s_waitcnt lgkmcnt(0)
s_lshl_b32 s22, s2, 8
v_lshlrev_b32 v1, 1, v0
v_add_u32 v1, s22, v1
v_cmp_gt_u32 vcc, 128, v0
s_and_saveexec_b64 s[24:25], vcc
global_load_ushort v2, v1, s[8:9]
global_load_ushort v3, v1, s[10:11]
global_load_ushort v4, v1, s[12:13]
global_load_ushort v5, v1, s[14:15]
global_load_ushort v6, v1, s[16:17]
global_load_ushort v7, v1, s[18:19]
s_lshl_b32 s23, s2, 1
v_mov_b32 v8, s23
global_load_ushort v8, v8, s[20:21]
s_mov_b64 exec, s[24:25]
v_and_b32 v12, 63, v0
v_lshrrev_b32 v13, 6, v0
v_and_b32 v14, 15, v12
v_lshrrev_b32 v15, 4, v12
v_lshl_add_u32 v16, v13, 5, v15
v_lshlrev_b32 v16, 4, v16
v_and_b32 v17, 7, v14
v_lshrrev_b32 v18, 3, v14
v_lshl_add_u32 v20, v18, 7, v17
v_and_b32 v17, 3, v14
v_lshlrev_b32 v17, 1, v17
v_bfe_u32 v18, v14, 2, 1
v_lshl_add_u32 v17, v18, 7, v17
v_add_u32 v17, 256, v17
v_and_b32 v18, 1, v14
v_lshlrev_b32 v18, 2, v18
v_bfe_u32 v19, v14, 1, 2
v_lshl_add_u32 v18, v19, 7, v18
v_add_u32 v18, 512, v18
v_cmp_gt_u32 vcc, 8, v14
v_cndmask_b32 v21, v18, v17, vcc
v_lshlrev_b32 v17, 7, v14
v_add_u32 v17, 1024, v17
v_mov_b32 v18, 2056
v_cmp_gt_u32 vcc, 9, v14
v_cndmask_b32 v22, v18, v17, vcc
v_lshlrev_b32 v23, 3, v14
v_cmp_gt_u32 vcc, 16, v0
s_and_saveexec_b64 s[24:25], vcc
v_lshlrev_b32 v17, 2, v14""")
    a(f"""ds_write_b32 v17, v20 offset:{LA}
ds_write_b32 v17, v21 offset:{LA+64}
ds_write_b32 v17, v22 offset:{LA+128}
s_mov_b64 exec, s[24:25]
v_cvt_f32_u32 v20, v20
v_cvt_f32_u32 v21, v21
v_cvt_f32_u32 v22, v22
v_cvt_f32_u32 v23, v23
v_cmp_gt_u32 vcc, 128, v0
s_and_saveexec_b64 s[24:25], vcc
s_waitcnt vmcnt(0)
v_lshlrev_b32 v2, 16, v2
v_lshlrev_b32 v3, 16, v3
v_lshlrev_b32 v4, 16, v4
v_lshlrev_b32 v5, 16, v5
v_lshlrev_b32 v6, 16, v6
v_lshlrev_b32 v7, 16, v7
v_lshlrev_b32 v8, 16, v8
v_mul_f32 v8, 0x3fb8aa3b, v8
v_exp_f32 v8, v8
s_nop 0""")
    bf16_rne(a, 8, 8, 9)
    a("""v_mul_f32 v2, v8, v2
v_mul_f32 v3, v8, v3
v_mul_f32 v4, v8, v4
v_mul_f32 v5, v8, v5
v_mul_f32 v10, v6, v4
v_fma_f32 v10, -v7, v5, v10
v_mul_f32 v11, v6, v5
v_fma_f32 v11, v7, v4, v11
v_mul_f32 v8, 0x3fb8aa3b, v2
v_mul_f32 v9, 0x3e22f983, v3
v_lshlrev_b32 v1, 4, v0
ds_write_b128 v1, v[8:11]
v_add_f32_e64 v17, |v10|, |v11|
v_lshlrev_b32 v18, 2, v13""")
    for op in ("row_shr:1 row_mask:0xf","row_shr:2 row_mask:0xf","row_shr:4 row_mask:0xf","row_shr:8 row_mask:0xf","row_bcast:15 row_mask:0xa","row_bcast:31 row_mask:0xc"):
        a(f"s_nop 1\nv_add_f32_dpp v17, v17, v17 {op} bank_mask:0xf bound_ctrl:0")
    a(f"""s_nop 1
v_readlane_b32 s30, v17, 63
s_nop 3
v_mov_b32 v17, s30
ds_write_b32 v18, v17 offset:{SC}
s_mov_b64 exec, s[24:25]
s_waitcnt lgkmcnt(0)
s_barrier""")
    for t in range(4): a(f"ds_read_b128 v[{36+4*t}:{39+4*t}], v16 offset:{64*t}")
    for t in range(8):
        pb=36+4*(t%4)
        ar,ai,wr,wi = pb,pb+1,pb+2,pb+3
        T=lambda e,k: 52+3*e+k
        a(f"s_waitcnt lgkmcnt({3 if t<5 else 7-t})")
        for e in range(4): a(f"v_mul_f32 v{T(e,0)}, v{ar}, v{20+e}\nv_mul_f32 v{T(e,1)}, v{ai}, v{20+e}")
        for e in (3,0,1,2): a(f"v_fract_f32 v{T(e,1)}, v{T(e,1)}")
        for e in (3,0,1,2): a(f"v_exp_f32 v{T(e,0)}, v{T(e,0)}\nv_sin_f32 v{T(e,2)}, v{T(e,1)}\nv_cos_f32 v{T(e,1)}, v{T(e,1)}")
        for e in (3,0,1,2): a(f"v_mul_f32 v{T(e,1)}, v{T(e,0)}, v{T(e,1)}\nv_mul_f32 v{T(e,2)}, v{T(e,0)}, v{T(e,2)}")
        a(f"v_mul_f32 v{T(3,0)}, v{wi}, v{T(3,2)}\nv_mul_f32 v{T(0,0)}, v{wi}, v{T(3,1)}")
        a(f"v_fma_f32 v{T(3,0)}, v{wr}, v{T(3,1)}, -v{T(3,0)}\nv_fma_f32 v{T(3,1)}, -v{wr}, v{T(3,2)}, -v{T(0,0)}")
        if t<4: a(f"ds_read_b128 v[{pb}:{pb+3}], v16 offset:{64*(t+4)}")
        a("s_nop 1")
        for e in range(3):
            c = "0" if t==0 else f"v[{24+4*e}:{27+4*e}]"
            a(f"v_mfma_f32_16x16x4_f32 v[{24+4*e}:{27+4*e}], v{T(e,1)}, v{T(3,0)}, {c}")
        for e in range(3):
            a(f"v_mfma_f32_16x16x4_f32 v[{24+4*e}:{27+4*e}], v{T(e,2)}, v{T(3,1)}, v[{24+4*e}:{27+4*e}]")
        a("s_nop 1")
    a(f"""s_nop 7
s_nop 7
v_mul_u32_u24 v17, 3072, v13
v_lshl_add_u32 v17, v12, 4, v17
ds_write_b128 v17, v[24:27] offset:{TL}
ds_write_b128 v17, v[28:31] offset:{TL+1024}
ds_write_b128 v17, v[32:35] offset:{TL+2048}
s_mov_b32 s26, {(-0x3f7f*4)&0xffffffff}
s_mov_b32 s27, 0x3f7f3f7f
s_mov_b32 s28, 0x00020002
s_waitcnt lgkmcnt(0)
s_barrier
v_cmp_gt_u32 vcc, 192, v0
s_and_saveexec_b64 s[24:25], vcc
v_lshlrev_b32 v17, 10, v13
v_lshl_add_u32 v17, v12, 4, v17
ds_read_b128 v[24:27], v17 offset:{TL}
ds_read_b128 v[28:31], v17 offset:{TL+3072}
ds_read_b128 v[32:35], v17 offset:{TL+6144}
ds_read_b128 v[36:39], v17 offset:{TL+9216}
v_lshlrev_b32 v18, 6, v13
v_lshl_add_u32 v18, v15, 4, v18
ds_read_b128 v[40:43], v18 offset:{LA}
v_lshlrev_b32 v19, 3, v14
v_mov_b32 v18, 0x4501
s_waitcnt lgkmcnt(0)""")
    for r in range(4):
        a(f"""v_add_f32 v{24+r}, v{24+r}, v{28+r}
v_add_f32 v{32+r}, v{32+r}, v{36+r}
v_add_f32 v{24+r}, v{24+r}, v{32+r}
v_add_u32 v{40+r}, v{40+r}, v19
v_cvt_f32_u32 v44, v{40+r}
v_lshrrev_b32 v44, 16, v44
v_max_u32 v44, 0x3f7f, v44
v_cmp_lt_u32 vcc, 2048, v{40+r}
v_cndmask_b32 v44, v44, v18, vcc
v_lshl_add_u32 v{40+r}, v44, 2, s26
ds_write_b32 v{40+r}, v{24+r} offset:{TBL}""")
    a("""s_mov_b64 exec, s[24:25]
v_lshlrev_b32 v1, 3, v0
v_sub_u32 v1, 2047, v1
v_cvt_f32_u32 v2, v1""")
    srd(a, 8, 4, KD, 576*KDS)
    a(f"s_mul_i32 s22, s2, {KDS}")
    fl={1:"1.0",2:"2.0",3:"0x40400000",4:"4.0",5:"0x40a00000",6:"0x40c00000",7:"0x40e00000"}
    for m in range(4):
        x0 = "v2" if m==0 else "v3"
        if m: a(f"v_subrev_f32 v3, {fl[2*m]}, v2")
        a(f"""v_subrev_f32 v4, {fl[2*m+1]}, v2
v_cvt_pk_bf16_f32 v5, {x0}, v4
v_pk_sub_u16 v5, v5, s27 clamp
v_pk_lshlrev_b16 v5, s28, v5
v_and_b32 v{44+2*m}, 0xffff, v5
v_lshrrev_b32 v{45+2*m}, 16, v5""")
    a(f"""v_mov_b32 v2, 0
ds_read_b64 v[32:33], v2 offset:{SC}
s_waitcnt lgkmcnt(0)
s_barrier""")
    for u in range(8): a(f"ds_read_b32 v{24+u}, v{44+u} offset:{TBL}")
    a(f"""v_add_f32 v32, v32, v33
v_lshrrev_b32 v32, 23, v32
v_max_u32 v32, 32, v32
v_sub_u32 v33, 268, v32
v_lshlrev_b32 v33, 23, v33
v_subrev_u32 v32, 24, v32
v_lshlrev_b32 v32, 23, v32
v_lshlrev_b32 v1, 4, v0
v_cmp_gt_u32 vcc, 8, v0
s_and_saveexec_b64 s[24:25], vcc
s_cbranch_execz K1_KZ
v_add_u32 v3, 4096, v1
v_cmp_eq_u32 vcc, 4, v0
v_cndmask_b32 v4, 0, v32, vcc
v_mov_b32 v5, 0
v_mov_b32 v6, 0
v_mov_b32 v7, 0
buffer_store_dwordx4 v[4:7], v3, s[8:11], s22 offen
K1_KZ:
s_mov_b64 exec, s[24:25]""")
    for m in range(4):
        a(f"""s_waitcnt lgkmcnt({6-2*m})
v_mul_f32 v{24+2*m}, v{24+2*m}, v33
v_mul_f32 v{25+2*m}, v{25+2*m}, v33
v_cvt_pk_f16_f32 v{36+m}, v{24+2*m}, v{25+2*m}""")
    a(f"""buffer_store_dwordx4 v[36:39], v1, s[8:11], s22 offen""")
    from gen_v3 import YAT
    srd(a,12,4,YAT,L*D*2+4096+9216)
    a(f"""v_mov_b32 v40, -1
v_mov_b32 v41, -1
v_mov_b32 v42, -1
v_mov_b32 v43, -1
s_lshl_b32 s23, s2, 12
buffer_store_dwordx4 v[40:43], v1, s[12:15], s23 offen
s_lshl_b32 s23, s2, 4
s_add_u32 s23, s23, {L*D*2+4096}
v_mov_b32 v44, 0
v_lshlrev_b32 v45, 2, v0
v_cmp_gt_u32 vcc, 4, v0
s_and_saveexec_b64 s[24:25], vcc
buffer_store_dword v44, v45, s[12:15], s23 offen
s_branch K1_END""")

def gen_k1f():
    t,TOT=gen_k1e.gen_k1e()
    head="k1_kernel:\n    s_load_dwordx2 s[4:5], s[0:1], 120\n    s_mov_b32 s90, 0x7fff\n"
    assert t.startswith(head)
    t=head+"    s_cmp_lt_u32 s2, 576\n    s_cbranch_scc1 K1_KGEN\n    s_sub_u32 s2, s2, 576\n"+t[len(head):]
    b=Asm(); kgen_role(b)
    tail="K1_END:\n    s_endpgm\n"
    assert t.endswith(tail)
    return t[:-len(tail)]+b.text()+tail, TOT+576
```

```python
from gen_common import *
import gen_k1d as gen_k1
from gen_conv3 import gen_k4t
import gen_k3u
from gen_k3u import gen_k3g as gen_k3d, K3LDS
from gen_k2z import gen_k2k as gen_k2g
from gen_v3 import *
import sys
from gen_k1w import gen_k1f as gen_k1e, K1LDS
import os
if os.environ.get('KPV'): gen_k3u.KP,gen_k3u.EX=[int(x) for x in os.environ['KPV'].split(',')]
if os.environ.get('FINE'): gen_k3u.FINE=int(os.environ['FINE'])
k1,TOT=gen_k1e()
k3=gen_k3d(int(sys.argv[2]) if len(sys.argv)>2 else 0)
ref=open(f"cdna_kernels/{NAME}.s.ref").read().split("\n")
out="\n".join(l for l in ref if l.startswith(";") and "@launch" not in l)+"\n"
out+=f"; @launch kernel=k1_kernel grid=({TOT},1,1) block=(256,1,1) lds={K1LDS}\n"
out+="; @launch kernel=k2f_kernel grid=(256,1,1) block=(256,1,1) lds=157184\n"
out+=f"; @launch kernel=k3c_kernel grid=({576+gen_k3u.NRW},1,1) block=(256,1,1) lds={K3LDS}\n"
out+='.amdgcn_target "amdgcn-amd-amdhsa--gfx950"\n.text\n'
def stamp(t, n, idx):
    st=f"""    s_cmp_lg_u32 s2, 0
    s_cbranch_scc1 STK{idx}
    s_load_dwordx2 s[96:97], s[0:1], 120
    s_memrealtime s[98:99]
    s_waitcnt lgkmcnt(0)
    v_mov_b32 v1, {ST+48+4*idx}
    v_mov_b32 v2, s98
    global_store_dword v1, v2, s[96:97]
STK{idx}:
"""
    return t.replace(n+":\n", n+":\n"+st, 1)
for idx,(n,t) in enumerate((("k1_kernel",k1),("k2f_kernel",gen_k2g()),("k3c_kernel",k3))):
    if idx<2: t='\n'.join(l+' sc1' if 'buffer_store' in l else l for l in t.split('\n'))
    t=stamp(t,n,idx)
    out+=f".globl {n}\n.p2align 8\n.type {n},@function\n"+t
out+='.section .rodata,"a"\n'
for n,v,ac in (("k1_kernel",64,64),("k2f_kernel",512,256),("k3c_kernel",128,128)):
    out+=".p2align 6\n"+kd(n,v,102,ac)
open(sys.argv[1] if len(sys.argv)>1 else f"cdna_kernels/{NAME}.s","w").write(out)
```
